```python
import torch

def _softmax(x, axis=-1):
    return torch.softmax(x, dim=axis)

def _gelu(x):
    return torch.nn.functional.gelu(x, approximate='tanh')

def _silu(x):
    return torch.nn.functional.silu(x)

def _sigmoid(x):
    return torch.sigmoid(x)

def _layernorm(x, axis=-1, eps=1e-05):
    m = x.mean(dim=axis, keepdim=True)
    v = x.var(dim=axis, keepdim=True, unbiased=False)
    return (x - m) / torch.sqrt(v + eps)

def _scatter_add(tgt, idx, src, axis=0):
    return tgt.clone().index_add_(axis, idx, src)

def _segment_sum(src, seg, n):
    out = torch.zeros((n,) + src.shape[1:], dtype=src.dtype)
    return out.index_add_(0, seg, src)

def _pad(x, pw):
    flat = tuple((v for pair in reversed(pw) for v in pair))
    return torch.nn.functional.pad(x, flat)
kernel_name = 'adaLN_cond__ssm_conv_s4d__dense_activation_silu__prompt'

def setup_inputs():

    _w = lambda a: (lambda t: t.to(torch.bfloat16) if t.is_floating_point() else t)(torch.as_tensor(a))

    def _A_setup():
        Bsz, L, D, N = (1, 2048, 576, 128)
        return {'u': _w((lambda *s: torch.randn(*s, dtype=torch.bfloat16) * 0.05)(Bsz, L, D)), 'log_A_real': _w((lambda *s: torch.randn(*s, dtype=torch.bfloat16) * 3.2)(D, N) * 0.5), 'A_imag': _w((lambda *s: torch.randn(*s, dtype=torch.bfloat16) * 0.05)(D, N) * 3.14), 'C_real': _w((lambda *s: torch.randn(*s, dtype=torch.bfloat16) * 0.2)(D, N) / N ** 0.5), 'C_imag': _w((lambda *s: torch.randn(*s, dtype=torch.bfloat16) * 0.2)(D, N) / N ** 0.5), 'log_dt': _w((lambda *s: torch.randn(*s, dtype=torch.bfloat16) * 0.05)(D) * 0.5 - 4.0), 'D_skip': _w((lambda *s: torch.randn(*s, dtype=torch.bfloat16) * 0.1)(D))}
    _A_in = _A_setup()

    def _B_setup():
        B, S, D, F = (1, 2048, 576, 4608)
        return {'x': _w((lambda *s: torch.randn(*s, dtype=torch.bfloat16) * 0.05)(B, S, D)), 'w1': _w((lambda *s: torch.randn(*s, dtype=torch.bfloat16) * 3.2)(D, F) * D ** (-0.5)), 'w2': _w((lambda *s: torch.randn(*s, dtype=torch.bfloat16) * 0.4)(F, D) * F ** (-0.5))}
    _B_in = _B_setup()
    return {'A_u': _A_in['u'], 'A_log_A_real': _A_in['log_A_real'], 'A_A_imag': _A_in['A_imag'], 'A_C_real': _A_in['C_real'], 'A_C_imag': _A_in['C_imag'], 'A_log_dt': _A_in['log_dt'], 'A_D_skip': _A_in['D_skip'], 'B_x': _B_in['x'], 'B_w1': _B_in['w1'], 'B_w2': _B_in['w2'], 'c': _w((lambda *s: torch.randn(*s, dtype=torch.bfloat16) * 0.2)(1, 576) * 8.0), 'w_mod': _w((lambda *s: torch.randn(*s, dtype=torch.bfloat16) * 0.2)(576, 6 * 576) * 576 ** (-0.5) * 8.0)}

def reference(A_u, A_log_A_real, A_A_imag, A_C_real, A_C_imag, A_log_dt, A_D_skip, B_x, B_w1, B_w2, c, w_mod):

    def _A_ref(u, log_A_real, A_imag, C_real, C_imag, log_dt, D_skip):
        L = u.shape[1]
        dt = torch.exp(log_dt)
        A = -torch.exp(log_A_real) + 1j * A_imag
        C = (C_real + 1j * C_imag) * dt[:, None]
        pos = (lambda x, dt: x.to(dt))(torch.arange(L), log_dt.dtype)
        P = torch.exp((A * dt[:, None])[:, :, None] * pos[None, None, :])
        K = 2.0 * torch.einsum('dn,dnl->dl', C, P).real
        L2 = 2 * L
        u_t = (lambda x, *d: x.permute(*d))(u, 0, 2, 1)
        Kf = (lambda x, *a, **k: torch.fft.rfft(x.float(), *a, **k))(K, L2)
        Uf = (lambda x, *a, **k: torch.fft.rfft(x.float(), *a, **k))(u_t, L2)
        y = (lambda x, *a, **k: torch.fft.irfft(x, *a, **k).to(torch.bfloat16))(Uf * Kf[None, :, :], L2)[:, :, :L]
        y = (lambda x, *d: x.permute(*d))(y, 0, 2, 1)
        return y + u * D_skip[None, None, :]

    def _B_ref(x, w1, w2):
        h = torch.einsum('bsd,df->bsf', x, w1)
        h = _silu(h)
        out = torch.einsum('bsf,fd->bsd', h, w2)
        return out
    x = A_u
    mod = (_silu(c) @ w_mod).reshape(c.shape[0], 6, 1, -1)
    sa, ca, ga, sb, cb, gb = (mod[:, 0].clone(), mod[:, 1].clone(), mod[:, 2].clone(), mod[:, 3].clone(), mod[:, 4].clone(), mod[:, 5].clone())
    h = _layernorm(x, axis=-1) * (1 + ca) + sa
    x = x + ga * _A_ref(h, A_log_A_real, A_A_imag, A_C_real, A_C_imag, A_log_dt, A_D_skip)
    h = _layernorm(x, axis=-1) * (1 + cb) + sb
    x = x + gb * _B_ref(h, B_w1, B_w2)
    return x
```

```python
import re

TRANS = ('v_exp_f32','v_log_f32','v_rcp_f32','v_rsq_f32','v_sqrt_f32','v_sin_f32','v_cos_f32','v_rcp_iflag_f32')

def regs_of(op):
    op = op.strip()
    neg = op.lstrip('-')
    m = re.fullmatch(r'abs\((.*)\)', neg)
    if m: neg = m.group(1)
    neg = neg.strip('|')
    m = re.fullmatch(r'([vsa])(\d+)', neg)
    if m: return [(m.group(1), int(m.group(2)))]
    m = re.fullmatch(r'([vsa])\[(\d+):(\d+)\]', neg)
    if m: return [(m.group(1), i) for i in range(int(m.group(2)), int(m.group(3))+1)]
    if neg == 'vcc': return [('s',106),('s',107)]
    if neg == 'vcc_lo': return [('s',106)]
    if neg == 'vcc_hi': return [('s',107)]
    if neg == 'exec': return [('s',126),('s',127)]
    if neg == 'm0': return [('s',124)]
    return []

def split_ops(s):
    out=[]; depth=0; cur=''
    for ch in s:
        if ch in '[(': depth+=1
        if ch in '])': depth-=1
        if ch==',' and depth==0:
            out.append(cur.strip()); cur=''
        else: cur+=ch
    if cur.strip(): out.append(cur.strip())
    return out

MFMA_PASS = {'v_mfma_f32_16x16x32_bf16':(4,'x'),'v_mfma_f32_32x32x16_bf16':(8,'x'),
             'v_mfma_f32_16x16x32_f16':(4,'x'),'v_mfma_f32_16x16x4_f32':(8,'s'),'v_mfma_f32_32x32x2_f32':(16,'s')}

class Ins:
    def __init__(self, text):
        self.text = text
        t = text.split(';')[0].strip()
        self.label = t.endswith(':')
        self.directive = t.startswith('.')
        self.mn = ''
        self.w = set(); self.r = set(); self.kind = 'none'
        self.srcc = set(); self.ab=set()
        if not t or self.label or self.directive: return
        parts = t.split(None,1)
        mn = parts[0]; self.mn = mn
        rest = parts[1] if len(parts)>1 else ''
        ops = split_ops(rest)
        clean=[]
        self.mods=''
        for i,o in enumerate(ops):
            toks = o.split()
            if len(toks)>1:
                clean.append(toks[0]); self.mods += ' '+' '.join(toks[1:])
            else: clean.append(o)
        ops = clean
        R = lambda lst: set(x for o in lst for x in regs_of(o))
        base = mn.replace('_e32','').replace('_e64','').replace('_dpp','').replace('_sdwa','')
        self.base = base
        self.dpp = mn.endswith('_dpp') or 'quad_perm' in self.mods or 'row_' in self.mods
        if base.startswith('v_mfma'):
            self.kind='mfma'; self.w=R(ops[:1]); self.ab=R(ops[1:3]); self.srcc=R(ops[3:4]); self.r=self.ab|self.srcc
            self.passes,self.cls = MFMA_PASS[base]
            self.dstr = ops[0]; self.cstr = ops[3]
        elif base.startswith('v_'):
            self.kind='valu'
            self.trans = base in TRANS
            if base.startswith('v_cmp'):
                self.w=R(ops[:1]); self.r=R(ops[1:])
                if base.startswith('v_cmpx'): self.w |= set(regs_of('exec'))
            elif base in ('v_add_co_u32','v_sub_co_u32','v_addc_co_u32','v_subb_co_u32','v_mad_u64_u32','v_div_scale_f32'):
                self.w=R(ops[:2]); self.r=R(ops[2:])
            elif base in ('v_permlane32_swap_b32','v_permlane16_swap_b32','v_swap_b32'):
                self.w=R(ops[:2]); self.r=R(ops[:2])
            else:
                self.w=R(ops[:1]); self.r=R(ops[1:])
                if base in ('v_fmac_f32','v_dot2c_f32_bf16','v_pk_fmac_f16','v_writelane_b32') or self.dpp:
                    self.r |= R(ops[:1])
                if base=='v_cndmask_b32' and len(ops)==3: self.r |= set(regs_of('vcc'))
        elif base.startswith('buffer_') or base.startswith('global_'):
            self.kind='vmem'
            lds = ' lds' in (' '+self.mods) or 'load_lds' in base
            self.lds=lds
            if 'store' in base or ('atomic' in base):
                self.r=R(ops)
                self.store_data = R(ops[:1]) if base.startswith('buffer_') else R(ops[1:2])
                self.wide = ('x4' in base or 'x3' in base)
            elif lds:
                self.r=R(ops)|set(regs_of('m0'))
            else:
                self.w=R(ops[:1]); self.r=R(ops[1:])
                if 'd16' in base: self.r|=R(ops[:1])
        elif base.startswith('ds_'):
            self.kind='ds'
            if base.startswith('ds_write') or base.startswith('ds_add') :
                self.r=R(ops)
            else:
                self.w=R(ops[:1]); self.r=R(ops[1:])
                if 'd16' in base: self.r|=R(ops[:1])
        elif base.startswith('s_'):
            self.kind='salu'
            if base.startswith('s_load') or base.startswith('s_buffer_load'):
                self.kind='smem'; self.w=R(ops[:1]); self.r=R(ops[1:])
            elif base.startswith('s_cmp') or base.startswith('s_cbranch') or base in ('s_branch','s_waitcnt','s_barrier','s_nop','s_endpgm','s_setprio','s_sleep'):
                self.r=R(ops)
            elif 'saveexec' in base:
                self.w=R(ops[:1])|set(regs_of('exec')); self.r=R(ops[1:])
            else:
                self.w=R(ops[:1]); self.r=R(ops[1:])
        else:
            raise ValueError('unknown instr '+text)
    def states(self):
        if self.mn=='s_nop':
            return int(self.text.split(';')[0].split()[1],0)+1
        if self.kind=='none': return 0
        return 1

XDL_VALU={2:5,4:8,8:12,16:20}
SG_VALU={2:4,4:6,8:10,16:18}
XDL_OVL={2:4,4:6,8:10,16:18}
SG_OVL={2:2,4:4,8:8,16:16}
WAR_C={2:1,4:3,8:7,16:15}

def need(p, c):
    n=0
    vw = set(x for x in p.w if x[0] in 'va')
    sw = set(x for x in p.w if x[0]=='s')
    if p.kind=='valu':
        if c.kind=='mfma' and vw & c.r: n=max(n,2)
        if c.kind=='valu':
            if p.trans and not c.trans and (vw & c.r): n=max(n,1)
            if p.trans and c.trans and (vw & c.r): n=max(n,1)
            if c.base in ('v_readfirstlane_b32','v_readlane_b32') and vw & c.r: n=max(n,1)
            if c.dpp and vw & c.r: n=max(n,2)
            if c.base.startswith('v_permlane') and vw & c.r: n=max(n,2)
            if sw & c.r:
                n=max(n,4 if c.base in ('v_readlane_b32','v_writelane_b32') else 2)
        if c.kind=='mfma' and p.trans and vw & c.r: n=max(n,2)
        if c.kind=='vmem' and sw & c.r: n=max(n,5)
        if c.kind in ('vmem','ds') and p.trans and vw & c.r: n=max(n,1)
        if c.kind in ('salu','smem') and sw & c.r: n=max(n,1)
    if p.kind=='mfma':
        tab = XDL_VALU if p.cls=='x' else SG_VALU
        if c.kind=='valu' and (vw & (c.r|c.w)): n=max(n,tab[p.passes])
        if c.kind in ('vmem','ds') and (vw & (c.r|c.w)): n=max(n,tab[p.passes])
        if c.kind=='mfma':
            if vw & c.ab: n=max(n,tab[p.passes])
            if vw & c.srcc:
                if c.cstr==p.dstr and c.passes==p.passes and c.cls==p.cls:
                    n=max(n, 2 if p.passes==2 else 0)
                else:
                    n=max(n,(XDL_OVL if p.cls=='x' else SG_OVL)[p.passes])
            elif vw & c.w:
                n=max(n,(XDL_OVL if p.cls=='x' else SG_OVL)[p.passes])
        if p.cls=='x' and c.kind=='valu' and (p.srcc & c.w): n=max(n,WAR_C[p.passes])
        if p.cls=='x' and c.kind in ('vmem','ds') and (p.srcc & c.w): n=max(n,WAR_C[p.passes])
    if p.kind=='salu':
        if ('s',124) in p.w and c.kind=='vmem' and getattr(c,'lds',False): n=max(n,1)
    if p.kind=='vmem' and getattr(p,'wide',False):
        if p.store_data & c.w: n=max(n,2 if c.kind in('valu','mfma') else 1)
    return n

def hazard_pass(lines):
    ins=[Ins(l) for l in lines]
    out=[]
    W=24
    def req(hist, c):
        dist=0; add=0
        for p in reversed(hist):
            if p.kind!='none':
                nd = need(p,c)
                if nd>dist: add=max(add, nd-dist)
            dist+=p.states()
            if dist>=W: break
        return add
    for c in ins:
        if c.kind!='none':
            a=req(out,c)
            while a>0:
                k=min(a,16)
                out.append(Ins(f'    s_nop {k-1}')); a-=k
        out.append(c)
    labels={}
    for i,c in enumerate(out):
        if c.label: labels[c.text.split(';')[0].strip()[:-1]]=i
    changed=True
    while changed:
        changed=False
        labels={}
        for i,c in enumerate(out):
            if c.label: labels[c.text.split(';')[0].strip()[:-1]]=i
        for i,c in enumerate(out):
            if c.mn.startswith('s_cbranch') or c.mn=='s_branch':
                tgt=c.text.split(';')[0].split()[1]
                if tgt not in labels: continue
                j=labels[tgt]
                hist=out[max(0,i-W):i+1]
                worst=0
                h=list(hist)
                d=0
                for c2 in out[j:j+2*W]:
                    if c2.kind=='none': continue
                    a=req(h,c2)
                    worst=max(worst,a)
                    h.append(c2)
                    d+=c2.states()
                    if d>=W or c2.mn in('s_branch','s_endpgm'): break
                if worst>0:
                    k=min(worst,16)
                    out.insert(i,Ins(f'    s_nop {k-1}'))
                    changed=True
                    break
    return [c.text for c in out]

class Asm:
    def __init__(self):
        self.lines=[]
    def __call__(self, s):
        for l in s.strip('\n').split('\n'):
            l=l.rstrip()
            if not l.strip(): continue
            t=l.strip()
            if t.endswith(':') or t.startswith('.') : self.lines.append(t)
            else: self.lines.append('    '+t)
    def label(self,n): self.lines.append(n+':')
    def text(self):
        return '\n'.join(hazard_pass(self.lines))+'\n'
```

```python
import sys,os
from asmlib import Asm

NAME='adaLN_cond__ssm_conv_s4d__dense_activation_silu__prompt'
KA=dict(x=0,lar=8,aim=16,cr=24,ci=32,logdt=40,dskip=48,w1=64,w2=72,c=80,wmod=88,out=96,dbg=104,ws=112)
WS=dict(MOD=0x0, CS=0x10000, BIAS=0x20000, XT=0x100000, XNT=0x400000, KF=0x700000, X1T=0xC00000,
        W1F=0x1000000, W2F=0x1800000, HF=0x2000000)
SZ_XT=576*2048*2
KF_CS=4160
SZ_KF=576*2*KF_CS
SZ_W=576*4608*2
SZ_H=2048*4608*2
LOG2E=0x3fb8aa3b
INV2PI=0x3e22f983

def srd(A, d, base, size, off=0):
    if off:
        A(f's_add_u32 s{d}, s{base}, {off:#x}')
        A(f's_addc_u32 s{d+1}, s{base+1}, 0')
    else:
        A(f's_mov_b32 s{d}, s{base}')
        A(f's_mov_b32 s{d+1}, s{base+1}')
    A(f's_mov_b32 s{d+2}, {size:#x}')
    A(f's_mov_b32 s{d+3}, 0x00020000')

def kd(name, vgpr, sgpr=102, agpr=0):
    acc=(vgpr+3)//4*4
    return f'''.section .rodata,"a"
.p2align 6
.amdhsa_kernel {name}
  .amdhsa_next_free_vgpr {acc+agpr if agpr else vgpr}
  .amdhsa_next_free_sgpr {sgpr}
  .amdhsa_accum_offset {acc}
  .amdhsa_group_segment_fixed_size 0
  .amdhsa_kernarg_size 120
  .amdhsa_user_sgpr_count 2
  .amdhsa_user_sgpr_kernarg_segment_ptr 1
  .amdhsa_system_sgpr_workgroup_id_x 1
.end_amdhsa_kernel
'''

STAMP=bool(os.environ.get('STAMP'))
def stamp(A,i):
    if STAMP:
        A(f's_mem{"real" if os.environ.get("STAMP")=="2" else ""}time s[{60+2*i}:{61+2*i}]')
def stamp_out(A,n,slot):
    if not STAMP: return
    A('s_waitcnt lgkmcnt(0)')
    srd(A,92,4,1<<22,0x8000000+slot*(1<<22))
    A('v_readfirstlane_b32 s96, v0')
    A('s_lshr_b32 s96, s96, 6')
    A('s_lshl_b32 s97, s2, 2')
    A('s_add_u32 s96, s96, s97')
    A('s_lshl_b32 s96, s96, 6')
    A('v_mov_b32 v1, 0')
    for i in range(n):
        A(f'v_mov_b32 v2, s{60+2*i}')
        A(f'buffer_store_dword v2, v1, s[92:95], s96 offen offset:{4*i}')

def unpack(A, dlo, dhi, src):
    A(f'v_lshlrev_b32 v{dlo}, 16, v{src}')
    A(f'v_and_b32 v{dhi}, 0xffff0000, v{src}')

K1_LN=64; K1_MOD=54; K1_W2=144; K1_KG=576
K1_GRID=K1_LN+K1_MOD+K1_W2+K1_KG
RS=1184
K1_LDS=32*RS

import os
SKIP=os.environ.get('SKIP','').split(',')
def gen_k1():
    A=Asm()
    A('k1_kernel:')
    A(f's_load_dwordx2 s[4:5], s[0:1], {KA["ws"]}')
    A(f's_cmp_lt_u32 s2, {K1_LN}')
    A('s_cbranch_scc1 K1_LN')
    A(f's_cmp_lt_u32 s2, {K1_LN+K1_MOD}')
    A('s_cbranch_scc1 K1_MOD')
    A(f's_cmp_lt_u32 s2, {K1_LN+K1_MOD+K1_W2}')
    A('s_cbranch_scc1 K1_W2')
    A(f's_cmp_lt_u32 s2, {K1_GRID}')
    A('s_cbranch_scc1 K1_KG')
    A('s_endpgm')

    def load_tile(delta=False):
        A('v_lshrrev_b32 v1, 3, v0')
        A('v_and_b32 v2, 7, v0')
        A('v_add_u32 v3, s20, v1')
        if delta:
            A('v_lshrrev_b32 v4, 4, v1')
            A('v_mul_u32_u24 v4, s21, v4')
            A('v_add_u32 v3, v3, v4')
        A('v_mul_u32_u24 v3, 1152, v3')
        A('v_lshl_add_u32 v3, v2, 4, v3')
        for c in range(9):
            A(f'buffer_load_dwordx4 v[{8+4*c}:{11+4*c}], v3, s[8:11], 0 offen offset:{c*128}')
        A(f'v_mul_u32_u24 v4, {RS}, v1')
        A('v_lshl_add_u32 v4, v2, 4, v4')
    def write_tile(base):
        for c in range(9):
            A(f'ds_write_b128 v4, v[{base+4*c}:{base+3+4*c}] offset:{c*128}')

    A('K1_LN:')
    if 'K1_LN' in SKIP: A('s_endpgm')
    stamp(A,0)
    A('s_setprio 3')
    A(f's_load_dwordx2 s[6:7], s[0:1], {KA["x"]}')
    A('s_lshl_b32 s20, s2, 5')
    A('s_waitcnt lgkmcnt(0)')
    srd(A,8,6,SZ_XT)
    srd(A,12,4,SZ_XT,WS['XT'])
    srd(A,16,4,SZ_XT,WS['XNT'])
    load_tile()
    A('v_and_b32 v116, 63, v0')
    A('v_lshrrev_b32 v117, 6, v0')
    A('v_lshrrev_b32 v118, 4, v116')
    A('v_and_b32 v119, 15, v116')
    A('v_lshrrev_b32 v120, 2, v119')
    A('v_lshl_add_u32 v120, v118, 3, v120')
    A(f'v_mul_u32_u24 v5, {RS}, v120')
    A('v_and_b32 v120, 3, v119')
    A('v_lshl_add_u32 v5, v120, 3, v5')
    A('v_mul_u32_u24 v120, 288, v117')
    A('v_add_u32 v5, v5, v120')
    A('v_mul_u32_u24 v6, 144, v117')
    A('v_add_u32 v6, v6, v119')
    A('v_lshlrev_b32 v6, 12, v6')
    A('v_lshl_add_u32 v6, v118, 4, v6')
    A('s_lshl_b32 s21, s20, 1')
    A('v_add_u32 v6, s21, v6')
    A('s_waitcnt vmcnt(0)')
    stamp(A,1)
    write_tile(8)
    U=44
    for i in range(36): unpack(A,U+2*i,U+2*i+1,8+i)
    A(f'v_pk_add_f32 v[116:117], v[{U}:{U+1}], v[{U+2}:{U+3}]')
    A(f'v_pk_add_f32 v[118:119], v[{U+4}:{U+5}], v[{U+6}:{U+7}]')
    for i in range(4,36,2):
        A(f'v_pk_add_f32 v[116:117], v[116:117], v[{U+2*i}:{U+2*i+1}]')
        A(f'v_pk_add_f32 v[118:119], v[118:119], v[{U+2*i+2}:{U+2*i+3}]')
    A('v_pk_add_f32 v[116:117], v[116:117], v[118:119]')
    A('v_add_f32 v116, v116, v117')
    def red8(r):
        A(f'v_add_f32_dpp v{r}, v{r}, v{r} quad_perm:[1,0,3,2] row_mask:0xf bank_mask:0xf')
        A(f'v_add_f32_dpp v{r}, v{r}, v{r} quad_perm:[2,3,0,1] row_mask:0xf bank_mask:0xf')
        A(f'v_add_f32_dpp v{r}, v{r}, v{r} row_half_mirror row_mask:0xf bank_mask:0xf')
    red8(116)
    A('s_waitcnt lgkmcnt(0)')
    A('s_barrier')
    def tr_tile(rows_h):
        for q in range(9):
            A(f'ds_read_b64_tr_b16 v[{8+4*q}:{9+4*q}], v5 offset:{q*32}')
            A(f'ds_read_b64_tr_b16 v[{10+4*q}:{11+4*q}], v5 offset:{q*32+rows_h*RS}')
    tr_tile(4)
    A('v_mul_f32 v116, 0x3ae38e39, v116')
    A('v_sub_f32 v118, 0, v116')
    A('v_mov_b32 v119, v118')
    A('v_mov_b32 v120, 0')
    A('v_mov_b32 v121, 0')
    A('v_mov_b32 v122, 0')
    A('v_mov_b32 v123, 0')
    for i in range(0,36,2):
        A(f'v_pk_add_f32 v[124:125], v[{U+2*i}:{U+2*i+1}], v[118:119]')
        A(f'v_pk_add_f32 v[126:127], v[{U+2*i+2}:{U+2*i+3}], v[118:119]')
        A('v_pk_fma_f32 v[120:121], v[124:125], v[124:125], v[120:121]')
        A('v_pk_fma_f32 v[122:123], v[126:127], v[126:127], v[122:123]')
    A('v_pk_add_f32 v[120:121], v[120:121], v[122:123]')
    A('v_add_f32 v120, v120, v121')
    red8(120)
    A('s_waitcnt lgkmcnt(0)')
    for q in range(9):
        A(f's_mov_b32 s22, {q*65536}')
        A(f'buffer_store_dwordx4 v[{8+4*q}:{11+4*q}], v6, s[12:15], s22 offen nt')
    A('v_mul_f32 v120, 0x3ae38e39, v120')
    A('v_cvt_pk_bf16_f32 v121, v116, v120')
    A('v_lshlrev_b32 v116, 16, v121')
    A('v_and_b32 v120, 0xffff0000, v121')
    A('v_add_f32 v120, 0x3727c5ac, v120')
    A('v_cvt_pk_bf16_f32 v120, v120, v120')
    A('v_lshlrev_b32 v120, 16, v120')
    A('v_sqrt_f32 v120, v120')
    A('v_cvt_pk_bf16_f32 v120, v120, v120')
    A('v_lshlrev_b32 v120, 16, v120')
    A('v_rcp_f32 v120, v120')
    A('v_sub_f32 v118, 0, v116')
    A('v_mov_b32 v119, v118')
    A('v_mov_b32 v121, v120')
    for i in range(36):
        a=U+2*i
        A(f'v_pk_add_f32 v[{a}:{a+1}], v[{a}:{a+1}], v[118:119]')
        A(f'v_cvt_pk_bf16_f32 v{a}, v{a}, v{a+1}')
        A(f'v_and_b32 v{a+1}, 0xffff0000, v{a}')
        A(f'v_lshlrev_b32 v{a}, 16, v{a}')
        A(f'v_pk_mul_f32 v[{a}:{a+1}], v[{a}:{a+1}], v[120:121]')
    for i in range(36):
        A(f'v_cvt_pk_bf16_f32 v{U+i}, v{U+2*i}, v{U+2*i+1}')
    A('s_barrier')
    write_tile(U)
    A('s_waitcnt lgkmcnt(0)')
    A('s_barrier')
    A('s_waitcnt vmcnt(0)')
    tr_tile(4)
    A('s_waitcnt lgkmcnt(0)')
    for q in range(9):
        A(f's_mov_b32 s22, {q*65536}')
        A(f'buffer_store_dwordx4 v[{8+4*q}:{11+4*q}], v6, s[16:19], s22 offen nt')
    stamp(A,2)
    if STAMP: A('s_waitcnt vmcnt(0)')
    stamp(A,3)
    stamp_out(A,4,0)
    A('s_endpgm')

    A('K1_W2:')
    if 'K1_W2' in SKIP: A('s_endpgm')
    stamp(A,0)
    A(f's_load_dwordx2 s[6:7], s[0:1], {KA["w2"]}')
    A(f's_sub_u32 s23, s2, {K1_LN+K1_MOD}')
    A('s_mul_i32 s24, s23, 57')
    A('s_lshr_b32 s24, s24, 9')
    A('s_mul_i32 s25, s24, 9')
    A('s_sub_u32 s25, s23, s25')
    A('s_mul_i32 s24, s24, 18')
    A('s_lshl_b32 s26, s25, 1')
    A('s_cmp_ge_u32 s25, 4')
    A('s_addc_u32 s26, s26, 0')
    A('s_cmp_eq_u32 s25, 8')
    A('s_cselect_b32 s26, 8, s26')
    A('s_cselect_b32 s21, 128, 0')
    A('s_add_u32 s24, s24, s26')
    A('s_lshl_b32 s20, s24, 4')
    A('s_waitcnt lgkmcnt(0)')
    srd(A,8,6,SZ_W)
    srd(A,12,4,SZ_W,WS['W2F'])
    load_tile(True)
    A('v_and_b32 v116, 63, v0')
    A('v_lshrrev_b32 v117, 6, v0')
    A('v_lshrrev_b32 v120, 2, v116')
    A(f'v_mul_u32_u24 v5, {RS}, v120')
    A('v_and_b32 v120, 3, v116')
    A('v_lshl_add_u32 v5, v120, 3, v5')
    A('v_mul_u32_u24 v120, 288, v117')
    A('v_add_u32 v5, v5, v120')
    A(f'v_mul_u32_u24 v6, {9*144}, v117')
    A('v_add_u32 v6, s23, v6')
    A('v_lshl_add_u32 v6, v6, 6, v116')
    A('v_lshlrev_b32 v6, 4, v6')
    A('s_waitcnt vmcnt(0)')
    stamp(A,1)
    write_tile(8)
    A('s_waitcnt lgkmcnt(0)')
    A('s_barrier')
    tr_tile(16)
    A('s_waitcnt lgkmcnt(0)')
    for q in range(9):
        A(f's_mov_b32 s22, {q*144*1024}')
        A(f'buffer_store_dwordx4 v[{8+4*q}:{11+4*q}], v6, s[12:15], s22 offen nt')
    stamp(A,2)
    if STAMP: A('s_waitcnt vmcnt(0)')
    stamp(A,3)
    stamp_out(A,4,0)
    A('s_endpgm')

    A('K1_MOD:')
    if 'K1_MOD' in SKIP: A('s_endpgm')
    stamp(A,0)
    A('s_setprio 3')
    A(f's_load_dwordx2 s[6:7], s[0:1], {KA["wmod"]}')
    A(f's_load_dwordx2 s[24:25], s[0:1], {KA["c"]}')
    A(f's_sub_u32 s23, s2, {K1_LN}')
    A('s_lshl_b32 s23, s23, 7')
    A('s_waitcnt lgkmcnt(0)')
    srd(A,8,6,576*3456*2)
    srd(A,12,24,1152)
    srd(A,16,4,3456*4,WS['MOD'])
    A('v_lshrrev_b32 v1, 3, v0')
    A('v_and_b32 v2, 7, v0')
    A('v_lshlrev_b32 v3, 1, v1')
    for c in range(18):
        A(f'buffer_load_ushort v{80+c}, v3, s[12:15], 0 offen offset:{c*64}')
    A('v_mul_u32_u24 v4, 6912, v1')
    A('v_lshl_add_u32 v4, v2, 4, v4')
    A('v_add_u32 v4, s23, v4')
    for c in range(18):
        A(f's_mov_b32 s22, {c*32*6912}')
        A(f'buffer_load_dwordx4 v[{8+4*c}:{11+4*c}], v4, s[8:11], s22 offen')
    A('s_waitcnt vmcnt(18)')
    for c in range(18):
        r=80+c
        A(f'v_lshlrev_b32 v{r}, 16, v{r}')
        A(f'v_mul_f32 v100, 0xbfb8aa3b, v{r}')
        A('v_exp_f32 v100, v100')
        A('v_add_f32 v100, 1.0, v100')
        A('v_rcp_f32 v100, v100')
        A(f'v_mul_f32 v{r}, v{r}, v100')
        A(f'v_cvt_pk_bf16_f32 v{r}, v{r}, v{r}')
        A(f'v_lshlrev_b32 v{r}, 16, v{r}')
    for e in range(8): A(f'v_mov_b32 v{104+e}, 0')
    for c in range(18):
        A(f's_waitcnt vmcnt({17-c})')
        for e in range(4):
            unpack(A,100,101,8+4*c+e)
            A(f'v_fmac_f32 v{104+2*e}, v{80+c}, v100')
            A(f'v_fmac_f32 v{105+2*e}, v{80+c}, v101')
    stamp(A,1)
    A('v_lshlrev_b32 v5, 8, v1')
    A('v_lshl_add_u32 v5, v2, 5, v5')
    A('ds_write_b128 v5, v[104:107]')
    A('ds_write_b128 v5, v[108:111] offset:16')
    A('s_waitcnt lgkmcnt(0)')
    A('s_barrier')
    A('v_cmp_gt_u32 vcc, 64, v0')
    A('s_and_saveexec_b64 s[26:27], vcc')
    A('s_cbranch_execz K1_MOD_END')
    A('v_lshlrev_b32 v5, 2, v0')
    for r in range(32):
        A(f'ds_read_b32 v{8+r}, v5 offset:{r*256}')
    A('s_waitcnt lgkmcnt(0)')
    for r in range(16): A(f'v_add_f32 v{8+r}, v{8+r}, v{24+r}')
    for r in range(8): A(f'v_add_f32 v{8+r}, v{8+r}, v{16+r}')
    for r in range(4): A(f'v_add_f32 v{8+r}, v{8+r}, v{12+r}')
    for r in range(2): A(f'v_add_f32 v{8+r}, v{8+r}, v{10+r}')
    A('v_add_f32 v8, v8, v9')
    A('v_cvt_pk_bf16_f32 v8, v8, v8')
    A('v_lshlrev_b32 v8, 16, v8')
    A('s_lshl_b32 s23, s23, 1')
    A('buffer_store_dword v8, v5, s[16:19], s23 offen')
    A('K1_MOD_END:')
    if STAMP:
        A('s_mov_b64 exec, -1')
        stamp(A,2)
        A('s_waitcnt vmcnt(0)')
        stamp(A,3)
        stamp_out(A,4,0)
    A('s_endpgm')

    A('K1_KG:')
    if 'K1_KG' in SKIP: A('s_endpgm')
    stamp(A,0)
    A(f's_load_dwordx4 s[24:27], s[0:1], {KA["lar"]}')
    A(f's_load_dwordx4 s[28:31], s[0:1], {KA["cr"]}')
    A(f's_load_dwordx2 s[32:33], s[0:1], {KA["logdt"]}')
    A(f's_sub_u32 s23, s2, {K1_LN+K1_MOD+K1_W2}')
    A('s_lshl_b32 s22, s23, 1')
    A('s_and_b32 s22, s22, 0xfffffffc')
    A('v_and_b32 v1, 63, v0')
    A('v_lshrrev_b32 v2, 4, v0')
    A('v_lshlrev_b32 v3, 4, v2')
    A('s_lshl_b32 s44, s23, 8')
    A('s_waitcnt lgkmcnt(0)')
    A('s_load_dword s34, s[32:33], s22')
    srd(A,8,24,576*128*2)
    A('buffer_load_dwordx4 v[8:11], v3, s[8:11], s44 offen')
    srd(A,12,26,576*128*2)
    A('buffer_load_dwordx4 v[12:15], v3, s[12:15], s44 offen')
    srd(A,16,28,576*128*2)
    A('buffer_load_dwordx4 v[16:19], v3, s[16:19], s44 offen')
    srd(A,36,30,576*128*2)
    A('buffer_load_dwordx4 v[20:23], v3, s[36:39], s44 offen')
    srd(A,40,4,SZ_KF,WS['KF'])
    A('v_and_b32 v4, 15, v0')
    def p_row(tile, vi, vd, t):
        if tile==0:
            A(f'v_lshrrev_b32 v{t}, 3, v{vi}')
            A(f'v_and_b32 v{vd}, 7, v{vi}')
            A(f'v_lshl_add_u32 v{vd}, v{t}, 7, v{vd}')
        elif tile==1:
            A(f'v_lshrrev_b32 v{t}, 2, v{vi}')
            A(f'v_and_b32 v{vd}, 3, v{vi}')
            A(f'v_lshlrev_b32 v{vd}, 1, v{vd}')
            A(f'v_lshl_add_u32 v{vd}, v{t}, 7, v{vd}')
            A(f'v_add_u32 v{vd}, 256, v{vd}')
            A(f'v_lshrrev_b32 v{t}, 1, v{vi}')
            A(f'v_lshlrev_b32 v{t}, 7, v{t}')
            A(f'v_and_b32 v{t+1}, 1, v{vi}')
            A(f'v_lshl_add_u32 v{t}, v{t+1}, 2, v{t}')
            A(f'v_cmp_gt_u32 vcc, 8, v{vi}')
            A(f'v_cndmask_b32 v{vd}, v{t}, v{vd}, vcc')
        else:
            A(f'v_lshlrev_b32 v{vd}, 7, v{vi}')
            A(f'v_add_u32 v{vd}, 1024, v{vd}')
    for t in range(3):
        p_row(t,4,24+2*t,112)
        A(f'v_cvt_f32_u32 v{24+2*t}, v{24+2*t}')
    A('v_lshlrev_b32 v30, 3, v4')
    A('v_cvt_f32_u32 v30, v30')
    A('v_mov_b32 v110, 0x41600000')
    A('v_mov_b32 v111, 0')
    A('v_lshlrev_b32 v5, 3, v0')
    for e in range(10):
        A(f'v_add_u32 v{114+e}, {e}, v5')
        A(f'v_cvt_f32_u32 v{114+e}, v{114+e}')
    for e in range(0,10,2):
        A(f'v_cvt_pk_bf16_f32 v{114+e}, v{114+e}, v{115+e}')
        A(f'v_and_b32 v{115+e}, 0xffff0000, v{114+e}')
        A(f'v_lshlrev_b32 v{114+e}, 16, v{114+e}')
    for e in range(9):
        A(f'v_cvt_u32_f32 v{114+e}, v{114+e}')
        A(f'v_lshlrev_b32 v{114+e}, 1, v{114+e}')
    A('s_waitcnt lgkmcnt(0)')
    A('s_and_b32 s22, s23, 1')
    A('s_lshl_b32 s22, s22, 4')
    A('s_lshr_b32 s34, s34, s22')
    A('s_lshl_b32 s34, s34, 16')
    A(f'v_mov_b32 v112, {LOG2E:#x}')
    A('v_mul_f32 v113, s34, v112')
    A('v_exp_f32 v113, v113')
    A('v_cvt_pk_bf16_f32 v113, v113, v113')
    A('v_lshlrev_b32 v113, 16, v113')
    A('v_mul_f32 v108, 0xbfb8aa3b, v113')
    A(f'v_mul_f32 v109, {INV2PI:#x}, v113')
    stamp(A,1)
    A('s_waitcnt vmcnt(0)')
    stamp(A,2)
    for e in range(4):
        unpack(A,32+4*e,34+4*e,8+e)
        unpack(A,33+4*e,35+4*e,12+e)
        unpack(A,48+4*e,50+4*e,16+e)
        unpack(A,49+4*e,51+4*e,20+e)
    for n in range(8):
        A(f'v_mul_f32 v{32+2*n}, v112, v{32+2*n}')
        A(f'v_exp_f32 v{32+2*n}, v{32+2*n}')
    A('v_max3_f32 v6, |v48|, |v49|, |v50|')
    for n in range(51,63,2): A(f'v_max3_f32 v6, |v{n}|, |v{n+1}|, v6')
    A('v_max_f32 v6, |v63|, v6')
    for n in range(0,8,2):
        A(f'v_cvt_pk_bf16_f32 v{32+2*n}, v{32+2*n}, v{34+2*n}')
        A(f'v_and_b32 v{34+2*n}, 0xffff0000, v{32+2*n}')
        A(f'v_lshlrev_b32 v{32+2*n}, 16, v{32+2*n}')
    for q in range(4): A(f'v_readlane_b32 s{48+q}, v6, {16*q}')
    for n in range(8):
        A(f'v_pk_mul_f32 v[{32+2*n}:{33+2*n}], v[{32+2*n}:{33+2*n}], v[108:109]')
    A('s_max_u32 s48, s48, s49')
    A('s_max_u32 s50, s50, s51')
    A('s_max_u32 s48, s48, s50')
    A('s_lshr_b32 s48, s48, 23')
    A('s_max_u32 s48, s48, 13')
    A('s_min_u32 s48, s48, 254')
    A('s_sub_u32 s50, 267, s48')
    A('s_lshl_b32 s50, s50, 23')
    A('s_mov_b32 s51, s50')
    A('s_sub_u32 s49, s48, 153')
    for n in range(8):
        A(f'v_pk_mul_f32 v[{48+2*n}:{49+2*n}], v[{48+2*n}:{49+2*n}], s[50:51]')
    A('v_ldexp_f32 v113, v113, s49')
    for s in range(8):
        Z=32+2*s; C=48+2*s; r=s&3
        for k in range(3):
            A(f'v_pk_fma_f32 v[{64+2*k}:{65+2*k}], v[{Z}:{Z+1}], v[{24+2*k}:{25+2*k}], v[110:111] op_sel_hi:[1,0,1]')
        A(f'v_pk_mul_f32 v[70:71], v[{Z}:{Z+1}], v[30:31] op_sel_hi:[1,0]')
        for k in range(4): A(f'v_fract_f32 v{65+2*k}, v{65+2*k}')
        for k in range(4):
            A(f'v_exp_f32 v{64+2*k}, v{64+2*k}')
            A(f'v_cos_f32 v{72+2*k}, v{65+2*k}')
            A(f'v_sin_f32 v{73+2*k}, v{65+2*k}')
        for k in range(4):
            A(f'v_pk_mul_f32 v[{72+2*k}:{73+2*k}], v[{72+2*k}:{73+2*k}], v[{64+2*k}:{65+2*k}] op_sel_hi:[1,0]')
        for k in range(3):
            A(f'v_cvt_pk_f16_f32 v{80+4*k+r}, v{72+2*k}, v{73+2*k}')
        A(f'v_pk_mul_f32 v[64:65], v[78:79], v[{C}:{C+1}] op_sel_hi:[1,0] neg_hi:[1,0]')
        A(f'v_pk_fma_f32 v[64:65], v[78:79], v[{C}:{C+1}], v[64:65] op_sel:[1,1,0] op_sel_hi:[0,1,1] neg_lo:[1,0,0] neg_hi:[1,0,0]')
        A(f'v_cvt_pk_f16_f32 v{92+r}, v64, v65')
        if r==3:
            for k in range(3):
                c = '0' if s==3 else f'v[{96+4*k}:{99+4*k}]'
                A(f'v_mfma_f32_16x16x32_f16 v[{96+4*k}:{99+4*k}], v[{80+4*k}:{83+4*k}], v[92:95], {c}')
    stamp(A,3)
    A('v_lshrrev_b32 v5, 6, v0')
    A('v_mul_u32_u24 v5, 3072, v5')
    A('v_lshl_add_u32 v5, v1, 4, v5')
    A('v_readfirstlane_b32 s45, v0')
    A('s_lshr_b32 s45, s45, 6')
    A('v_lshrrev_b32 v6, 4, v1')
    A('v_lshlrev_b32 v6, 2, v6')
    for r in range(1,4): A(f'v_add_u32 v{32+r}, {r}, v6')
    A('v_mov_b32 v32, v6')
    for k in range(6):
        A(f'v_pk_mul_f32 v[{96+2*k}:{97+2*k}], v[{96+2*k}:{97+2*k}], v[112:113] op_sel:[0,1] op_sel_hi:[1,1]')
    for k in range(3):
        A(f'ds_write_b128 v5, v[{96+4*k}:{99+4*k}] offset:{k*1024}')
    for t in range(3):
        A(f's_cmp_lg_u32 s45, {t}')
        A(f's_cbranch_scc1 K1_KG_T{t}')
        for r in range(4): p_row(t,32+r,36+r,40)
        A(f'K1_KG_T{t}:')
    A('s_waitcnt lgkmcnt(0)')
    A('s_barrier')
    A('s_cmp_ge_u32 s45, 3')
    A('s_cbranch_scc1 K1_KG_SKIP')
    A('v_lshlrev_b32 v5, 4, v0')
    for w in range(4):
        A(f'ds_read_b128 v[{8+4*w}:{11+4*w}], v5 offset:{w*3072}')
    for r in range(4):
        A(f'v_lshl_add_u32 v{36+r}, v4, 3, v{36+r}')
        A(f'v_lshlrev_b32 v{36+r}, 1, v{36+r}')
    A('s_waitcnt lgkmcnt(0)')
    A('v_pk_add_f32 v[8:9], v[8:9], v[12:13]')
    A('v_pk_add_f32 v[10:11], v[10:11], v[14:15]')
    A('v_pk_add_f32 v[16:17], v[16:17], v[20:21]')
    A('v_pk_add_f32 v[18:19], v[18:19], v[22:23]')
    A('v_pk_add_f32 v[8:9], v[8:9], v[16:17]')
    A('v_pk_add_f32 v[10:11], v[10:11], v[18:19]')
    A('v_cvt_pk_bf16_f32 v8, v8, v9')
    A('v_cvt_pk_bf16_f32 v10, v10, v11')
    A('ds_write_b16 v36, v8 offset:12288')
    A('ds_write_b16_d16_hi v37, v8 offset:12288')
    A('ds_write_b16 v38, v10 offset:12288')
    A('ds_write_b16_d16_hi v39, v10 offset:12288')
    A('K1_KG_SKIP:')
    A('s_waitcnt lgkmcnt(0)')
    A('s_barrier')
    stamp(A,4)
    for e in range(9):
        A(f'ds_read_u16 v{24+e}, v{114+e} offset:12288')
    A('v_lshlrev_b32 v5, 4, v0')
    A(f's_mul_i32 s44, s23, {2*KF_CS}')
    A(f's_add_u32 s46, s44, {KF_CS}')
    A(f'v_sub_u32 v6, {KF_CS+16}, v5')
    A('v_subrev_u32 v7, 32, v5')
    A('v_cmp_gt_u32 vcc, 2, v0')
    A('v_cndmask_b32 v6, v7, v6, vcc')
    A('v_mov_b32 v40, 0\nv_mov_b32 v41, 0\nv_mov_b32 v42, 0')
    A('v_cmp_eq_u32 vcc, 0, v0')
    A('s_waitcnt lgkmcnt(0)')
    A('v_lshlrev_b32 v43, 16, v24')
    A('v_cndmask_b32 v43, 0, v43, vcc')
    for e in range(4):
        A(f'v_lshl_or_b32 v{16+e}, v{25+2*e}, 16, v{24+2*e}')
        A(f'v_lshl_or_b32 v{20+e}, v{26+2*e}, 16, v{25+2*e}')
    A('buffer_store_dwordx4 v[16:19], v5, s[40:43], s44 offen offset:32 nt')
    A('buffer_store_dwordx4 v[20:23], v5, s[40:43], s46 offen offset:32 nt')
    A('v_cmp_gt_u32 vcc, 4, v0')
    A('s_and_saveexec_b64 s[56:57], vcc')
    A('s_cbranch_execz K1_KG_END')
    A('buffer_store_dwordx4 v[40:43], v6, s[40:43], s44 offen')
    A('K1_KG_END:')
    if STAMP:
        A('s_mov_b64 exec, -1')
        stamp(A,5)
        stamp_out(A,6,0)
    A('s_endpgm')
    return A.text(), kd('k1_kernel',128)

K2_W1=144; K2_CV=576
K2_GRID=K2_W1+K2_CV
CV_U=0
CV_P=4608
W1S=80
W1_TAB=576*W1S
K2_LDS=max(CV_P+32768, W1_TAB+3456)

def gen_k2():
    A=Asm()
    A('k2_kernel:')
    A(f's_load_dwordx2 s[4:5], s[0:1], {KA["ws"]}')
    A(f's_cmp_lt_u32 s2, {K2_W1}')
    A('s_cbranch_scc1 K2_W1')
    A(f's_cmp_lt_u32 s2, {K2_GRID}')
    A('s_cbranch_scc1 K2_CV')
    A('s_endpgm')
    A('K2_CV:')
    if 'K2_CV' in SKIP: A('s_endpgm')
    stamp(A,0)
    A(f's_load_dwordx2 s[6:7], s[0:1], {KA["dskip"]}')
    A(f's_sub_u32 s23, s2, {K2_W1}')
    A('s_lshl_b32 s22, s23, 1')
    A('s_and_b32 s22, s22, 0xfffffffc')
    A('s_lshl_b32 s24, s23, 2')
    A('s_add_u32 s25, s24, 2304')
    A('s_add_u32 s26, s24, 4608')
    A('s_lshl_b32 s44, s23, 12')
    A(f's_mul_i32 s45, s23, {2*KF_CS}')
    A('v_lshlrev_b32 v1, 4, v0')
    A('v_and_b32 v20, 15, v0')
    A('v_bfe_u32 v21, v0, 4, 2')
    A('v_lshrrev_b32 v22, 6, v0')
    A('v_add_u32 v24, 1, v20')
    A('v_and_b32 v25, 1, v24')
    A('v_and_b32 v24, 0xfe, v24')
    A('v_lshlrev_b32 v24, 1, v24')
    A('v_lshl_add_u32 v24, v21, 4, v24')
    A('v_lshl_add_u32 v24, v22, 7, v24')
    A(f'v_mul_u32_u24 v25, {KF_CS}, v25')
    A('v_add_u32 v24, v24, v25')
    A('s_waitcnt lgkmcnt(0)')
    stamp(A,8)
    A('s_load_dword s34, s[6:7], s22')
    A('s_load_dword s35, s[4:5], s24')
    A('s_load_dword s36, s[4:5], s25')
    A('s_load_dword s37, s[4:5], s26')
    srd(A,12,4,SZ_XT,WS['XNT'])
    A('buffer_load_dwordx4 v[4:7], v1, s[12:15], s44 offen')
    srd(A,16,4,SZ_KF,WS['KF'])
    G=104; V=72; Y=40
    for res in range(2):
        for q in range(8):
            g=G+32*res+4*q
            A(f'buffer_load_dwordx4 v[{g}:{g+3}], v24, s[16:19], s45 offen offset:{res*64+q*512}')
    srd(A,8,4,SZ_XT,WS['XT'])
    A('buffer_load_dwordx4 v[12:15], v1, s[8:11], s44 offen')
    srd(A,40,4,SZ_XT,WS['X1T'])
    stamp(A,9)
    A('v_mov_b32 v16, 0\nv_mov_b32 v17, 0\nv_mov_b32 v18, 0\nv_mov_b32 v19, 0')
    A('v_cmp_gt_u32 vcc, 30, v0')
    A('s_and_saveexec_b64 s[46:47], vcc')
    A(f'ds_write_b128 v1, v[16:19] offset:{CV_U+4096}')
    A('s_mov_b64 exec, s[46:47]')
    A('v_lshlrev_b32 v23, 7, v22')
    A('v_lshl_add_u32 v23, v21, 4, v23')
    A('v_lshlrev_b32 v25, 5, v20')
    A('v_sub_u32 v23, v23, v25')
    A(f'v_add_u32 v23, {CV_U+480}, v23')
    A(f'v_sub_u32 v25, {CV_U+4080}, v1')
    A('v_and_b32 v27, 63, v0')
    A('v_lshlrev_b32 v27, 4, v27')
    A('v_lshl_add_u32 v27, v22, 13, v27')
    A('v_lshrrev_b32 v28, 5, v0')
    A('v_lshlrev_b32 v28, 10, v28')
    A('v_bfe_u32 v29, v0, 1, 4')
    A('v_lshl_add_u32 v28, v29, 4, v28')
    A('v_and_b32 v29, 1, v0')
    A('v_lshl_add_u32 v28, v29, 9, v28')
    A('s_waitcnt lgkmcnt(0)')
    A('s_and_b32 s22, s23, 1')
    A('s_lshl_b32 s22, s22, 4')
    A('s_lshr_b32 s34, s34, s22')
    A('s_lshl_b32 s34, s34, 16')
    A('s_mov_b32 s38, s35')
    A('s_mov_b32 s39, s35')
    A('v_add_f32 v26, 1.0, s36')
    A('v_cvt_pk_bf16_f32 v26, v26, v26')
    A('v_lshlrev_b32 v26, 16, v26')
    stamp(A,1)
    A('s_waitcnt vmcnt(17)')
    stamp(A,2)
    H=32
    for e in range(4): unpack(A,H+2*e,H+1+2*e,4+e)
    for e in range(4): A(f'v_pk_mul_f32 v[{H+2*e}:{H+1+2*e}], v[{H+2*e}:{H+1+2*e}], v[26:27] op_sel_hi:[1,0]')
    for e in range(4): A(f'v_cvt_pk_bf16_f32 v{4+e}, v{H+2*e}, v{H+1+2*e}')
    for e in range(4): unpack(A,H+2*e,H+1+2*e,4+e)
    for e in range(4): A(f'v_pk_add_f32 v[{H+2*e}:{H+1+2*e}], v[{H+2*e}:{H+1+2*e}], s[38:39]')
    for e in range(4): A(f'v_cvt_pk_bf16_f32 v{4+e}, v{H+7-2*e}, v{H+6-2*e}')
    A('ds_write_b128 v25, v[4:7]')
    for e in range(4): unpack(A,H+7-2*e,H+6-2*e,4+e)
    for e in range(8): A(f'v_mul_f32 v{H+e}, s34, v{H+e}')
    A('s_waitcnt lgkmcnt(0)')
    A('s_barrier')
    stamp(A,3)
    for res in range(2):
        for n in range(8):
            A(f'ds_read_b128 v[{V+4*n}:{V+3+4*n}], v23 offset:{(7-n)*512+res*64}')
        if res==0:
            for e in range(4): A(f'v_cvt_pk_bf16_f32 v{4+e}, v{H+2*e}, v{H+1+2*e}')
            for e in range(4): unpack(A,H+2*e,H+1+2*e,4+e)
        done=set()
        for lev in range(8):
            A(f's_waitcnt vmcnt({1+(1-res)*8+7-lev}) lgkmcnt({7-lev})')
            for q in range(lev+1):
                for n1 in range(lev+1):
                    if max(q,n1)!=lev or q+n1>7: continue
                    n=q+n1
                    c = f'v[{Y+4*n}:{Y+3+4*n}]' if (res or n in done) else '0'
                    done.add(n)
                    g=G+32*res+4*q
                    A(f'v_mfma_f32_16x16x32_bf16 v[{Y+4*n}:{Y+3+4*n}], v[{g}:{g+3}], v[{V+4*n1}:{V+3+4*n1}], {c}')
    stamp(A,4)
    for n in range(8):
        A(f'ds_write_b128 v27, v[{Y+4*n}:{Y+3+4*n}] offset:{CV_P+n*1024}')
    A('s_waitcnt vmcnt(0)')
    X=16
    for e in range(4): unpack(A,X+2*e,X+1+2*e,12+e)
    A('s_waitcnt lgkmcnt(0)')
    A('s_barrier')
    stamp(A,5)
    S=72
    for w in range(4):
        A(f'ds_read_b128 v[{S+8*w}:{S+3+8*w}], v28 offset:{CV_P+w*8192}')
        A(f'ds_read_b128 v[{S+4+8*w}:{S+7+8*w}], v28 offset:{CV_P+w*8192+256}')
    A('s_mov_b32 s38, s37')
    A('s_mov_b32 s39, s37')
    A('s_waitcnt lgkmcnt(0)')
    for e in range(0,8,2):
        A(f'v_pk_add_f32 v[{S+e}:{S+1+e}], v[{S+e}:{S+1+e}], v[{S+8+e}:{S+9+e}]')
        A(f'v_pk_add_f32 v[{S+16+e}:{S+17+e}], v[{S+16+e}:{S+17+e}], v[{S+24+e}:{S+25+e}]')
    for e in range(0,8,2):
        A(f'v_pk_add_f32 v[{S+e}:{S+1+e}], v[{S+e}:{S+1+e}], v[{S+16+e}:{S+17+e}]')
    def rnd(base,tmp):
        for e in range(4): A(f'v_cvt_pk_bf16_f32 v{tmp+e}, v{base+2*e}, v{base+2*e+1}')
        for e in range(4): unpack(A,base+2*e,base+2*e+1,tmp+e)
    rnd(S,4)
    for e in range(0,8,2): A(f'v_pk_add_f32 v[{S+e}:{S+1+e}], v[{S+e}:{S+1+e}], v[{H+e}:{H+1+e}]')
    rnd(S,4)
    for e in range(0,8,2): A(f'v_pk_mul_f32 v[{S+e}:{S+1+e}], v[{S+e}:{S+1+e}], s[38:39]')
    rnd(S,4)
    for e in range(0,8,2): A(f'v_pk_add_f32 v[{S+e}:{S+1+e}], v[{S+e}:{S+1+e}], v[{X+e}:{X+1+e}]')
    for e in range(4): A(f'v_cvt_pk_bf16_f32 v{4+e}, v{S+2*e}, v{S+1+2*e}')
    A('buffer_store_dwordx4 v[4:7], v1, s[40:43], s44 offen nt')
    stamp(A,6)
    if STAMP: A('s_waitcnt vmcnt(0)')
    stamp(A,7)
    stamp_out(A,10,1)
    A('s_endpgm')

    A('K2_W1:')
    if 'K2_W1' in SKIP: A('s_endpgm')
    A(f's_load_dwordx2 s[6:7], s[0:1], {KA["w1"]}')
    A('s_lshl_b32 s23, s2, 6')
    A('v_lshrrev_b32 v2, 2, v0')
    A('v_and_b32 v3, 3, v0')
    A('v_mul_u32_u24 v4, 9216, v2')
    A('v_lshl_add_u32 v4, v3, 4, v4')
    A('v_add_u32 v4, s23, v4')
    A('v_lshlrev_b32 v1, 2, v0')
    A('s_waitcnt lgkmcnt(0)')
    srd(A,8,6,SZ_W)
    for c in range(9):
        A(f's_mov_b32 s22, {c*64*9216}')
        A(f'buffer_load_dwordx4 v[{8+4*c}:{11+4*c}], v4, s[8:11], s22 offen')
    srd(A,16,4,3456*4,WS['MOD'])
    for c in range(3):
        A(f's_mov_b32 s22, {(3*576+256*c)*4}')
        A(f'buffer_load_dword v{100+c}, v1, s[16:19], s22 offen')
        A(f's_mov_b32 s22, {(4*576+256*c)*4}')
        A(f'buffer_load_dword v{104+c}, v1, s[16:19], s22 offen')
    srd(A,12,4,SZ_W,WS['W1F'])
    srd(A,36,4,4608*4,WS['CS'])
    srd(A,40,4,4608*4,WS['BIAS'])
    A(f'v_mul_u32_u24 v5, {W1S}, v2')
    A('v_lshl_add_u32 v5, v3, 4, v5')
    A('v_and_b32 v116, 63, v0')
    A('v_bfe_u32 v117, v0, 6, 1')
    A('v_lshrrev_b32 v111, 7, v0')
    A('v_lshrrev_b32 v118, 2, v116')
    A(f'v_mul_u32_u24 v6, {W1S}, v118')
    A('v_and_b32 v118, 3, v116')
    A('v_lshl_add_u32 v6, v118, 3, v6')
    A('v_lshl_add_u32 v6, v117, 5, v6')
    A(f'v_mul_u32_u24 v118, {288*W1S}, v111')
    A('v_add_u32 v6, v6, v118')
    A('v_lshrrev_b32 v119, 4, v116')
    A('v_mul_u32_u24 v118, 1152, v111')
    A('v_lshl_add_u32 v7, v119, 4, v118')
    A('v_lshrrev_b32 v108, 1, v7')
    A('s_lshl_b32 s24, s2, 1')
    A('v_add_u32 v109, s24, v117')
    A('v_mul_u32_u24 v118, 57, v109')
    A('v_lshrrev_b32 v118, 9, v118')
    A('v_mul_u32_u24 v110, 9, v118')
    A('v_sub_u32 v109, v109, v110')
    A('v_mul_u32_u24 v118, 162, v118')
    A('v_add_u32 v109, v109, v118')
    A('v_mov_b32 v118, 81')
    A('v_mad_u32_u24 v109, v111, v118, v109')
    A('v_lshl_add_u32 v109, v109, 6, v116')
    A('v_lshlrev_b32 v109, 4, v109')
    A('v_lshlrev_b32 v110, 1, v0')
    A('v_mov_b32 v112, 0x3f803f80\nv_mov_b32 v113, 0x3f803f80\nv_mov_b32 v114, 0x3f803f80\nv_mov_b32 v115, 0x3f803f80')
    for c in range(9):
        A(f's_waitcnt vmcnt({14-c})')
        A(f'ds_write_b128 v5, v[{8+4*c}:{11+4*c}] offset:{c*64*W1S}')
    A('s_waitcnt vmcnt(0)')
    for c in range(3):
        A(f'v_add_f32 v{104+c}, 1.0, v{104+c}')
        A(f'v_cvt_pk_bf16_f32 v{104+c}, v{104+c}, v{104+c}')
        A(f'v_lshlrev_b32 v{104+c}, 16, v{104+c}')
        if c==2:
            A('v_cmp_gt_u32 vcc, 64, v0')
            A('s_and_saveexec_b64 s[46:47], vcc')
        A(f'ds_write_b32 v1, v{104+c} offset:{W1_TAB+1024*c}')
        A(f'ds_write_b16_d16_hi v110, v{100+c} offset:{W1_TAB+2304+512*c}')
    A('s_mov_b64 exec, s[46:47]')
    A('s_waitcnt lgkmcnt(0)')
    A('s_barrier')
    def rd(kk,F):
        A(f'ds_read_b64_tr_b16 v[{F}:{F+1}], v6 offset:{kk*32*W1S}')
        A(f'ds_read_b64_tr_b16 v[{F+2}:{F+3}], v6 offset:{kk*32*W1S+16*W1S}')
        A(f'ds_read_b128 v[{F+4}:{F+7}], v7 offset:{W1_TAB+kk*128}')
        A(f'ds_read_b128 v[{F+8}:{F+11}], v7 offset:{W1_TAB+kk*128+64}')
        A(f'ds_read_b64 v[{F+12}:{F+13}], v108 offset:{W1_TAB+2304+kk*64}')
        A(f'ds_read_b64 v[{F+14}:{F+15}], v108 offset:{W1_TAB+2304+kk*64+32}')
    rd(0,48)
    for kk in range(9):
        F=48+16*(kk&1)
        if kk<8:
            rd(kk+1,48+16*((kk+1)&1))
            A('s_waitcnt lgkmcnt(6)')
        else: A('s_waitcnt lgkmcnt(0)')
        A(f'v_mfma_f32_16x16x32_bf16 v[124:127], v[{F}:{F+3}], v[{F+12}:{F+15}], {"v[124:127]" if kk else "0"}')
        O=8+4*kk
        for e in range(4): unpack(A,80+2*e,81+2*e,F+e)
        for e in range(4): A(f'v_pk_mul_f32 v[{80+2*e}:{81+2*e}], v[{80+2*e}:{81+2*e}], v[{F+4+2*e}:{F+5+2*e}]')
        for e in range(4): A(f'v_cvt_pk_bf16_f32 v{O+e}, v{80+2*e}, v{81+2*e}')
        A(f'v_mfma_f32_16x16x32_bf16 v[120:123], v[{O}:{O+3}], v[112:115], {"v[120:123]" if kk else "0"}')
        A(f's_mov_b32 s22, {kk*9216}')
        A(f'buffer_store_dwordx4 v[{O}:{O+3}], v109, s[12:15], s22 offen nt')
    A('s_barrier')
    A('v_and_b32 v1, 127, v0')
    A('v_lshlrev_b32 v1, 5, v1')
    A('v_readfirstlane_b32 s45, v111')
    A('s_cmp_eq_u32 s45, 0')
    A('s_cbranch_scc1 K2_W1_A')
    A('ds_write_b128 v1, v[120:123]')
    A('ds_write_b128 v1, v[124:127] offset:16')
    A('s_waitcnt lgkmcnt(0)')
    A('s_barrier')
    A('s_endpgm')
    A('K2_W1_A:')
    A('s_barrier')
    A('ds_read_b128 v[48:51], v1')
    A('ds_read_b128 v[52:55], v1 offset:16')
    A('v_and_b32 v2, 15, v0')
    A('v_cmp_eq_u32 vcc, 0, v2')
    A('s_lshl_b32 s24, s2, 7')
    A('s_waitcnt lgkmcnt(0)')
    for e in range(0,8,2): A(f'v_pk_add_f32 v[{120+e}:{121+e}], v[{120+e}:{121+e}], v[{48+e}:{49+e}]')
    A('s_and_saveexec_b64 s[46:47], vcc')
    A('buffer_store_dwordx4 v[120:123], v0, s[36:39], s24 offen')
    A('buffer_store_dwordx4 v[124:127], v0, s[40:43], s24 offen')
    A('s_endpgm')
    return A.text(), kd('k2_kernel',168)

K3_NS=6
K3_STG=25600
K3_LDS=K3_NS*K3_STG
NOSTAT=bool(os.environ.get('NOSTAT'))
def interleave(A, mf, fill, per=None):
    n=len(mf); m=len(fill); k=0
    for i,x in enumerate(mf):
        A(x)
        tgt=(i+1)*m//n
        while k<tgt:
            A(fill[k]); k+=1
    while k<m:
        A(fill[k]); k+=1

def gen_k3():
    A=Asm()
    A('k3_kernel:')
    A('s_cmp_ge_u32 s2, 256')
    A('s_cbranch_scc1 K3_END')
    stamp(A,0)
    A(f's_load_dwordx2 s[4:5], s[0:1], {KA["ws"]}')
    A('s_and_b32 s20, s2, 7')
    A('s_lshr_b32 s21, s2, 3')
    A('v_and_b32 v1, 63, v0')
    A('v_lshrrev_b32 v2, 6, v0')
    A('v_readfirstlane_b32 s22, v2')
    A('v_lshlrev_b32 v3, 4, v1')
    A('v_lshl_add_u32 v4, v2, 11, v3')
    A('v_add_u32 v5, 8192, v3')
    A('v_lshrrev_b32 v6, 3, v1')
    A('v_lshlrev_b32 v6, 12, v6')
    A('v_and_b32 v7, 7, v1')
    A('v_lshrrev_b32 v8, 4, v1')
    A('v_lshlrev_b32 v9, 1, v8')
    A('v_xor_b32 v7, v7, v9')
    A('v_lshl_add_u32 v6, v7, 4, v6')
    A('v_lshl_add_u32 v6, v2, 7, v6')
    A('s_lshl_b32 s23, s20, 9')
    A('v_add_u32 v6, s23, v6')
    A('s_mul_i32 s24, s21, 165888')
    A('s_lshl_b32 s25, s22, 11')
    A('s_lshl_b32 s26, s22, 12')
    A('s_add_u32 s26, s26, 9216')
    A('s_lshl_b32 s27, s22, 4')
    A('s_mov_b64 s[28:29], 0xffff')
    A('s_lshl_b64 s[28:29], s[28:29], s27')
    A('s_waitcnt lgkmcnt(0)')
    srd(A,8,4,SZ_W,WS['W1F'])
    srd(A,12,4,SZ_XT,WS['X1T'])
    def dma(ks):
        st=(ks%K3_NS)*K3_STG
        L=[]
        L.append(f's_add_u32 m0, s25, {st}\ns_add_u32 s30, s24, {ks*9216}\nbuffer_load_dwordx4 v4, s[8:11], s30 offen lds')
        L.append(f'buffer_load_dwordx4 v4, s[8:11], s30 offen offset:1024 lds')
        L.append(f's_mov_b32 m0, {st+8192}\ns_mov_b64 exec, s[28:29]\nbuffer_load_dwordx4 v5, s[8:11], s30 offen lds\ns_mov_b64 exec, -1')
        for c in range(4):
            pre = f's_add_u32 m0, s26, {st}\n' if c==0 else ''
            L.append(pre+f's_mov_b32 s31, {(32*ks+8*c)*4096-c*1024}\nbuffer_load_dwordx4 v6, s[12:15], s31 offen offset:{c*1024} lds')
        return L
    for ks in range(K3_NS):
        for x in dma(ks): A(x)
    A('v_and_b32 v14, 15, v1')
    A('v_lshrrev_b32 v15, 1, v8')
    A('v_lshlrev_b32 v15, 10, v15')
    A('v_and_b32 v16, 1, v8')
    A('v_lshrrev_b32 v17, 2, v14')
    A('v_lshl_add_u32 v17, v16, 2, v17')
    A('v_lshl_add_u32 v15, v17, 7, v15')
    A('v_and_b32 v18, 3, v14')
    A('v_lshl_add_u32 v15, v18, 3, v15')
    A('v_lshl_add_u32 v15, v2, 12, v15')
    A('v_add_u32 v15, 9216, v15')
    A('v_lshrrev_b32 v17, 1, v17')
    A('v_lshlrev_b32 v17, 5, v17')
    for tt in range(4):
        A(f'v_xor_b32 v18, {tt*32}, v17')
        A(f'v_add_u32 v{48+tt}, v15, v18')
    A('v_mov_b32 v52, v3')
    for p in (1,2):
        for r in range(5): A(f'v_add_u32 v{48+5*p+r}, {2*p*K3_STG}, v{48+r}')
    srd(A,16,4,SZ_H,WS['HF'])
    srd(A,36,4,4608*4,WS['CS'])
    srd(A,40,4,4608*4,WS['BIAS'])
    ACC=64; BF=208; ST=20; ONE=28
    for r in range(8): A(f'v_mov_b32 v{ST+r}, 0')
    A(f'v_mov_b32 v{ONE}, 0x3f803f80')
    def reads(ks):
        sl=ks%K3_NS; st=(sl&1)*K3_STG; ab=48+5*(sl>>1); se=ks&1
        L=[]
        for tt in range(4):
            b=BF+16*se+4*tt
            L.append(f'ds_read_b64_tr_b16 v[{b}:{b+1}], v{ab+tt} offset:{st}')
            L.append(f'ds_read_b64_tr_b16 v[{b+2}:{b+3}], v{ab+tt} offset:{st+2048}')
        for j in range(9):
            a=36*se+4*j
            L.append(f'ds_read_b128 a[{a}:{a+3}], v{ab+4} offset:{st+j*1024}')
        return L
    stamp(A,1)
    A(f's_waitcnt vmcnt({7*(K3_NS-1)})')
    A('s_barrier')
    stamp(A,2)
    for x in reads(0): A(x)
    A('s_mul_i32 s32, s21, 576')
    A('v_lshlrev_b32 v9, 4, v8')
    extra_vm=0
    for ks in range(18):
        se=ks&1
        fill=[]
        if ks+1<18:
            out=7*(min(17,ks+K3_NS-1)-(ks+1))+extra_vm
            A(f's_waitcnt vmcnt({out}) lgkmcnt(0)')
            A('s_barrier')
            fill+=reads(ks+1)
            if ks+K3_NS<18: fill+=dma(ks+K3_NS)
        else:
            A('s_waitcnt lgkmcnt(0)')
        if ks==16:
            for j in range(9):
                fill.append(f'buffer_load_dwordx4 a[{72+8*j}:{75+8*j}], v9, s[36:39], s32 offen offset:{j*64}')
                fill.append(f'buffer_load_dwordx4 a[{76+8*j}:{79+8*j}], v9, s[40:43], s32 offen offset:{j*64}')
        st=[]
        if not NOSTAT:
            for e in range(4):
                for tt in range(4):
                    b=BF+16*se+4*tt+e
                    st.append(f'v_dot2_f32_bf16 v{ST+tt}, v{b}, v{ONE}, v{ST+tt}')
                    st.append(f'v_dot2_f32_bf16 v{ST+4+tt}, v{b}, v{b}, v{ST+4+tt}')
        mer=[]; i1=i2=0
        while i1<len(fill) or i2<len(st):
            if i1<len(fill): mer.append(fill[i1]); i1+=1
            if i2<len(st): mer.append(st[i2]); i2+=1
        mf=[]
        for j in range(9):
            for tt in range(4):
                d=ACC+16*j+4*tt; a=36*se+4*j; b=BF+16*se+4*tt
                c=f'v[{d}:{d+3}]' if ks else '0'
                mf.append(f'v_mfma_f32_16x16x32_bf16 v[{d}:{d+3}], a[{a}:{a+3}], v[{b}:{b+3}], {c}')
        interleave(A,mf,mer)
    stamp(A,3)
    A('s_nop 3')
    for r in range(8):
        A(f'v_mov_b32 v{208+r}, v{ST+r}')
    for r in range(8):
        A(f'v_permlane32_swap_b32 v{ST+r}, v{208+r}')
    for r in range(8):
        A(f'v_add_f32 v{ST+r}, v{ST+r}, v{208+r}')
    for r in range(8):
        A(f'v_mov_b32 v{208+r}, v{ST+r}')
    for r in range(8):
        A(f'v_permlane16_swap_b32 v{ST+r}, v{208+r}')
    for r in range(8):
        A(f'v_add_f32 v{ST+r}, v{ST+r}, v{208+r}')
    NM=32; RSD=40
    for tt in range(4):
        m=ST+tt; q=ST+4+tt
        A(f'v_mul_f32 v{m}, 0x3ae38e39, v{m}')
        A(f'v_mul_f32 v{q}, 0x3ae38e39, v{q}')
        A(f'v_fma_f32 v{q}, -v{m}, v{m}, v{q}')
        A(f'v_max_f32 v{q}, 0, v{q}')
        A(f'v_cvt_pk_bf16_f32 v{m}, v{m}, v{q}')
        A(f'v_and_b32 v{q}, 0xffff0000, v{m}')
        A(f'v_lshlrev_b32 v{m}, 16, v{m}')
        A(f'v_sub_f32 v{NM+2*tt}, 0, v{m}')
        A(f'v_add_f32 v{q}, 0x3727c5ac, v{q}')
        A(f'v_cvt_pk_bf16_f32 v{q}, v{q}, v{q}')
        A(f'v_lshlrev_b32 v{q}, 16, v{q}')
        A(f'v_sqrt_f32 v{q}, v{q}')
        A(f'v_cvt_pk_bf16_f32 v{q}, v{q}, v{q}')
        A(f'v_lshlrev_b32 v{q}, 16, v{q}')
        A(f'v_rcp_f32 v{RSD+2*tt}, v{q}')
    A('s_mov_b32 s44, 0xbfb8aa3b\ns_mov_b32 s45, 0xbfb8aa3b\ns_mov_b32 s46, 1.0\ns_mov_b32 s47, 1.0')
    A('s_lshl_b32 s33, s20, 4')
    A('s_lshl_b32 s34, s22, 2')
    A('s_add_u32 s33, s33, s34')
    A('s_mul_i32 s33, s33, 147456')
    A('s_lshr_b32 s34, s21, 1')
    A('s_mul_i32 s34, s34, 9216')
    A('s_add_u32 s33, s33, s34')
    A('s_and_b32 s35, s21, 1')
    A('s_lshl_b32 s34, s35, 12')
    A('s_add_u32 s48, s33, s34')
    A('s_lshl_b32 s34, s35, 3')
    A('s_add_u32 s49, s33, s34')
    A('s_add_u32 s49, s49, 8192')
    A('s_waitcnt vmcnt(0)')
    CB=208
    for j in range(9):
        for r in range(8): A(f'v_accvgpr_read_b32 v{CB+r}, a{72+8*j+r}')
        for tt in range(4):
            d=ACC+16*j+4*tt
            T=216+8*(tt&1)
            for h in range(2):
                A(f'v_pk_fma_f32 v[{d+2*h}:{d+2*h+1}], v[{CB+2*h}:{CB+2*h+1}], v[{NM+2*tt}:{NM+2*tt+1}], v[{d+2*h}:{d+2*h+1}] op_sel_hi:[1,0,1]')
            for h in range(2):
                A(f'v_pk_fma_f32 v[{d+2*h}:{d+2*h+1}], v[{d+2*h}:{d+2*h+1}], v[{RSD+2*tt}:{RSD+2*tt+1}], v[{CB+4+2*h}:{CB+5+2*h}] op_sel_hi:[1,0,1]')
            for h in range(2):
                A(f'v_pk_mul_f32 v[{T+2*h}:{T+2*h+1}], v[{d+2*h}:{d+2*h+1}], s[44:45]')
            for r in range(4): A(f'v_exp_f32 v{T+r}, v{T+r}')
            for h in range(2):
                A(f'v_pk_add_f32 v[{T+2*h}:{T+2*h+1}], v[{T+2*h}:{T+2*h+1}], s[46:47]')
            for r in range(4): A(f'v_rcp_f32 v{T+r}, v{T+r}')
            for h in range(2):
                A(f'v_pk_mul_f32 v[{d+2*h}:{d+2*h+1}], v[{d+2*h}:{d+2*h+1}], v[{T+2*h}:{T+2*h+1}]')
            o = d if (j%2==0) else (d-16+2)
            A(f'v_cvt_pk_bf16_f32 v{o}, v{d}, v{d+1}')
            A(f'v_cvt_pk_bf16_f32 v{o+1}, v{d+2}, v{d+3}')
            if j%2==1:
                A(f's_add_u32 s50, s48, {tt*147456}')
                A(f'buffer_store_dwordx4 v[{d-16}:{d-13}], v3, s[16:19], s50 offen offset:{(j//2)*1024} nt')
            elif j==8:
                A(f's_add_u32 s50, s49, {tt*147456}')
                A(f'buffer_store_dwordx2 v[{d}:{d+1}], v3, s[16:19], s50 offen nt')
    stamp(A,4)
    if STAMP: A('s_waitcnt vmcnt(0)')
    stamp(A,5)
    stamp_out(A,6,2)
    A('K3_END:')
    A('s_endpgm')
    return A.text(), kd('k3_kernel',240,agpr=144)

K4_LDS=81920
def gen_k4():
    A=Asm()
    P=4
    A('k4_kernel:')
    A('s_cmp_ge_u32 s2, 256')
    A('s_cbranch_scc1 K4_END')
    stamp(A,0)
    A(f's_load_dwordx2 s[4:5], s[0:1], {KA["ws"]}')
    A(f's_load_dwordx2 s[6:7], s[0:1], {KA["out"]}')
    A('s_and_b32 s20, s2, 7')
    A('s_lshl_b32 s20, s20, 2')
    A('s_bfe_u32 s21, s2, 0x20003')
    A('s_add_u32 s20, s20, s21')
    A('s_lshr_b32 s21, s2, 5')
    A('s_mul_i32 s23, s21, 9')
    A('s_lshr_b32 s23, s23, 1')
    A('v_and_b32 v1, 63, v0')
    A('v_lshrrev_b32 v2, 6, v0')
    A('v_readfirstlane_b32 s22, v2')
    A('v_lshlrev_b32 v3, 4, v1')
    A('s_mul_i32 s24, s22, 36864')
    for j in range(5):
        A(f's_add_u32 s25, s23, {j}')
        A('s_mul_i32 s25, s25, 147456')
        A(f's_add_u32 s{40+j}, s25, s24')
    for tt in range(4):
        A('s_lshl_b32 s25, s20, 2')
        A(f's_add_u32 s25, s25, {tt}')
        A('s_mul_i32 s25, s25, 147456')
        A(f's_add_u32 s{45+tt}, s25, s24')
    A('s_waitcnt lgkmcnt(0)')
    srd(A,8,4,SZ_W,WS['W2F'])
    srd(A,12,4,SZ_H,WS['HF'])
    ACC=32; FR=112
    def loads(p):
        L=[]
        for tt in range(4):
            r=FR+36*p+20+4*tt
            L.append(f'buffer_load_dwordx4 v[{r}:{r+3}], v3, s[12:15], s{45+tt} offen offset:{p*1024}')
        for j in range(5):
            r=FR+36*p+4*j
            L.append(f'buffer_load_dwordx4 v[{r}:{r+3}], v3, s[8:11], s{40+j} offen offset:{p*1024}')
        return L
    for p in range(P):
        for x in loads(p): A(x)
    for r in range(9): A(f's_add_u32 s{40+r}, s{40+r}, 4096')
    for r in range(80): A(f'v_mov_b32 v{ACC+r}, 0')
    srd(A,16,4,SZ_XT,WS['X1T'])
    srd(A,52,4,3456*4,WS['MOD'])
    srd(A,56,6,SZ_XT)
    A('s_mov_b32 s26, 0')
    stamp(A,1)
    def mf(p):
        L=[]
        for j in range(5):
            for tt in range(4):
                d=ACC+16*j+4*tt; a=FR+36*p+4*j; b=FR+36*p+20+4*tt
                L.append(f'v_mfma_f32_16x16x32_bf16 v[{d}:{d+3}], v[{a}:{a+3}], v[{b}:{b+3}], v[{d}:{d+3}]')
        return L
    A('K4_LOOP:')
    for p in range(P):
        A(f's_waitcnt vmcnt({9*(P-1)})')
        for x in mf(p): A(x)
        for x in loads(p): A(x)
    for r in range(9): A(f's_add_u32 s{40+r}, s{40+r}, 4096')
    A('s_add_u32 s26, s26, 1')
    A('s_cmp_lt_u32 s26, 8')
    A('s_cbranch_scc1 K4_LOOP')
    A('v_and_b32 v4, 15, v1')
    A('v_lshrrev_b32 v5, 4, v1')
    A('v_lshlrev_b32 v6, 14, v5')
    A('v_lshl_add_u32 v6, v4, 1, v6')
    A('s_lshl_b32 s27, s20, 7')
    A('s_lshl_b32 s28, s22, 5')
    A('s_add_u32 s27, s27, s28')
    A('s_lshl_b32 s28, s23, 16')
    A('s_add_u32 s27, s27, s28')
    A('v_lshlrev_b32 v7, 4, v5')
    A('s_lshl_b32 s29, s23, 6')
    A('s_add_u32 s29, s29, 11520')
    for p in range(P):
        A(f's_waitcnt vmcnt({9*(P-1-p)+ (25 if p>0 else 0)})')
        for x in mf(p): A(x)
        if p==0:
            for j in range(5):
                for r in range(4):
                    A(f's_add_u32 s30, s27, {j*65536+r*4096}')
                    A(f'buffer_load_ushort v{8+4*j+r}, v6, s[16:19], s30 offen')
                A(f'buffer_load_dwordx4 v[{FR+4*j}:{FR+4*j+3}], v7, s[52:55], s29 offen offset:{j*64}')
    stamp(A,2)
    A('v_mul_u32_u24 v28, 20480, v2')
    A('v_add_u32 v28, v28, v3')
    for tt in range(4):
        for j in range(5):
            d=ACC+16*j+4*tt
            A(f'ds_write_b128 v28, v[{d}:{d+3}] offset:{(tt*5+j)*1024}')
    A('v_mul_u32_u24 v29, 5120, v2')
    A('v_add_u32 v29, v29, v3')
    A('v_add_u32 v30, 40960, v29')
    A('s_waitcnt lgkmcnt(0)')
    A('s_barrier')
    for j in range(5):
        for w in range(4):
            d=ACC+16*j+4*w
            A(f'ds_read_b128 v[{d}:{d+3}], v{29 if w<2 else 30} offset:{(w&1)*20480+j*1024}')
    A('s_lshl_b32 s27, s20, 6')
    A('s_lshl_b32 s28, s22, 4')
    A('s_add_u32 s27, s27, s28')
    A('v_add_u32 v31, s27, v4')
    A('v_mul_u32_u24 v31, 1152, v31')
    A('v_lshl_add_u32 v31, v5, 3, v31')
    A('s_lshl_b32 s28, s23, 5')
    A('s_and_b32 s30, s21, 1')
    A('s_cmp_eq_u32 s30, 0')
    A('s_cselect_b32 s60, -1, 0')
    A('s_mov_b32 s61, -1')
    A('s_mov_b32 s62, -1')
    A('s_cselect_b32 s63, 0, -1')
    A('s_waitcnt vmcnt(0)')
    for j in range(5):
        A(f's_waitcnt lgkmcnt({min(15,4*(4-j))})')
        d=ACC+16*j
        for h in range(2):
            A(f'v_pk_add_f32 v[{d+2*h}:{d+2*h+1}], v[{d+2*h}:{d+2*h+1}], v[{d+4+2*h}:{d+5+2*h}]')
            A(f'v_pk_add_f32 v[{d+8+2*h}:{d+9+2*h}], v[{d+8+2*h}:{d+9+2*h}], v[{d+12+2*h}:{d+13+2*h}]')
        for h in range(2):
            A(f'v_pk_add_f32 v[{d+2*h}:{d+2*h+1}], v[{d+2*h}:{d+2*h+1}], v[{d+8+2*h}:{d+9+2*h}]')
        for h in range(2): A(f'v_cvt_pk_bf16_f32 v{d+4+h}, v{d+2*h}, v{d+2*h+1}')
        for h in range(2): unpack(A,d+2*h,d+2*h+1,d+4+h)
        for h in range(2): A(f'v_pk_mul_f32 v[{d+2*h}:{d+2*h+1}], v[{d+2*h}:{d+2*h+1}], v[{FR+4*j+2*h}:{FR+4*j+2*h+1}]')
        for h in range(2): A(f'v_cvt_pk_bf16_f32 v{d+4+h}, v{d+2*h}, v{d+2*h+1}')
        for h in range(2): unpack(A,d+2*h,d+2*h+1,d+4+h)
        for r in range(4): A(f'v_lshlrev_b32 v{8+4*j+r}, 16, v{8+4*j+r}')
        for h in range(2): A(f'v_pk_add_f32 v[{d+2*h}:{d+2*h+1}], v[{d+2*h}:{d+2*h+1}], v[{8+4*j+2*h}:{9+4*j+2*h}]')
        for h in range(2): A(f'v_cvt_pk_bf16_f32 v{d+4+h}, v{d+2*h}, v{d+2*h+1}')
        if j==0: A('s_mov_b64 exec, s[60:61]')
        if j==4: A('s_mov_b64 exec, s[62:63]')
        A(f'buffer_store_dwordx2 v[{d+4}:{d+5}], v31, s[56:59], s28 offen offset:{j*32}')
        if j in (0,4): A('s_mov_b64 exec, -1')
    if STAMP:
        A('s_waitcnt vmcnt(0)')
    A('K4_END:')
    A('s_endpgm')
    return A.text(), kd('k4_kernel',256)

def assemble(kernels, fn):
    hdr=open('cdna_kernels/'+NAME+'.s.ref').read().split('\n')
    out=[l for l in hdr if l.startswith(';') and '@launch' not in l and 'Override launch' not in l and 'grid=ceil' not in l]
    for k in kernels:
        out.append(f'; @launch kernel={k[0]} grid=({k[1]},1,1) block=({k[2]},1,1) lds={k[3]}')
    out.append('.amdgcn_target "amdgcn-amd-amdhsa--gfx950"')
    out.append('.text')
    seen=set()
    for k in kernels:
        if k[0] in seen: continue
        seen.add(k[0])
        out.append(f'.globl {k[0]}\n.p2align 8\n.type {k[0]},@function')
        out.append(k[4])
    seen=set()
    for k in kernels:
        if k[0] in seen: continue
        seen.add(k[0])
        out.append(k[5])
    open(fn,'w').write('\n'.join(out))

if __name__=='__main__':
    t1,d1=gen_k1(); t2,d2=gen_k2(); t3,d3=gen_k3(); t4,d4=gen_k4()
    ks=[('k1_kernel',K1_GRID,256,K1_LDS,t1,d1),('k2_kernel',K2_GRID,256,K2_LDS,t2,d2),
        ('k3_kernel',256,256,K3_LDS,t3,d3),('k4_kernel',256,256,K4_LDS,t4,d4)]
    nk=int(os.environ.get('NK','4'))
    assemble(ks[:nk], sys.argv[1] if len(sys.argv)>1 else 'k.s')
```

```python
import sys,os
from asmlib import Asm

NAME='adaLN_cond__ssm_conv_s4d__dense_activation_silu__prompt'
KA=dict(x=0,lar=8,aim=16,cr=24,ci=32,logdt=40,dskip=48,w1=64,w2=72,c=80,wmod=88,out=96,dbg=104,ws=112)
WS=dict(MOD=0x0, CS=0x10000, BIAS=0x20000, STAT=0x30000, STAT2=0x38000, X1S=0x400000, XT=0x100000, XNT=0x400000, KF=0x700000, X1T=0xC00000,
        W1F=0x1000000, W2F=0x1800000, HF=0x2000000)
SZ_XT=576*2048*2
KF_CS=4160
SZ_KF=576*KF_CS
SZ_W=576*4608*2
SZ_H=2048*4608*2
LOG2E=0x3fb8aa3b
INV2PI=0x3e22f983

def srd(A, d, base, size, off=0):
    if off:
        A(f's_add_u32 s{d}, s{base}, {off:#x}')
        A(f's_addc_u32 s{d+1}, s{base+1}, 0')
    else:
        A(f's_mov_b32 s{d}, s{base}')
        A(f's_mov_b32 s{d+1}, s{base+1}')
    A(f's_mov_b32 s{d+2}, {size:#x}')
    A(f's_mov_b32 s{d+3}, 0x00020000')

def kd(name, vgpr, sgpr=102, agpr=0):
    acc=(vgpr+3)//4*4
    return f'''.section .rodata,"a"
.p2align 6
.amdhsa_kernel {name}
  .amdhsa_next_free_vgpr {acc+agpr if agpr else vgpr}
  .amdhsa_next_free_sgpr {sgpr}
  .amdhsa_accum_offset {acc}
  .amdhsa_group_segment_fixed_size 0
  .amdhsa_kernarg_size 120
  .amdhsa_user_sgpr_count 2
  .amdhsa_user_sgpr_kernarg_segment_ptr 1
  .amdhsa_system_sgpr_workgroup_id_x 1
.end_amdhsa_kernel
'''

STAMP=bool(os.environ.get('STAMP'))
POL=dict(XT='',KF='',W2F='sc1',X1='',W1F='sc1',H='sc1')
for kv in os.environ.get('POL','').split(','):
    if '=' in kv:
        k,v=kv.split('='); POL[k]=v.replace('+',' ')
def stamp(A,i):
    if STAMP:
        A(f's_mem{"real" if os.environ.get("STAMP")=="2" else ""}time s[{60+2*i}:{61+2*i}]')
def stamp_out(A,n,slot):
    if not STAMP: return
    A('s_waitcnt lgkmcnt(0)')
    srd(A,92,4,1<<22,0x8000000+slot*(1<<22))
    A('v_readfirstlane_b32 s96, v0')
    A('s_lshr_b32 s96, s96, 6')
    A('s_lshl_b32 s97, s2, 2')
    A('s_add_u32 s96, s96, s97')
    A('s_lshl_b32 s96, s96, 6')
    A('v_mov_b32 v1, 0')
    for i in range(n):
        A(f'v_mov_b32 v2, s{60+2*i}')
        A(f'buffer_store_dword v2, v1, s[92:95], s96 offen offset:{4*i}')

def unpack(A, dlo, dhi, src):
    A(f'v_lshlrev_b32 v{dlo}, 16, v{src}')
    A(f'v_and_b32 v{dhi}, 0xffff0000, v{src}')

K1_LN=64; K1_MOD=54; K1_W2=144; K1_KG=576
K1_GRID=K1_LN+K1_MOD+K1_KG
RS=1184
K1_LDS=32*RS

import os
SKIP=os.environ.get('SKIP','').split(',')
def gen_k1():
    A=Asm()
    A('k1_kernel:')
    A(f's_load_dwordx2 s[4:5], s[0:1], {KA["ws"]}')
    A('s_mov_b32 s3, s2')
    A(f's_cmp_lt_u32 s3, {K1_KG}')
    A('s_cbranch_scc1 K1_KG')
    A(f's_sub_u32 s3, s3, {K1_KG}')
    A(f's_cmp_lt_u32 s3, {K1_LN}')
    A('s_cbranch_scc1 K1_LN')
    A(f's_sub_u32 s3, s3, {K1_LN}')
    A(f's_cmp_lt_u32 s3, {K1_MOD}')
    A('s_cbranch_scc1 K1_MOD')
    A('s_endpgm')

    def load_tile(delta=False):
        A('v_lshrrev_b32 v1, 3, v0')
        A('v_and_b32 v2, 7, v0')
        A('v_add_u32 v3, s20, v1')
        if delta:
            A('v_lshrrev_b32 v4, 4, v1')
            A('v_mul_u32_u24 v4, s21, v4')
            A('v_add_u32 v3, v3, v4')
        A('v_mul_u32_u24 v3, 1152, v3')
        A('v_lshl_add_u32 v3, v2, 4, v3')
        for c in range(9):
            A(f'buffer_load_dwordx4 v[{8+4*c}:{11+4*c}], v3, s[8:11], 0 offen offset:{c*128}')
        A(f'v_mul_u32_u24 v4, {RS}, v1')
        A('v_lshl_add_u32 v4, v2, 4, v4')
    def write_tile(base):
        for c in range(9):
            A(f'ds_write_b128 v4, v[{base+4*c}:{base+3+4*c}] offset:{c*128}')

    A('K1_LN:')
    if 'K1_LN' in SKIP: A('s_endpgm')
    stamp(A,0)
    A('s_setprio 3')
    A(f's_load_dwordx2 s[6:7], s[0:1], {KA["x"]}')
    A('s_lshl_b32 s20, s3, 5')
    A('s_waitcnt lgkmcnt(0)')
    srd(A,8,6,SZ_XT)
    load_tile()
    srd(A,12,4,SZ_XT,WS['XT'])
    srd(A,16,4,0x8000+8192,WS['STAT'])
    A('v_and_b32 v116, 63, v0')
    A('v_lshrrev_b32 v117, 6, v0')
    A('v_lshrrev_b32 v118, 4, v116')
    A('v_and_b32 v119, 15, v116')
    A('v_lshrrev_b32 v120, 2, v119')
    A('v_lshl_add_u32 v120, v118, 3, v120')
    A(f'v_mul_u32_u24 v5, {RS}, v120')
    A('v_and_b32 v120, 3, v119')
    A('v_lshl_add_u32 v5, v120, 3, v5')
    A('v_mul_u32_u24 v120, 288, v117')
    A('v_add_u32 v5, v5, v120')
    A('v_mul_u32_u24 v6, 144, v117')
    A('v_add_u32 v6, v6, v119')
    A('v_lshlrev_b32 v6, 12, v6')
    A('v_lshl_add_u32 v6, v118, 4, v6')
    A('s_lshl_b32 s21, s20, 1')
    A('v_add_u32 v6, s21, v6')
    A('s_waitcnt vmcnt(0)')
    stamp(A,1)
    write_tile(8)
    U=44
    for i in range(36): unpack(A,U+2*i,U+2*i+1,8+i)
    A('s_waitcnt lgkmcnt(0)')
    A('s_barrier')
    def tr_tile(rows_h):
        for q in range(9):
            A(f'ds_read_b64_tr_b16 v[{8+4*q}:{9+4*q}], v5 offset:{q*32}')
            A(f'ds_read_b64_tr_b16 v[{10+4*q}:{11+4*q}], v5 offset:{q*32+rows_h*RS}')
    tr_tile(4)
    A(f'v_pk_add_f32 v[116:117], v[{U}:{U+1}], v[{U+2}:{U+3}]')
    A(f'v_pk_add_f32 v[118:119], v[{U+4}:{U+5}], v[{U+6}:{U+7}]')
    for i in range(4,36,2):
        A(f'v_pk_add_f32 v[116:117], v[116:117], v[{U+2*i}:{U+2*i+1}]')
        A(f'v_pk_add_f32 v[118:119], v[118:119], v[{U+2*i+2}:{U+2*i+3}]')
    A('v_pk_add_f32 v[116:117], v[116:117], v[118:119]')
    A('v_add_f32 v116, v116, v117')
    A('s_waitcnt lgkmcnt(0)')
    for q in range(9):
        A(f's_mov_b32 s22, {q*65536}')
        A(f'buffer_store_dwordx4 v[{8+4*q}:{11+4*q}], v6, s[12:15], s22 offen {POL["XT"]}')
    def red8(r):
        A(f'v_add_f32_dpp v{r}, v{r}, v{r} quad_perm:[1,0,3,2] row_mask:0xf bank_mask:0xf')
        A(f'v_add_f32_dpp v{r}, v{r}, v{r} quad_perm:[2,3,0,1] row_mask:0xf bank_mask:0xf')
        A(f'v_add_f32_dpp v{r}, v{r}, v{r} row_half_mirror row_mask:0xf bank_mask:0xf')
    red8(116)
    A('v_mul_f32 v116, 0x3ae38e39, v116')
    A('v_sub_f32 v118, 0, v116')
    for i in range(0,36,2):
        A(f'v_pk_add_f32 v[124:125], v[{U+2*i}:{U+2*i+1}], v[118:119] op_sel_hi:[1,0]')
        A(f'v_pk_add_f32 v[126:127], v[{U+2*i+2}:{U+2*i+3}], v[118:119] op_sel_hi:[1,0]')
        if i==0:
            A('v_pk_mul_f32 v[120:121], v[124:125], v[124:125]')
            A('v_pk_mul_f32 v[122:123], v[126:127], v[126:127]')
        else:
            A('v_pk_fma_f32 v[120:121], v[124:125], v[124:125], v[120:121]')
            A('v_pk_fma_f32 v[122:123], v[126:127], v[126:127], v[122:123]')
    A('v_pk_add_f32 v[120:121], v[120:121], v[122:123]')
    A('v_add_f32 v120, v120, v121')
    red8(120)
    A('v_mul_f32 v120, 0x3ae38e39, v120')
    A('v_cvt_pk_bf16_f32 v120, v120, v120')
    A('v_lshlrev_b32 v120, 16, v120')
    A('v_add_f32 v120, 0x3727c5ac, v120')
    A('v_cvt_pk_bf16_f32 v120, v120, v120')
    A('v_lshlrev_b32 v120, 16, v120')
    A('v_sqrt_f32 v120, v120')
    A('v_cvt_pk_bf16_f32 v120, v116, v120')
    A('v_lshlrev_b32 v121, 2, v1')
    A('v_cmp_eq_u32 vcc, 0, v2')
    A('s_lshl_b32 s21, s20, 2')
    A('s_and_saveexec_b64 s[26:27], vcc')
    A('buffer_store_dword v120, v121, s[16:19], s21 offen')
    A('v_mov_b32 v122, 0')
    A('s_add_u32 s21, s21, 0x8000')
    A('buffer_store_dword v122, v121, s[16:19], s21 offen')
    if STAMP: A('s_mov_b64 exec, -1')
    stamp(A,2)
    if STAMP: A('s_waitcnt vmcnt(0)')
    stamp(A,3)
    stamp_out(A,4,0)
    A('s_endpgm')

    A('K1_MOD:')
    if 'K1_MOD' in SKIP: A('s_endpgm')
    stamp(A,0)
    A('s_setprio 3')
    A(f's_load_dwordx2 s[6:7], s[0:1], {KA["wmod"]}')
    A(f's_load_dwordx2 s[24:25], s[0:1], {KA["c"]}')
    A('s_mov_b32 s23, s3')
    A('s_lshl_b32 s23, s23, 7')
    A('s_waitcnt lgkmcnt(0)')
    srd(A,8,6,576*3456*2)
    srd(A,12,24,1152)
    srd(A,16,4,3456*4,WS['MOD'])
    A('v_lshrrev_b32 v1, 3, v0')
    A('v_and_b32 v2, 7, v0')
    A('v_lshlrev_b32 v3, 1, v1')
    for c in range(18):
        A(f'buffer_load_ushort v{80+c}, v3, s[12:15], 0 offen offset:{c*64}')
    A('v_mul_u32_u24 v4, 6912, v1')
    A('v_lshl_add_u32 v4, v2, 4, v4')
    A('v_add_u32 v4, s23, v4')
    for c in range(18):
        A(f's_mov_b32 s22, {c*32*6912}')
        A(f'buffer_load_dwordx4 v[{8+4*c}:{11+4*c}], v4, s[8:11], s22 offen')
    A('s_waitcnt vmcnt(18)')
    for c in range(18):
        r=80+c
        A(f'v_lshlrev_b32 v{r}, 16, v{r}')
        A(f'v_mul_f32 v100, 0xbfb8aa3b, v{r}')
        A('v_exp_f32 v100, v100')
        A('v_add_f32 v100, 1.0, v100')
        A('v_rcp_f32 v100, v100')
        A(f'v_mul_f32 v{r}, v{r}, v100')
        A(f'v_cvt_pk_bf16_f32 v{r}, v{r}, v{r}')
        A(f'v_lshlrev_b32 v{r}, 16, v{r}')
    for e in range(8): A(f'v_mov_b32 v{104+e}, 0')
    for c in range(18):
        A(f's_waitcnt vmcnt({17-c})')
        for e in range(4):
            unpack(A,100,101,8+4*c+e)
            A(f'v_fmac_f32 v{104+2*e}, v{80+c}, v100')
            A(f'v_fmac_f32 v{105+2*e}, v{80+c}, v101')
    stamp(A,1)
    A('v_lshlrev_b32 v5, 8, v1')
    A('v_lshl_add_u32 v5, v2, 5, v5')
    A('ds_write_b128 v5, v[104:107]')
    A('ds_write_b128 v5, v[108:111] offset:16')
    A('s_waitcnt lgkmcnt(0)')
    A('s_barrier')
    A('v_cmp_gt_u32 vcc, 64, v0')
    A('s_and_saveexec_b64 s[26:27], vcc')
    A('s_cbranch_execz K1_MOD_END')
    A('v_lshlrev_b32 v5, 2, v0')
    for r in range(32):
        A(f'ds_read_b32 v{8+r}, v5 offset:{r*256}')
    A('s_waitcnt lgkmcnt(0)')
    for r in range(16): A(f'v_add_f32 v{8+r}, v{8+r}, v{24+r}')
    for r in range(8): A(f'v_add_f32 v{8+r}, v{8+r}, v{16+r}')
    for r in range(4): A(f'v_add_f32 v{8+r}, v{8+r}, v{12+r}')
    for r in range(2): A(f'v_add_f32 v{8+r}, v{8+r}, v{10+r}')
    A('v_add_f32 v8, v8, v9')
    A('v_cvt_pk_bf16_f32 v8, v8, v8')
    A('v_lshlrev_b32 v8, 16, v8')
    A('s_lshl_b32 s23, s23, 1')
    A('buffer_store_dword v8, v5, s[16:19], s23 offen')
    A('K1_MOD_END:')
    if STAMP:
        A('s_mov_b64 exec, -1')
        stamp(A,2)
        A('s_waitcnt vmcnt(0)')
        stamp(A,3)
        stamp_out(A,4,0)
    A('s_endpgm')

    A('K1_KG:')
    if 'K1_KG' in SKIP: A('s_endpgm')
    stamp(A,0)
    A(f's_load_dwordx4 s[24:27], s[0:1], {KA["lar"]}')
    A(f's_load_dwordx4 s[28:31], s[0:1], {KA["cr"]}')
    A(f's_load_dwordx2 s[32:33], s[0:1], {KA["logdt"]}')
    A('s_mov_b32 s23, s3')
    A('s_lshl_b32 s22, s23, 1')
    A('s_and_b32 s22, s22, 0xfffffffc')
    A('v_and_b32 v1, 63, v0')
    A('v_lshrrev_b32 v2, 4, v0')
    A('v_lshlrev_b32 v3, 4, v2')
    A('s_lshl_b32 s44, s23, 8')
    A('s_waitcnt lgkmcnt(0)')
    A('s_load_dword s34, s[32:33], s22')
    srd(A,8,24,576*128*2)
    A('buffer_load_dwordx4 v[8:11], v3, s[8:11], s44 offen')
    srd(A,12,26,576*128*2)
    A('buffer_load_dwordx4 v[12:15], v3, s[12:15], s44 offen')
    srd(A,16,28,576*128*2)
    A('buffer_load_dwordx4 v[16:19], v3, s[16:19], s44 offen')
    srd(A,36,30,576*128*2)
    A('buffer_load_dwordx4 v[20:23], v3, s[36:39], s44 offen')
    srd(A,40,4,SZ_KF,WS['KF'])
    A('v_and_b32 v4, 15, v0')
    def p_row(tile, vi, vd, t):
        if tile==0:
            A(f'v_lshrrev_b32 v{t}, 3, v{vi}')
            A(f'v_and_b32 v{vd}, 7, v{vi}')
            A(f'v_lshl_add_u32 v{vd}, v{t}, 7, v{vd}')
        elif tile==1:
            A(f'v_lshrrev_b32 v{t}, 2, v{vi}')
            A(f'v_and_b32 v{vd}, 3, v{vi}')
            A(f'v_lshlrev_b32 v{vd}, 1, v{vd}')
            A(f'v_lshl_add_u32 v{vd}, v{t}, 7, v{vd}')
            A(f'v_add_u32 v{vd}, 256, v{vd}')
            A(f'v_lshrrev_b32 v{t}, 1, v{vi}')
            A(f'v_lshlrev_b32 v{t}, 7, v{t}')
            A(f'v_and_b32 v{t+1}, 1, v{vi}')
            A(f'v_lshl_add_u32 v{t}, v{t+1}, 2, v{t}')
            A(f'v_cmp_gt_u32 vcc, 8, v{vi}')
            A(f'v_cndmask_b32 v{vd}, v{t}, v{vd}, vcc')
        else:
            A(f'v_lshlrev_b32 v{vd}, 7, v{vi}')
            A(f'v_add_u32 v{vd}, 1024, v{vd}')
    for t in range(3):
        p_row(t,4,24+2*t,112)
        A(f'v_cvt_f32_u32 v{24+2*t}, v{24+2*t}')
    A('v_lshlrev_b32 v30, 3, v4')
    A('v_cvt_f32_u32 v30, v30')
    A('v_mov_b32 v110, 0x41600000')
    A('v_mov_b32 v111, 0')
    A('v_lshlrev_b32 v5, 3, v0')
    for e in range(8):
        A(f'v_add_u32 v{114+e}, {e}, v5')
        A(f'v_cvt_f32_u32 v{114+e}, v{114+e}')
    for e in range(0,8,2):
        A(f'v_cvt_pk_bf16_f32 v{114+e}, v{114+e}, v{115+e}')
        A(f'v_and_b32 v{115+e}, 0xffff0000, v{114+e}')
        A(f'v_lshlrev_b32 v{114+e}, 16, v{114+e}')
    for e in range(8):
        A(f'v_cvt_u32_f32 v{114+e}, v{114+e}')
        A(f'v_lshlrev_b32 v{114+e}, 1, v{114+e}')
    A('s_waitcnt lgkmcnt(0)')
    A('s_and_b32 s22, s23, 1')
    A('s_lshl_b32 s22, s22, 4')
    A('s_lshr_b32 s34, s34, s22')
    A('s_lshl_b32 s34, s34, 16')
    A(f'v_mov_b32 v112, {LOG2E:#x}')
    A('v_mul_f32 v113, s34, v112')
    A('v_exp_f32 v113, v113')
    A('v_cvt_pk_bf16_f32 v113, v113, v113')
    A('v_lshlrev_b32 v113, 16, v113')
    A('v_mul_f32 v108, 0xbfb8aa3b, v113')
    A(f'v_mul_f32 v109, {INV2PI:#x}, v113')
    stamp(A,1)
    A('s_waitcnt vmcnt(0)')
    stamp(A,2)
    for e in range(4):
        unpack(A,32+4*e,34+4*e,8+e)
        unpack(A,33+4*e,35+4*e,12+e)
        unpack(A,48+4*e,50+4*e,16+e)
        unpack(A,49+4*e,51+4*e,20+e)
    for n in range(8):
        A(f'v_mul_f32 v{32+2*n}, v112, v{32+2*n}')
        A(f'v_exp_f32 v{32+2*n}, v{32+2*n}')
    A('v_max3_f32 v6, |v48|, |v49|, |v50|')
    for n in range(51,63,2): A(f'v_max3_f32 v6, |v{n}|, |v{n+1}|, v6')
    A('v_max_f32 v6, |v63|, v6')
    for n in range(0,8,2):
        A(f'v_cvt_pk_bf16_f32 v{32+2*n}, v{32+2*n}, v{34+2*n}')
        A(f'v_and_b32 v{34+2*n}, 0xffff0000, v{32+2*n}')
        A(f'v_lshlrev_b32 v{32+2*n}, 16, v{32+2*n}')
    for q in range(4): A(f'v_readlane_b32 s{48+q}, v6, {16*q}')
    for n in range(8):
        A(f'v_pk_mul_f32 v[{32+2*n}:{33+2*n}], v[{32+2*n}:{33+2*n}], v[108:109]')
    A('s_max_u32 s48, s48, s49')
    A('s_max_u32 s50, s50, s51')
    A('s_max_u32 s48, s48, s50')
    A('s_lshr_b32 s48, s48, 23')
    A('s_max_u32 s48, s48, 13')
    A('s_min_u32 s48, s48, 254')
    A('s_sub_u32 s50, 267, s48')
    A('s_lshl_b32 s50, s50, 23')
    A('s_mov_b32 s51, s50')
    A('s_sub_u32 s49, s48, 153')
    for n in range(8):
        A(f'v_pk_mul_f32 v[{48+2*n}:{49+2*n}], v[{48+2*n}:{49+2*n}], s[50:51]')
    A('v_ldexp_f32 v113, v113, s49')
    for s in range(8):
        Z=32+2*s; C=48+2*s; r=s&3
        for k in range(3):
            A(f'v_pk_fma_f32 v[{64+2*k}:{65+2*k}], v[{Z}:{Z+1}], v[{24+2*k}:{25+2*k}], v[110:111] op_sel_hi:[1,0,1]')
        A(f'v_pk_mul_f32 v[70:71], v[{Z}:{Z+1}], v[30:31] op_sel_hi:[1,0]')
        for k in range(4): A(f'v_fract_f32 v{65+2*k}, v{65+2*k}')
        for k in range(4):
            A(f'v_exp_f32 v{64+2*k}, v{64+2*k}')
            A(f'v_cos_f32 v{72+2*k}, v{65+2*k}')
            A(f'v_sin_f32 v{73+2*k}, v{65+2*k}')
        for k in range(4):
            A(f'v_pk_mul_f32 v[{72+2*k}:{73+2*k}], v[{72+2*k}:{73+2*k}], v[{64+2*k}:{65+2*k}] op_sel_hi:[1,0]')
        for k in range(3):
            A(f'v_cvt_pk_f16_f32 v{80+4*k+r}, v{72+2*k}, v{73+2*k}')
        A(f'v_pk_mul_f32 v[64:65], v[78:79], v[{C}:{C+1}] op_sel_hi:[1,0] neg_hi:[1,0]')
        A(f'v_pk_fma_f32 v[64:65], v[78:79], v[{C}:{C+1}], v[64:65] op_sel:[1,1,0] op_sel_hi:[0,1,1] neg_lo:[1,0,0] neg_hi:[1,0,0]')
        A(f'v_cvt_pk_f16_f32 v{92+r}, v64, v65')
        if r==3:
            for k in range(3):
                c = '0' if s==3 else f'v[{96+4*k}:{99+4*k}]'
                A(f'v_mfma_f32_16x16x32_f16 v[{96+4*k}:{99+4*k}], v[{80+4*k}:{83+4*k}], v[92:95], {c}')
    stamp(A,3)
    A('v_lshrrev_b32 v5, 6, v0')
    A('v_mul_u32_u24 v5, 3072, v5')
    A('v_lshl_add_u32 v5, v1, 4, v5')
    A('v_readfirstlane_b32 s45, v0')
    A('s_lshr_b32 s45, s45, 6')
    A('v_lshrrev_b32 v6, 4, v1')
    A('v_lshlrev_b32 v6, 2, v6')
    for r in range(1,4): A(f'v_add_u32 v{32+r}, {r}, v6')
    A('v_mov_b32 v32, v6')
    for k in range(6):
        A(f'v_pk_mul_f32 v[{96+2*k}:{97+2*k}], v[{96+2*k}:{97+2*k}], v[112:113] op_sel:[0,1] op_sel_hi:[1,1]')
    for k in range(3):
        A(f'ds_write_b128 v5, v[{96+4*k}:{99+4*k}] offset:{k*1024}')
    for t in range(3):
        A(f's_cmp_lg_u32 s45, {t}')
        A(f's_cbranch_scc1 K1_KG_T{t}')
        for r in range(4): p_row(t,32+r,36+r,40)
        A(f'K1_KG_T{t}:')
    A('s_waitcnt lgkmcnt(0)')
    A('s_barrier')
    A('s_cmp_ge_u32 s45, 3')
    A('s_cbranch_scc1 K1_KG_SKIP')
    A('v_lshlrev_b32 v5, 4, v0')
    for w in range(4):
        A(f'ds_read_b128 v[{8+4*w}:{11+4*w}], v5 offset:{w*3072}')
    for r in range(4):
        A(f'v_lshl_add_u32 v{36+r}, v4, 3, v{36+r}')
        A(f'v_lshlrev_b32 v{36+r}, 1, v{36+r}')
    A('s_waitcnt lgkmcnt(0)')
    A('v_pk_add_f32 v[8:9], v[8:9], v[12:13]')
    A('v_pk_add_f32 v[10:11], v[10:11], v[14:15]')
    A('v_pk_add_f32 v[16:17], v[16:17], v[20:21]')
    A('v_pk_add_f32 v[18:19], v[18:19], v[22:23]')
    A('v_pk_add_f32 v[8:9], v[8:9], v[16:17]')
    A('v_pk_add_f32 v[10:11], v[10:11], v[18:19]')
    A('v_cvt_pk_bf16_f32 v8, v8, v9')
    A('v_cvt_pk_bf16_f32 v10, v10, v11')
    A('ds_write_b16 v36, v8 offset:12288')
    A('ds_write_b16_d16_hi v37, v8 offset:12288')
    A('ds_write_b16 v38, v10 offset:12288')
    A('ds_write_b16_d16_hi v39, v10 offset:12288')
    A('K1_KG_SKIP:')
    A('s_waitcnt lgkmcnt(0)')
    A('s_barrier')
    stamp(A,4)
    for e in range(8):
        A(f'ds_read_u16 v{24+e}, v{114+e} offset:12288')
    A('v_lshlrev_b32 v5, 4, v0')
    A(f's_mul_i32 s44, s23, {KF_CS}')
    A('v_mov_b32 v40, 0\nv_mov_b32 v41, 0\nv_mov_b32 v42, 0\nv_mov_b32 v43, 0')
    A('s_waitcnt lgkmcnt(0)')
    for e in range(4):
        A(f'v_lshl_or_b32 v{16+e}, v{25+2*e}, 16, v{24+2*e}')
    A(f'buffer_store_dwordx4 v[16:19], v5, s[40:43], s44 offen offset:32 {POL["KF"]}')
    A('v_cmp_gt_u32 vcc, 2, v0')
    A('s_and_saveexec_b64 s[56:57], vcc')
    A('s_cbranch_execz K1_KG_END')
    A('buffer_store_dwordx4 v[40:43], v5, s[40:43], s44 offen')
    A('K1_KG_END:')
    if STAMP:
        A('s_mov_b64 exec, -1')
        stamp(A,5)
        stamp_out(A,6,0)
    A('s_endpgm')
    return A.text(), kd('k1_kernel',128)

K2_W1=72; K2_CV=576
K2_GRID=K2_W1+K2_CV+K1_W2
CV_U=0
CV_P=4608
CV_E=4608
W1S=80
W1_TAB=576*W1S
K2_LDS=max(CV_E+33024, 32*RS)

def load_tile_g(A,delta=False):
    A('v_lshrrev_b32 v1, 3, v0')
    A('v_and_b32 v2, 7, v0')
    A('v_add_u32 v3, s20, v1')
    if delta:
        A('v_lshrrev_b32 v4, 4, v1')
        A('v_mul_u32_u24 v4, s21, v4')
        A('v_add_u32 v3, v3, v4')
    A('v_mul_u32_u24 v3, 1152, v3')
    A('v_lshl_add_u32 v3, v2, 4, v3')
    for c in range(9):
        A(f'buffer_load_dwordx4 v[{8+4*c}:{11+4*c}], v3, s[8:11], 0 offen offset:{c*128}')
    A(f'v_mul_u32_u24 v4, {RS}, v1')
    A('v_lshl_add_u32 v4, v2, 4, v4')
def write_tile_g(A,base):
    for c in range(9):
        A(f'ds_write_b128 v4, v[{base+4*c}:{base+3+4*c}] offset:{c*128}')
def tr_tile_g(A,rows_h):
    for q in range(9):
        A(f'ds_read_b64_tr_b16 v[{8+4*q}:{9+4*q}], v5 offset:{q*32}')
        A(f'ds_read_b64_tr_b16 v[{10+4*q}:{11+4*q}], v5 offset:{q*32+rows_h*RS}')

def gen_k2():
    A=Asm()
    A('k2_kernel:')
    A(f's_load_dwordx2 s[4:5], s[0:1], {KA["ws"]}')
    A('s_mov_b32 s3, s2')
    A(f's_cmp_lt_u32 s3, {K2_CV}')
    A('s_cbranch_scc1 K2_CV')
    A(f's_sub_u32 s3, s3, {K2_CV}')
    A(f's_cmp_lt_u32 s3, {K2_W1}')
    A('s_cbranch_scc1 K2_W1')
    A(f's_sub_u32 s3, s3, {K2_W1}')
    A(f's_cmp_lt_u32 s3, {K1_W2}')
    A('s_cbranch_scc1 K1_W2')
    A('s_endpgm')
    A('K2_CV:')
    if 'K2_CV' in SKIP: A('s_endpgm')
    stamp(A,0)
    A(f's_load_dwordx2 s[6:7], s[0:1], {KA["dskip"]}')
    A('s_mov_b32 s23, s3')
    A('s_lshl_b32 s22, s23, 1')
    A('s_and_b32 s22, s22, 0xfffffffc')
    A('s_lshl_b32 s24, s23, 2')
    A('s_add_u32 s25, s24, 2304')
    A('s_add_u32 s26, s24, 4608')
    A('s_add_u32 s27, s24, 9216')
    A('s_lshl_b32 s44, s23, 12')
    A(f's_mul_i32 s45, s23, {KF_CS}')
    A('v_lshlrev_b32 v1, 4, v0')
    A('v_lshlrev_b32 v2, 5, v0')
    A('v_and_b32 v20, 15, v0')
    A('v_bfe_u32 v21, v0, 4, 2')
    A('v_lshrrev_b32 v22, 6, v0')
    A('s_waitcnt lgkmcnt(0)')
    stamp(A,8)
    A('s_load_dword s34, s[6:7], s22')
    A('s_load_dword s35, s[4:5], s24')
    A('s_load_dword s36, s[4:5], s25')
    A('s_load_dword s37, s[4:5], s26')
    A('s_load_dword s33, s[4:5], s27')
    srd(A,16,4,SZ_KF,WS['KF'])
    WA=72; WB=80; OA=88; OB=96
    A(f'buffer_load_dwordx4 v[{WA}:{WA+3}], v1, s[16:19], s45 offen offset:16')
    A(f'buffer_load_dwordx4 v[{WA+4}:{WA+7}], v1, s[16:19], s45 offen offset:32')
    A(f'buffer_load_dwordx4 v[{WB}:{WB+3}], v1, s[16:19], s45 offen offset:20')
    A(f'buffer_load_dwordx4 v[{WB+4}:{WB+7}], v1, s[16:19], s45 offen offset:36')
    srd(A,8,4,SZ_XT,WS['XT'])
    A('buffer_load_dwordx4 v[12:15], v1, s[8:11], s44 offen')
    srd(A,12,4,8192,WS['STAT'])
    A('buffer_load_dwordx4 v[40:43], v2, s[12:15], 0 offen')
    A('buffer_load_dwordx4 v[44:47], v2, s[12:15], 0 offen offset:16')
    srd(A,40,4,SZ_XT,WS['X1T'])
    stamp(A,9)
    A('v_mov_b32 v16, 0\nv_mov_b32 v17, 0\nv_mov_b32 v18, 0\nv_mov_b32 v19, 0')
    A(f'v_add_u32 v3, {CV_U+4096}, v1')
    A(f'v_add_u32 v23, {CV_E-512}, v1')
    A('v_cmp_gt_u32 vcc, 32, v0')
    A('v_cndmask_b32 v3, v23, v3, vcc')
    A('v_cmp_gt_u32 vcc, 40, v0')
    A('s_and_saveexec_b64 s[46:47], vcc')
    A('ds_write_b128 v3, v[16:19]')
    A('s_mov_b64 exec, s[46:47]')
    A('v_lshlrev_b32 v23, 7, v22')
    A('v_lshl_add_u32 v23, v21, 4, v23')
    A('v_lshlrev_b32 v25, 5, v20')
    A('v_sub_u32 v23, v23, v25')
    A(f'v_add_u32 v23, {CV_U+480}, v23')
    A(f'v_sub_u32 v25, {CV_U+4080}, v1')
    A('v_lshl_add_u32 v24, v21, 3, v20')
    A('v_lshl_add_u32 v24, v22, 6, v24')
    A('v_add_u32 v24, 1, v24')
    for res in range(2):
        if res: A('v_add_u32 v24, 32, v24')
        A('v_bfe_u32 v30, v24, 3, 3')
        A(f'v_xor_b32 v{30+res}, v24, v30')
        A(f'v_lshlrev_b32 v{30+res}, 4, v{30+res}')
        if res==0: A('v_mov_b32 v29, v30')
    A('v_mov_b32 v30, v29')
    A('v_add_u32 v26, 1, v0')
    A('v_and_b32 v27, 7, v26')
    A('v_lshlrev_b32 v27, 4, v27')
    A('v_lshlrev_b32 v26, 7, v26')
    for sft in range(8):
        A(f'v_xor_b32 v{104+sft}, {sft*16}, v27')
        A(f'v_add_u32 v{104+sft}, v26, v{104+sft}')
    stamp(A,1)
    A('s_waitcnt vmcnt(3)')
    stamp(A,2)
    for j in range(6):
        A(f'v_alignbit_b32 v{OA+j}, v{WA+j+1}, v{WA+j}, 16')
        A(f'v_alignbit_b32 v{OB+j}, v{WB+j+1}, v{WB+j}, 16')
    for sft,r in enumerate([WA,OA,WB,OB,WA+2,OA+2,WB+2,OB+2]):
        A(f'ds_write_b128 v{104+sft}, v[{r}:{r+3}] offset:{CV_E}')
    A('v_cmp_eq_u32 vcc, 255, v0')
    A('v_mov_b32 v3, 0')
    A('s_and_saveexec_b64 s[46:47], vcc')
    A(f'ds_write_b128 v3, v[{WA+4}:{WA+7}] offset:{CV_E+257*128+16}')
    A('s_mov_b64 exec, s[46:47]')
    A('s_waitcnt lgkmcnt(0)')
    A('s_and_b32 s22, s23, 1')
    A('s_lshl_b32 s22, s22, 4')
    A('s_lshr_b32 s34, s34, s22')
    A('s_lshl_b32 s34, s34, 16')
    A('s_mov_b32 s38, s35')
    A('s_mov_b32 s39, s35')
    A('v_add_f32 v26, 1.0, s36')
    A('v_cvt_pk_bf16_f32 v26, v26, v26')
    A('v_lshlrev_b32 v26, 16, v26')
    A('s_waitcnt vmcnt(0)')
    H=32; X=48; M=56; SD=64
    for e in range(4): unpack(A,X+2*e,X+1+2*e,12+e)
    for e in range(8): unpack(A,M+e,SD+e,40+e)
    for e in range(8): A(f'v_rcp_f32 v{SD+e}, v{SD+e}')
    for e in range(4): A(f'v_pk_add_f32 v[{H+2*e}:{H+1+2*e}], v[{X+2*e}:{X+1+2*e}], v[{M+2*e}:{M+1+2*e}] neg_lo:[0,1] neg_hi:[0,1]')
    def rnd(base,tmp):
        for e in range(4): A(f'v_cvt_pk_bf16_f32 v{tmp+e}, v{base+2*e}, v{base+2*e+1}')
        for e in range(4): unpack(A,base+2*e,base+2*e+1,tmp+e)
    rnd(H,4)
    for e in range(4): A(f'v_pk_mul_f32 v[{H+2*e}:{H+1+2*e}], v[{H+2*e}:{H+1+2*e}], v[{SD+2*e}:{SD+1+2*e}]')
    rnd(H,4)
    for e in range(4): A(f'v_pk_mul_f32 v[{H+2*e}:{H+1+2*e}], v[{H+2*e}:{H+1+2*e}], v[26:27] op_sel_hi:[1,0]')
    rnd(H,4)
    for e in range(4): A(f'v_pk_add_f32 v[{H+2*e}:{H+1+2*e}], v[{H+2*e}:{H+1+2*e}], s[38:39]')
    for e in range(4): A(f'v_cvt_pk_bf16_f32 v{4+e}, v{H+7-2*e}, v{H+6-2*e}')
    A('ds_write_b128 v25, v[4:7]')
    for e in range(4): unpack(A,H+7-2*e,H+6-2*e,4+e)
    for e in range(8): A(f'v_mul_f32 v{H+e}, s34, v{H+e}')
    A('v_and_b32 v27, 63, v0')
    A('v_lshlrev_b32 v27, 4, v27')
    A('v_lshl_add_u32 v27, v22, 13, v27')
    A('v_lshrrev_b32 v28, 5, v0')
    A('v_lshlrev_b32 v28, 10, v28')
    A('v_bfe_u32 v29, v0, 1, 4')
    A('v_lshl_add_u32 v28, v29, 4, v28')
    A('v_and_b32 v29, 1, v0')
    A('v_lshl_add_u32 v28, v29, 9, v28')
    A('s_waitcnt lgkmcnt(0)')
    A('s_barrier')
    stamp(A,3)
    Y=56; V=88; G=120
    for res in range(2):
        for n in range(8):
            A(f'ds_read_b128 v[{V+4*n}:{V+3+4*n}], v23 offset:{(7-n)*512+res*64}')
            A(f'ds_read_b128 v[{G+4*n}:{G+3+4*n}], v{30+res} offset:{CV_E+n*4096}')
        if res==0: rnd(H,4)
        done=set()
        for lev in range(8):
            A(f's_waitcnt lgkmcnt({2*(7-lev)})')
            if res==1 and lev==7: A('s_barrier')
            for q in range(lev+1):
                for n1 in range(lev+1):
                    if max(q,n1)!=lev or q+n1>7: continue
                    n=q+n1
                    c = f'v[{Y+4*n}:{Y+3+4*n}]' if (res or n in done) else '0'
                    done.add(n)
                    A(f'v_mfma_f32_16x16x32_bf16 v[{Y+4*n}:{Y+3+4*n}], v[{G+4*q}:{G+3+4*q}], v[{V+4*n1}:{V+3+4*n1}], {c}')
    stamp(A,4)
    for n in range(8):
        A(f'ds_write_b128 v27, v[{Y+4*n}:{Y+3+4*n}] offset:{CV_P+n*1024}')
    A('v_lshrrev_b32 v2, 3, v0')
    A('v_mul_u32_u24 v2, 73728, v2')
    A('v_and_b32 v3, 7, v0')
    A('v_lshl_add_u32 v2, v3, 4, v2')
    A('s_lshl_b32 s44, s23, 7')
    A('s_mov_b32 s38, s37')
    A('s_mov_b32 s39, s37')
    A('s_waitcnt lgkmcnt(0)')
    A('s_barrier')
    stamp(A,5)
    S=88
    for w in range(4):
        A(f'ds_read_b128 v[{S+8*w}:{S+3+8*w}], v28 offset:{CV_P+w*8192}')
        A(f'ds_read_b128 v[{S+4+8*w}:{S+7+8*w}], v28 offset:{CV_P+w*8192+256}')
    A('s_waitcnt lgkmcnt(0)')
    for e in range(0,8,2):
        A(f'v_pk_add_f32 v[{S+e}:{S+1+e}], v[{S+e}:{S+1+e}], v[{S+8+e}:{S+9+e}]')
        A(f'v_pk_add_f32 v[{S+16+e}:{S+17+e}], v[{S+16+e}:{S+17+e}], v[{S+24+e}:{S+25+e}]')
    for e in range(0,8,2):
        A(f'v_pk_add_f32 v[{S+e}:{S+1+e}], v[{S+e}:{S+1+e}], v[{S+16+e}:{S+17+e}]')
    rnd(S,4)
    for e in range(0,8,2): A(f'v_pk_add_f32 v[{S+e}:{S+1+e}], v[{S+e}:{S+1+e}], v[{H+e}:{H+1+e}]')
    rnd(S,4)
    for e in range(0,8,2): A(f'v_pk_mul_f32 v[{S+e}:{S+1+e}], v[{S+e}:{S+1+e}], s[38:39]')
    rnd(S,4)
    for e in range(0,8,2): A(f'v_pk_add_f32 v[{S+e}:{S+1+e}], v[{S+e}:{S+1+e}], v[{X+e}:{X+1+e}]')
    for e in range(4): A(f'v_cvt_pk_bf16_f32 v{4+e}, v{S+2*e}, v{S+1+2*e}')
    A(f'buffer_store_dwordx4 v[4:7], v2, s[40:43], s44 offen {POL["X1"]}')
    srd(A,48,4,SZ_XT,WS['X1S'])
    A('v_add_f32 v26, 1.0, s33')
    A('v_cvt_pk_bf16_f32 v26, v26, v26')
    A('v_lshlrev_b32 v26, 16, v26')
    for e in range(4): unpack(A,S+2*e,S+1+2*e,4+e)
    for e in range(4): A(f'v_pk_mul_f32 v[{S+2*e}:{S+1+2*e}], v[{S+2*e}:{S+1+2*e}], v[26:27] op_sel_hi:[1,0]')
    for e in range(4): A(f'v_cvt_pk_bf16_f32 v{8+e}, v{S+2*e}, v{S+1+2*e}')
    A(f'buffer_store_dwordx4 v[8:11], v2, s[48:51], s44 offen {POL["X1"]}')
    stamp(A,6)
    if STAMP: A('s_waitcnt vmcnt(0)')
    stamp(A,7)
    stamp_out(A,10,1)
    A('s_endpgm')

    A('K2_W1:')
    if 'K2_W1' in SKIP: A('s_endpgm')
    A(f's_load_dwordx2 s[6:7], s[0:1], {KA["w1"]}')
    A('s_and_b32 s23, s3, 7')
    A('s_mul_i32 s23, s23, 9')
    A('s_lshr_b32 s24, s3, 3')
    A('s_add_u32 s23, s23, s24')
    A('s_lshl_b32 s23, s23, 7')
    A('v_lshrrev_b32 v1, 3, v0')
    A('v_and_b32 v2, 7, v0')
    A('v_mul_u32_u24 v4, 9216, v1')
    A('v_lshl_add_u32 v4, v2, 4, v4')
    A('v_add_u32 v4, s23, v4')
    A('v_lshlrev_b32 v3, 2, v0')
    A('s_waitcnt lgkmcnt(0)')
    srd(A,16,4,3456*4,WS['MOD'])
    for c in range(3):
        A(f's_mov_b32 s22, {(4*576+256*c)*4}')
        A(f'buffer_load_dword v{100+2*c}, v3, s[16:19], s22 offen')
        A(f's_mov_b32 s22, {(3*576+256*c)*4}')
        A(f'buffer_load_dword v{101+2*c}, v3, s[16:19], s22 offen')
    srd(A,8,6,SZ_W)
    for c in range(18):
        A(f's_mov_b32 s22, {c*32*9216}')
        A(f'buffer_load_dwordx4 v[{8+4*c}:{11+4*c}], v4, s[8:11], s22 offen')
    srd(A,36,4,4608*4,WS['CS'])
    srd(A,40,4,4608*4,WS['BIAS'])
    A('v_lshlrev_b32 v5, 3, v0')
    A('s_waitcnt vmcnt(18)')
    for c in range(3):
        A(f'v_add_f32 v{100+2*c}, 1.0, v{100+2*c}')
        A(f'v_cvt_pk_bf16_f32 v{100+2*c}, v{100+2*c}, v{100+2*c}')
        A(f'v_lshlrev_b32 v{100+2*c}, 16, v{100+2*c}')
        A(f'ds_write_b64 v5, v[{100+2*c}:{101+2*c}] offset:{2048*c}')
    A('v_lshlrev_b32 v6, 3, v1')
    A('s_waitcnt lgkmcnt(0)')
    A('s_barrier')
    for c in range(18):
        A(f'ds_read_b64 v[{108+2*c}:{109+2*c}], v6 offset:{c*256}')
    CA=80
    for c in range(18):
        A(f's_waitcnt vmcnt({17-c}) lgkmcnt({min(15,17-c)})')
        for e in range(4):
            t=96+2*(e&1)
            unpack(A,t,t+1,8+4*c+e)
            k=108+2*c
            if c==0:
                A(f'v_pk_mul_f32 v[{CA+2*e}:{CA+2*e+1}], v[{t}:{t+1}], v[{k}:{k+1}] op_sel_hi:[1,0]')
                A(f'v_pk_mul_f32 v[{CA+8+2*e}:{CA+9+2*e}], v[{t}:{t+1}], v[{k}:{k+1}] op_sel:[0,1] op_sel_hi:[1,1]')
            else:
                A(f'v_pk_fma_f32 v[{CA+2*e}:{CA+2*e+1}], v[{t}:{t+1}], v[{k}:{k+1}], v[{CA+2*e}:{CA+2*e+1}] op_sel_hi:[1,0,1]')
                A(f'v_pk_fma_f32 v[{CA+8+2*e}:{CA+9+2*e}], v[{t}:{t+1}], v[{k}:{k+1}], v[{CA+8+2*e}:{CA+9+2*e}] op_sel:[0,1,0] op_sel_hi:[1,1,1]')
    A('v_lshlrev_b32 v5, 9, v1')
    A('v_lshl_add_u32 v5, v2, 5, v5')
    A(f'ds_write_b128 v5, v[{CA}:{CA+3}] offset:8192')
    A(f'ds_write_b128 v5, v[{CA+4}:{CA+7}] offset:8208')
    A(f'ds_write_b128 v5, v[{CA+8}:{CA+11}] offset:{8192+256}')
    A(f'ds_write_b128 v5, v[{CA+12}:{CA+15}] offset:{8192+272}')
    A('s_waitcnt lgkmcnt(0)')
    A('s_barrier')
    A('v_readfirstlane_b32 s45, v0')
    A('s_cmp_ge_u32 s45, 128')
    A('s_cbranch_scc1 K2_CS_END')
    for r in range(32):
        A(f'ds_read_b32 v{8+r}, v3 offset:{8192+r*512}')
    A('v_and_b32 v6, 63, v0')
    A('v_lshlrev_b32 v6, 2, v6')
    A('s_lshl_b32 s23, s23, 1')
    A('s_waitcnt lgkmcnt(0)')
    for st in (16,8,4,2):
        for o in range(0,st,2):
            A(f'v_pk_add_f32 v[{8+o}:{9+o}], v[{8+o}:{9+o}], v[{8+o+st}:{9+o+st}]')
    A('v_add_f32 v8, v8, v9')
    A('s_cmp_ge_u32 s45, 64')
    A('s_cbranch_scc1 K2_CS_B')
    A('buffer_store_dword v8, v6, s[36:39], s23 offen')
    A('s_endpgm')
    A('K2_CS_B:')
    A('v_mul_f32 v8, 0xbfb8aa3b, v8')
    A('buffer_store_dword v8, v6, s[40:43], s23 offen')
    A('K2_CS_END:')
    A('s_endpgm')

    A('K1_W2:')
    if 'K1_W2' in SKIP: A('s_endpgm')
    stamp(A,0)
    A(f's_load_dwordx2 s[6:7], s[0:1], {KA["w2"]}')
    A('s_mov_b32 s23, s3')
    A('s_mul_i32 s24, s23, 57')
    A('s_lshr_b32 s24, s24, 9')
    A('s_mul_i32 s25, s24, 9')
    A('s_sub_u32 s25, s23, s25')
    A('s_mul_i32 s24, s24, 18')
    A('s_and_b32 s27, s25, 3')
    A('s_lshl_b32 s26, s27, 1')
    A('s_cmp_eq_u32 s27, 3')
    A('s_addc_u32 s26, s26, 0')
    A('s_cmp_ge_u32 s25, 4')
    A('s_cselect_b32 s27, 9, 0')
    A('s_add_u32 s26, s26, s27')
    A('s_cmp_eq_u32 s25, 8')
    A('s_cselect_b32 s26, 6, s26')
    A('s_cselect_b32 s21, 128, 0')
    A('s_add_u32 s24, s24, s26')
    A('s_lshl_b32 s20, s24, 4')
    A('s_waitcnt lgkmcnt(0)')
    srd(A,8,6,SZ_W)
    srd(A,12,4,SZ_W,WS['W2F'])
    load_tile_g(A,True)
    A('v_and_b32 v116, 63, v0')
    A('v_lshrrev_b32 v117, 6, v0')
    A('v_lshrrev_b32 v120, 2, v116')
    A(f'v_mul_u32_u24 v5, {RS}, v120')
    A('v_and_b32 v120, 3, v116')
    A('v_lshl_add_u32 v5, v120, 3, v5')
    A('v_mul_u32_u24 v120, 288, v117')
    A('v_add_u32 v5, v5, v120')
    A('v_mul_u32_u24 v6, 9, v117')
    A('s_mul_i32 s24, s23, 36')
    A('v_add_u32 v6, s24, v6')
    A('v_lshl_add_u32 v6, v6, 6, v116')
    A('v_lshlrev_b32 v6, 4, v6')
    A('s_waitcnt vmcnt(0)')
    stamp(A,1)
    write_tile_g(A,8)
    A('s_waitcnt lgkmcnt(0)')
    A('s_barrier')
    tr_tile_g(A,16)
    A('s_waitcnt lgkmcnt(0)')
    for q in range(9):
        A(f's_mov_b32 s22, {q*1024}')
        A(f'buffer_store_dwordx4 v[{8+4*q}:{11+4*q}], v6, s[12:15], s22 offen {POL["W2F"]}')
    stamp(A,2)
    if STAMP: A('s_waitcnt vmcnt(0)')
    stamp(A,3)
    stamp_out(A,4,1)
    A('s_endpgm')

    return A.text(), kd('k2_kernel',152)

NOSTAT=bool(os.environ.get('NOSTAT'))
def interleave(A, mf, fill, per=None):
    n=len(mf); m=len(fill); k=0
    for i,x in enumerate(mf):
        A(x)
        tgt=(i+1)*m//n
        while k<tgt:
            A(fill[k]); k+=1
    while k<m:
        A(fill[k]); k+=1

K3_GRID=256
K3_A0=81920; K3_A1=49152; K3_CSL=155648; K3_LDS=156800
class VM:
    def __init__(s): s.q=[]
    def add(s,tag,n=1): s.q+= [tag]*n
    def after(s,tag):
        idx=max(i for i,t in enumerate(s.q) if t==tag)
        return min(63,len(s.q)-1-idx)

def wave_sum(A,r,t):
    A(f'v_add_f32_dpp v{r}, v{r}, v{r} quad_perm:[1,0,3,2] row_mask:0xf bank_mask:0xf')
    A(f'v_add_f32_dpp v{r}, v{r}, v{r} quad_perm:[2,3,0,1] row_mask:0xf bank_mask:0xf')
    A(f'v_add_f32_dpp v{r}, v{r}, v{r} row_half_mirror row_mask:0xf bank_mask:0xf')
    A(f'v_add_f32_dpp v{r}, v{r}, v{r} row_mirror row_mask:0xf bank_mask:0xf')
    A(f'v_mov_b32 v{t}, v{r}')
    A(f'v_permlane16_swap_b32 v{r}, v{t}')
    A(f'v_add_f32 v{r}, v{r}, v{t}')
    A(f'v_mov_b32 v{t}, v{r}')
    A(f'v_permlane32_swap_b32 v{r}, v{t}')
    A(f'v_add_f32 v{r}, v{r}, v{t}')

def row_stat(A,X,r):
    for c in range(9): A(f'v_lshlrev_b32 v{X+c}, 16, v{X+c}')
    A(f'v_add_f32 v{r}, v{X}, v{X+1}')
    for c in range(2,9): A(f'v_add_f32 v{r}, v{r}, v{X+c}')
    wave_sum(A,r,r+1)
    A(f'v_mul_f32 v{r}, 0x3ae38e39, v{r}')
    for c in range(9): A(f'v_sub_f32 v{X+c}, v{X+c}, v{r}')
    A(f'v_mul_f32 v{r+2}, v{X}, v{X}')
    for c in range(1,9): A(f'v_fmac_f32 v{r+2}, v{X+c}, v{X+c}')
    wave_sum(A,r+2,r+1)
    q=r+2
    A(f'v_mul_f32 v{q}, 0x3ae38e39, v{q}')
    A(f'v_cvt_pk_bf16_f32 v{q}, v{q}, v{q}')
    A(f'v_lshlrev_b32 v{q}, 16, v{q}')
    A(f'v_add_f32 v{q}, 0x3727c5ac, v{q}')
    A(f'v_cvt_pk_bf16_f32 v{q}, v{q}, v{q}')
    A(f'v_lshlrev_b32 v{q}, 16, v{q}')
    A(f'v_sqrt_f32 v{q}, v{q}')
    A(f'v_cvt_pk_bf16_f32 v{r}, v{r}, v{q}')

def gen_k3():
    A=Asm(); vm=VM()
    A('k3_kernel:')
    A(f's_cmp_ge_u32 s2, {K3_GRID}')
    A('s_cbranch_scc1 K3_END')
    stamp(A,0)
    A(f's_load_dwordx2 s[4:5], s[0:1], {KA["ws"]}')
    A(f's_load_dwordx2 s[6:7], s[0:1], {KA["w1"]}')
    A(f's_load_dwordx2 s[34:35], s[0:1], {KA["dbg"]}')
    A('s_lshr_b32 s20, s2, 5')
    A('s_and_b32 s21, s2, 7')
    A('s_lshl_b32 s21, s21, 2')
    A('s_bfe_u32 s23, s2, 0x20003')
    A('s_add_u32 s21, s21, s23')
    AF=40; S1=88; S0=136; BX=200; T=232; CB=32
    t0,t1,t2,t3,G,I=88,89,90,91,92,93
    A('v_and_b32 v1, 63, v0')
    A('v_lshrrev_b32 v2, 6, v0')
    A('v_readfirstlane_b32 s22, v2')
    A('v_lshlrev_b32 v3, 4, v1')
    A(f'v_lshrrev_b32 v{G}, 4, v1')
    A(f'v_and_b32 v{I}, 15, v1')
    A('v_lshrrev_b32 v8, 3, v1')
    A('v_lshlrev_b32 v8, 7, v8')
    A(f'v_and_b32 v{t0}, 7, v1')
    A(f'v_lshlrev_b32 v{t1}, 1, v{G}')
    A(f'v_xor_b32 v{t0}, v{t0}, v{t1}')
    A(f'v_lshl_add_u32 v8, v{t0}, 4, v8')
    A('s_lshl_b32 s23, s20, 2')
    A('s_add_u32 s23, s23, s22')
    A('s_mul_i32 s23, s23, 73728')
    A('v_add_u32 v8, s23, v8')
    A('s_mul_i32 s24, s21, 288')
    A(f'v_and_b32 v{t0}, 3, v1')
    A(f'v_and_b32 v{t1}, 1, v{G}')
    A(f'v_lshlrev_b32 v{t1}, 1, v{t1}')
    A(f'v_xor_b32 v{t0}, v{t0}, v{t1}')
    A(f'v_lshrrev_b32 v{t1}, 2, v1')
    A('s_and_b32 s27, s22, 1')
    A('s_lshl_b32 s27, s27, 4')
    A(f'v_add_u32 v{t2}, s27, v{t1}')
    A(f'v_mul_u32_u24 v{t2}, 9216, v{t2}')
    A(f'v_lshl_add_u32 v9, v{t0}, 4, v{t2}')
    A('s_lshr_b32 s27, s22, 1')
    A('s_lshl_b32 s27, s27, 6')
    A('s_add_u32 s27, s27, s24')
    A('v_add_u32 v9, s27, v9')
    A('s_lshl_b32 s27, s22, 4')
    A(f'v_add_u32 v{t2}, s27, v{t1}')
    A(f'v_mul_u32_u24 v{t2}, 9216, v{t2}')
    A(f'v_lshl_add_u32 v5, v{t0}, 4, v{t2}')
    A('s_add_u32 s27, s24, 224')
    A('v_add_u32 v5, s27, v5')
    A(f'v_mad_u32_u24 v{t0}, v2, 48, v1')
    A(f'v_mul_u32_u24 v{t1}, 171, v{t0}')
    A(f'v_lshrrev_b32 v{t1}, 10, v{t1}')
    A(f'v_mul_u32_u24 v{t2}, 6, v{t1}')
    A(f'v_sub_u32 v{t0}, v{t0}, v{t2}')
    A(f'v_mul_u32_u24 v{t1}, 9216, v{t1}')
    A(f'v_lshl_add_u32 v4, v{t0}, 4, v{t1}')
    A('s_add_u32 s27, s24, 128')
    A('v_add_u32 v4, s27, v4')
    A('s_lshl_b32 s25, s22, 12')
    A('s_lshl_b32 s33, s22, 10')
    A(f's_add_u32 s26, s33, {K3_A0}')
    A('s_mul_i32 s27, s22, 768')
    A(f's_add_u32 s27, s27, {K3_A1}')
    A('s_mov_b32 s56, -1\ns_mov_b32 s57, 0xffff')
    A('s_lshl_b32 s36, s20, 8')
    A('s_lshl_b32 s37, s21, 3')
    A('s_add_u32 s36, s36, s37')
    A('s_lshr_b32 s37, s36, 6')
    A('s_mul_i32 s37, s37, 73728')
    A('s_and_b32 s38, s36, 63')
    A('s_lshl_b32 s38, s38, 1')
    A('s_add_u32 s37, s37, s38')
    A('s_lshl_b32 s38, s22, 1')
    A('s_add_u32 s36, s36, s38')
    A('v_lshlrev_b32 v22, 7, v0')
    A('v_lshlrev_b32 v23, 2, v0')
    A('s_waitcnt lgkmcnt(0)')
    srd(A,8,6,SZ_W)
    srd(A,12,4,SZ_XT,WS['X1S'])
    def dmaB(ks):
        st=(ks%5)*16384; vm.add(f'b{ks}',4)
        return [(f's_add_u32 m0, s25, {st}\ns_mov_b32 s31, {ks*4096}\n' if c==0 else '')+f'buffer_load_dwordx4 v8, s[12:15], s31 offen offset:{c*1024} lds' for c in range(4)]
    def dmaA0(ks):
        vm.add(f'a{ks}')
        return f's_add_u32 m0, s26, {ks*4096}\ns_mov_b32 s30, {ks*32*9216}\nbuffer_load_dwordx4 v9, s[8:11], s30 offen lds'
    LOC=list(range(11,18))+list(range(0,11))
    def dma1(k):
        vm.add('a1')
        return f's_add_u32 m0, s27, {LOC[k]*3072}\ns_mov_b32 s30, {k*32*9216}\ns_mov_b64 exec, s[56:57]\nbuffer_load_dwordx4 v4, s[8:11], s30 offen lds\ns_mov_b64 exec, -1'
    def dma2(k0):
        vm.add('a2')
        return f's_add_u32 m0, s33, {k0*2048}\ns_mov_b32 s30, {k0*32*9216}\ns_nop 0\nbuffer_load_dwordx4 v5, s[8:11], s30 offen lds'
    for x in dmaB(0): A(x)
    for k in range(3): A(dmaA0(k))
    for x in dmaB(1): A(x)
    srd(A,40,4,SZ_XT,WS['X1T'])
    SJ=K3_A0+15*4096
    A(f's_add_u32 m0, s33, {SJ}')
    A('buffer_load_dwordx4 v22, s[40:43], s37 offen lds'); vm.add('sj')
    A(f's_add_u32 m0, s33, {SJ+4096}')
    A('s_add_u32 s38, s37, 32768')
    A('buffer_load_dwordx4 v22, s[40:43], s38 offen lds'); vm.add('sj')
    A('s_lshl_b32 s38, s22, 8')
    A(f's_add_u32 m0, s38, {SJ+8192}')
    A('s_lshl_b32 s38, s22, 11')
    A('s_add_u32 s38, s38, s37')
    A('s_add_u32 s38, s38, 65536')
    A(f'v_lshlrev_b32 v{t0}, 7, v1')
    A('s_mov_b64 exec, 0xffff')
    A(f'buffer_load_dwordx4 v{t0}, s[40:43], s38 offen lds'); vm.add('sj')
    A('s_mov_b64 exec, -1')
    srd(A,44,4,0x10000+4608*4,WS['CS'])
    A('s_mul_i32 s30, s21, 576')
    A('buffer_load_dword v94, v23, s[44:47], s30 offen'); vm.add('cs')
    A('s_add_u32 s30, s30, 0x10000')
    A('buffer_load_dword v95, v23, s[44:47], s30 offen'); vm.add('cs')
    for x in dmaB(2): A(x)
    for k in range(3,6): A(dmaA0(k))
    A(f'v_lshrrev_b32 v{t0}, 1, v{G}')
    A(f'v_lshlrev_b32 v{t0}, 10, v{t0}')
    A(f'v_and_b32 v{t1}, 1, v{G}')
    A(f'v_lshrrev_b32 v{t2}, 2, v{I}')
    A(f'v_lshl_add_u32 v{t2}, v{t1}, 2, v{t2}')
    A(f'v_lshl_add_u32 v{t0}, v{t2}, 7, v{t0}')
    A(f'v_and_b32 v{t3}, 3, v{I}')
    A(f'v_lshl_add_u32 v{t0}, v{t3}, 3, v{t0}')
    A(f'v_add_u32 v{t0}, s25, v{t0}')
    A(f'v_lshrrev_b32 v{t2}, 1, v{t2}')
    A(f'v_lshlrev_b32 v{t2}, 5, v{t2}')
    for tt in range(4):
        A(f'v_xor_b32 v{10+tt}, {32*tt}, v{t2}')
        A(f'v_add_u32 v{10+tt}, v{t0}, v{10+tt}')
        A(f'v_add_u32 v{14+tt}, 0x10000, v{10+tt}')
    A(f'v_lshrrev_b32 v{t0}, 2, v1')
    A(f'v_lshlrev_b32 v{t2}, 6, v{t0}')
    A(f'v_lshl_add_u32 v{t2}, v{t3}, 3, v{t2}')
    A(f'v_add_u32 v{t2}, {K3_A0}, v{t2}')
    A(f'v_lshlrev_b32 v{t1}, 5, v{t1}')
    A(f'v_add_u32 v6, v{t2}, v{t1}')
    A(f'v_xor_b32 v{t1}, 32, v{t1}')
    A(f'v_add_u32 v7, v{t2}, v{t1}')
    A('v_add_u32 v18, 36864, v6')
    A('v_add_u32 v19, 36864, v7')
    A(f'v_mul_u32_u24 v20, 96, v{t0}')
    A(f'v_lshl_add_u32 v20, v{t3}, 3, v20')
    A(f'v_add_u32 v20, {K3_A1}, v20')
    A(f'v_lshlrev_b32 v21, 4, v{G}')
    A(f'v_add_u32 v21, {K3_CSL}, v21')
    A('v_lshl_add_u32 v96, v2, 2, v3')
    A(f'v_add_u32 v96, {SJ}, v96')
    A(f'v_add_u32 v23, {K3_CSL}, v23')
    A('v_mov_b32 v22, 0')
    srd(A,16,4,SZ_H,WS['HF'])
    srd(A,48,4,8192,WS['STAT2'])
    AC=[S0,S1,S0]; NT=[4,3,2]; J0=[0,4,7]
    def breg(k,tt):
        return (f'a[{16*k+4*tt}:{16*k+4*tt+3}]', 'a', 16*k+4*tt) if k<16 else (f'v[{BX+16*(k-16)+4*tt}:{BX+16*(k-16)+4*tt+3}]','v',BX+16*(k-16)+4*tt)
    def rdB(ks):
        sl=ks%5; L=[]
        for tt in range(4):
            _,c,b=breg(ks,tt); ar=(10 if sl<4 else 14)+tt; o=(sl%4)*16384
            L.append(f'ds_read_b64_tr_b16 {c}[{b}:{b+1}], v{ar} offset:{o}')
            L.append(f'ds_read_b64_tr_b16 {c}[{b+2}:{b+3}], v{ar} offset:{o+2048}')
        return L
    def rdA(p,k):
        L=[]
        for j in range(NT[p]):
            a=AF+16*(k%3)+4*j
            if p==0:
                ar=(6 if k<9 else 18)+(j&1); o=(k%9)*4096+(j>>1)*2048; hs=1024
            elif p==1:
                ar=20; o=LOC[k]*3072+j*32; hs=1536
            else:
                ar=6+j; o=k*2048; hs=1024
            L.append(f'ds_read_b64_tr_b16 v[{a}:{a+1}], v{ar} offset:{o}')
            L.append(f'ds_read_b64_tr_b16 v[{a+2}:{a+3}], v{ar} offset:{o+hs}')
        return L
    def mm(p,k):
        L=[]
        for j in range(NT[p]):
            for tt in range(4):
                d=AC[p]+16*j+4*tt; a=AF+16*(k%3)+4*j
                L.append(f'v_mfma_f32_16x16x32_bf16 v[{d}:{d+3}], v[{a}:{a+3}], {breg(k,tt)[0]}, {f"v[{d}:{d+3}]" if k else "0"}')
        return L
    stamp(A,1)
    A(f's_waitcnt vmcnt({vm.after("cs")})')
    A('v_cmp_gt_u32 vcc, 144, v0')
    A('s_and_saveexec_b64 s[58:59], vcc')
    A('ds_write_b32 v23, v94')
    A('ds_write_b32 v23, v95 offset:576')
    A('s_mov_b64 exec, s[58:59]')
    A('s_barrier')
    stamp(A,2)
    for x in rdB(0)+rdA(0,0): A(x)
    SX=100
    for c in range(9): A(f'ds_read_b32 v{SX+c}, v96 offset:{c*1024}')
    for x in rdB(1)+rdA(0,1): A(x)
    for x in dmaB(3): A(x)
    for k in range(6,9): A(dmaA0(k))
    for x in dmaB(4): A(x)
    a1s={7:[0],8:[1],9:[2],10:[3],11:[4],12:[5,6],13:[7,8,9,10,11],14:[12,13,14],15:[15,16,17]}
    for i in range(18):
        fill=[]
        w=[]
        if i+2<=17:
            need=[vm.after(f'b{i+2}')]
            bar=((i+2)%3==0) or i==14
            if (i+2)%3==0: need.append(vm.after(f'a{i+4}'))
            if os.environ.get('DBG3') and i in (9,10,11): stamp(A,7+3*(i-9))
            if os.environ.get('DBG3') and i in (9,10,11):
                A(f's_waitcnt vmcnt({min(need)})'); stamp(A,8+3*(i-9))
            A(f's_waitcnt vmcnt({min(need)}) lgkmcnt({15 if not (i in (13,14)) else 15})')
            if bar: A('s_barrier')
            if os.environ.get('DBG3') and i in (9,10,11): stamp(A,9+3*(i-9))
            fill+=rdB(i+2)+rdA(0,i+2)
        elif i==16: A('s_waitcnt lgkmcnt(15)')
        else: A('s_waitcnt lgkmcnt(0)')
        if i+5<=17: fill+=dmaB(i+5)
        if i+9<=17: fill.append(dmaA0(i+9))
        for k in a1s.get(i,[]): fill.append(dma1(k))
        if i==0:
            B2=Asm()
            for c in range(9):
                B2(f'v_lshrrev_b32 v{SX+9+c}, 16, v{SX+c}')
                B2(f'v_and_b32 v{SX+c}, 0xffff, v{SX+c}')
            row_stat(B2,SX,120)
            fill+=[l.strip() for l in B2.lines]
        if i==1:
            B2=Asm(); row_stat(B2,SX+9,124)
            B2('v_mov_b32 v121, v124')
            B2('s_lshl_b32 s38, s36, 2')
            fill+=[l.strip() for l in B2.lines]
            fill.append('s_mov_b64 exec, 1\nbuffer_store_dwordx2 v[120:121], v22, s[48:51], s38 offen sc1\ns_mov_b64 exec, -1'); vm.add('ss')
        if i==16:
            fill.append('v_and_b32 v23, 15, v1\nv_lshlrev_b32 v23, 2, v23\ns_lshl_b32 s38, s20, 10\ns_lshl_b32 s37, s22, 8\ns_add_u32 s38, s38, s37')
            for tt in range(4): fill.append(f'buffer_load_dword v{24+2*tt}, v23, s[48:51], s38 offen offset:{64*tt} sc1')
        interleave(A,mm(0,i),fill)
    stamp(A,3)
    A('s_mov_b32 s39, 0')
    A('K3_POLL:')
    A('s_waitcnt vmcnt(0)')
    A('v_min_u32 v25, v24, v26')
    A('v_min_u32 v27, v28, v30')
    A('v_min_u32 v25, v25, v27')
    A('v_cmp_eq_u32 vcc, 0, v25')
    A('s_nop 4')
    A('s_cbranch_vccz K3_HAVE')
    for tt in range(4):
        A(f'buffer_load_dword v{24+2*tt}, v23, s[48:51], s38 offen offset:{64*tt} sc1')
    A('s_add_u32 s39, s39, 1')
    A('s_cmp_lt_u32 s39, 4096')
    A('s_cbranch_scc1 K3_POLL')
    A('s_lshl_b32 s36, s20, 2')
    A('s_add_u32 s36, s36, s22')
    A('s_mul_i32 s36, s36, 73728')
    A('s_mov_b32 s39, 0')
    A('v_lshlrev_b32 v23, 7, v1')
    A('v_and_b32 v0, 15, v1')
    A('K3_FB:')
    A('s_lshl_b32 s38, s39, 1')
    A('s_add_u32 s37, s36, s38')
    for c in range(9):
        A(f's_add_u32 s38, s37, {c*8192}')
        A(f'buffer_load_ushort v{SX+c}, v23, s[40:43], s38 offen')
    A('s_waitcnt vmcnt(0)')
    row_stat(A,SX,120)
    A('s_and_b32 s30, s39, 15')
    A('v_cmp_eq_u32 vcc, s30, v0')
    A('s_lshr_b32 s30, s39, 4')
    for tt in range(4):
        A(f's_cmp_lg_u32 s30, {tt}')
        A(f's_cbranch_scc1 K3_FBS{tt}')
        A(f'v_cndmask_b32 v{24+2*tt}, v{24+2*tt}, v120, vcc')
        A(f'K3_FBS{tt}:')
    A('s_add_u32 s39, s39, 1')
    A('s_cmp_lt_u32 s39, 64')
    A('s_cbranch_scc1 K3_FB')
    A('K3_HAVE:')
    vm.q=[]
    A('s_barrier')
    for x in rdA(1,0)+rdA(1,1): A(x)
    for k0 in range(0,18,2): A(dma2(k0))
    A(f'v_subrev_u32 v6, {K3_A0}, v6')
    A(f'v_subrev_u32 v7, {K3_A0}, v7')
    A('s_lshl_b32 s36, s20, 4')
    A('s_lshl_b32 s37, s22, 2')
    A('s_add_u32 s36, s36, s37')
    A('s_lshl_b32 s36, s36, 10')
    A('s_lshr_b32 s37, s21, 1')
    A('s_mul_i32 s37, s37, 1179648')
    A('s_add_u32 s36, s36, s37')
    A('s_and_b32 s35, s21, 1')
    A('s_lshl_b32 s37, s35, 19')
    A('s_add_u32 s58, s36, s37')
    A('s_lshl_b32 s37, s35, 3')
    A('s_add_u32 s59, s36, s37')
    A('s_add_u32 s59, s59, 1048576')
    fin=[]
    for tt in range(4):
        r=24+2*tt
        fin+=[f'v_and_b32 v{r+1}, 0xffff0000, v{r}', f'v_lshlrev_b32 v{r}, 16, v{r}', f'v_rcp_f32 v{r+1}, v{r+1}',
              f'v_sub_f32 v{r}, 0, v{r}', f'v_mul_f32 v{r+1}, 0xbfb8aa3b, v{r+1}']
    def csb_rd(j):
        c=CB if j%2==0 else 8
        return [f'ds_read_b128 v[{c}:{c+3}], v21 offset:{j*64}', f'ds_read_b128 v[{c+4}:{c+7}], v21 offset:{j*64+576}']
    PAIR={1:0,3:1,5:2,8:3}
    def epi(p,jj):
        j=J0[p]+jj; L=[]; c=CB if j%2==0 else 8
        for hh in range(2):
            d0=AC[p]+16*jj+8*hh; TT=T+8*hh
            for t in range(2):
                tt=2*hh+t
                for r in range(4): L.append(f'v_fmac_f32 v{d0+4*t+r}, v{c+r}, v{24+2*tt}')
            for t in range(2):
                tt=2*hh+t
                for r in range(4): L.append(f'v_fma_f32 v{d0+4*t+r}, v{d0+4*t+r}, v{25+2*tt}, v{c+4+r}')
            for r in range(8): L.append(f'v_exp_f32 v{TT+r}, v{d0+r}')
            for r in range(8): L.append(f'v_add_f32 v{TT+r}, 1.0, v{TT+r}')
            for r in range(8): L.append(f'v_rcp_f32 v{TT+r}, v{TT+r}')
            for r in range(8): L.append(f'v_mul_f32 v{d0+r}, v{d0+r}, v{TT+r}')
            for t in range(2):
                d=d0+4*t; o = d-16+2 if j in PAIR else d
                L.append(f'v_cvt_pk_bf16_f32 v{o}, v{d}, v{d+1}')
                L.append(f'v_cvt_pk_bf16_f32 v{o+1}, v{d+2}, v{d+3}')
            for t in range(2):
                d=d0+4*t; tt=2*hh+t
                if j in PAIR:
                    L.append((f's_add_u32 s50, s58, {PAIR[j]*131072}\n' if tt==0 else '')+f'buffer_store_dwordx4 v[{d-16}:{d-13}], v3, s[16:19], s50 offen offset:{tt*1024} {POL["H"]}')
                    vm.add('h')
                elif j==6:
                    L.append(f'buffer_store_dwordx2 v[{d}:{d+1}], v3, s[16:19], s59 offen offset:{tt*1024} {POL["H"]}')
                    vm.add('h')
        return L
    for p in (1,2):
        n=NT[p-1]
        slots={k:[] for k in range(18)}
        k0=2 if p==1 else 0
        per=(18-k0)//n
        pre={k:[] for k in range(18)}
        for jj in range(n):
            ks0=k0+jj*per
            if ks0>=2: pre[ks0-2]+=csb_rd(J0[p-1]+jj)
            L=epi(p-1,jj); m=len(L)
            for c in range(per):
                slots[ks0+c]+=L[c*m//per:(c+1)*m//per]
        if p==1:
            slots[0]+=fin
            pre[16]+=csb_rd(J0[1])
        else:
            pre[16]+=csb_rd(7)
        nprev=2*NT[p]
        for k in range(18):
            A(f's_waitcnt lgkmcnt({nprev})')
            fill=list(pre[k])
            nprev=len(pre[k])
            if k+2<18:
                r=rdA(p,k+2); fill+=r; nprev+=len(r)
            elif p==1 and k==16:
                A('s_waitcnt vmcnt(4)')
                A('s_barrier')
                r=rdA(2,0); fill+=r; nprev+=len(r)
            elif p==1 and k==17:
                r=rdA(2,1); fill+=r; nprev+=len(r)
            fill+=slots[k]
            interleave(A,mm(p,k),fill)
    stamp(A,4)
    for x in csb_rd(8): A(x)
    A('s_waitcnt lgkmcnt(2)')
    for x in epi(2,0): A(x)
    A('s_waitcnt lgkmcnt(0)')
    for x in epi(2,1): A(x)
    stamp(A,5)
    if STAMP: A('s_waitcnt vmcnt(0)')
    stamp(A,6)
    if STAMP: A('v_lshlrev_b32 v0, 6, v2')
    stamp_out(A,16 if os.environ.get('DBG3') else 7,2)
    A('K3_END:')
    A('s_endpgm')
    return A.text(), kd('k3_kernel',248,agpr=256)

K4_LDS=163840
def gen_k4():
    A=Asm()
    P=4; NKS=18
    A('k4_kernel:')
    A('s_cmp_ge_u32 s2, 256')
    A('s_cbranch_scc1 K4_END')
    stamp(A,0)
    A(f's_load_dwordx2 s[4:5], s[0:1], {KA["ws"]}')
    A(f's_load_dwordx2 s[6:7], s[0:1], {KA["out"]}')
    A('s_and_b32 s20, s2, 7')
    A('s_lshl_b32 s20, s20, 2')
    A('s_bfe_u32 s21, s2, 0x20003')
    A('s_add_u32 s20, s20, s21')
    A('s_lshr_b32 s21, s2, 5')
    A('s_mul_i32 s23, s21, 9')
    A('s_lshr_b32 s23, s23, 1')
    A('v_and_b32 v1, 63, v0')
    A('v_lshrrev_b32 v2, 6, v0')
    A('v_readfirstlane_b32 s22, v2')
    A('v_lshlrev_b32 v3, 4, v1')
    A('s_mul_i32 s24, s22, 663552')
    A('s_lshl_b32 s25, s23, 10')
    A('s_add_u32 s40, s24, s25')
    A('s_mul_i32 s24, s22, 2359296')
    A('s_lshl_b32 s25, s20, 12')
    A('s_add_u32 s41, s24, s25')
    A('v_add_u32 v31, 4096, v3')
    A('s_and_b32 s30, s21, 1')
    A('s_cmp_eq_u32 s30, 0')
    A('s_cselect_b32 s88, -1, 0xff00ff00')
    A('s_cselect_b32 s90, 0x00ff00ff, -1')
    A('s_mov_b32 s89, s88')
    A('s_mov_b32 s91, s90')
    for p in range(4):
        for j in (0,4):
            for r in range(4): A(f'v_mov_b32 v{112+36*p+4*j+r}, 0')
    A('s_waitcnt lgkmcnt(0)')
    srd(A,8,4,SZ_W,WS['W2F'])
    srd(A,12,4,SZ_H,WS['HF'])
    ACC=32; FR=112
    def loads(p):
        L=[]
        for tt in range(4):
            r=FR+36*p+20+4*tt
            L.append(f'buffer_load_dwordx4 v[{r}:{r+3}], v3, s[12:15], s41 offen offset:{tt*1024}')
        for j in range(5):
            r=FR+36*p+4*j
            pre = 's_mov_b64 exec, s[88:89]\n' if j==0 else ('s_mov_b64 exec, s[90:91]\n' if j==4 else '')
            post = '\ns_mov_b64 exec, -1' if j in (0,4) else ''
            L.append(pre+f'buffer_load_dwordx4 v[{r}:{r+3}], v{3 if j<4 else 31}, s[8:11], s40 offen offset:{(j&3)*1024}'+post)
        L.append('s_add_u32 s40, s40, 36864\ns_add_u32 s41, s41, 131072')
        return L
    for p in range(P):
        for x in loads(p): A(x)
    srd(A,16,4,SZ_XT,WS['X1T'])
    srd(A,52,4,3456*4,WS['MOD'])
    srd(A,56,6,SZ_XT)
    A('v_and_b32 v4, 15, v1')
    A('v_lshrrev_b32 v5, 4, v1')
    A('s_lshr_b32 s42, s22, 1')
    A('s_and_b32 s43, s22, 1')
    A('s_lshl_b32 s43, s43, 1')
    A('s_add_u32 s44, s23, s43')
    A('v_lshlrev_b32 v6, 9, v5')
    A('v_lshl_add_u32 v6, v4, 1, v6')
    A('s_mul_i32 s27, s20, 73728')
    A('s_lshl_b32 s28, s42, 5')
    A('s_add_u32 s27, s27, s28')
    A('s_lshl_b32 s28, s44, 11')
    A('s_add_u32 s27, s27, s28')
    A('v_lshlrev_b32 v7, 4, v5')
    A('s_lshl_b32 s29, s44, 6')
    A('s_add_u32 s29, s29, 11520')
    stamp(A,1)
    def mf(p,first):
        L=[]
        for j in range(5):
            for tt in range(4):
                d=ACC+16*j+4*tt; a=FR+36*p+4*j; b=FR+36*p+20+4*tt
                L.append(f'v_mfma_f32_16x16x32_bf16 v[{d}:{d+3}], v[{a}:{a+3}], v[{b}:{b+3}], {"0" if first else f"v[{d}:{d+3}]"}')
        return L
    NE=15
    for k in range(NKS):
        p=k%P
        nxt=min(NKS-1,k+P-1)-k
        extra = NE if k>NKS-P else 0
        A(f's_waitcnt vmcnt({9*nxt+extra})')
        for x in mf(p,k==0): A(x)
        if k+P<NKS:
            for x in loads(p): A(x)
        if k==NKS-P:
            for j in range(3):
                A(f's_add_u32 s30, s27, {j*2048}')
                for r in range(4):
                    A(f'buffer_load_ushort v{8+4*j+r}, v6, s[16:19], s30 offen offset:{r*128}')
                A(f'buffer_load_dwordx4 v[{20+4*j}:{23+4*j}], v7, s[52:55], s29 offen offset:{j*64}')
    stamp(A,2)
    A('v_mul_u32_u24 v112, 20480, v2')
    A('v_add_u32 v112, v112, v3')
    for tt in range(4):
        for j in range(5):
            d=ACC+16*j+4*tt
            A(f'ds_write_b128 v112, v[{d}:{d+3}] offset:{(tt*5+j)*1024}')
    A('s_mul_i32 s30, s42, 5120')
    A('s_lshl_b32 s31, s43, 10')
    A('s_add_u32 s30, s30, s31')
    A('v_add_u32 v113, s30, v3')
    A('v_add_u32 v114, 61440, v113')
    A('v_add_u32 v115, 122880, v113')
    A('s_waitcnt lgkmcnt(0)')
    A('s_barrier')
    R=128
    for j in range(3):
        for w in range(8):
            d=R+32*j+4*w
            A(f'ds_read_b128 v[{d}:{d+3}], v{113+w//3} offset:{(w%3)*20480+j*1024}')
    A('s_lshl_b32 s27, s20, 6')
    A('s_lshl_b32 s28, s42, 4')
    A('s_add_u32 s27, s27, s28')
    A('v_add_u32 v116, s27, v4')
    A('v_mul_u32_u24 v116, 1152, v116')
    A('v_lshl_add_u32 v116, v5, 3, v116')
    A('s_lshl_b32 s28, s44, 5')
    A('s_and_b32 s30, s21, 1')
    A('s_cmp_eq_u32 s30, 0')
    A('s_cselect_b32 s84, -1, 0')
    A('s_cselect_b32 s87, 0, -1')
    A('s_mov_b32 s85, -1')
    A('s_mov_b32 s86, -1')
    A('s_cmp_eq_u32 s43, 0')
    A('s_cselect_b32 s84, s84, 0')
    A('s_cselect_b32 s85, s85, 0')
    A('s_cselect_b32 s87, -1, s87')
    A('s_waitcnt vmcnt(0)')
    for j in range(3):
        A(f's_waitcnt lgkmcnt({min(15,8*(2-j))})')
        d=R+32*j
        for st in (16,8,4):
            for o in range(0,st,2):
                A(f'v_pk_add_f32 v[{d+o}:{d+o+1}], v[{d+o}:{d+o+1}], v[{d+o+st}:{d+o+st+1}]')
        for r in range(4): A(f'v_mul_f32 v{d+r}, 0xbf317218, v{d+r}')
        for h in range(2): A(f'v_cvt_pk_bf16_f32 v{d+4+h}, v{d+2*h}, v{d+2*h+1}')
        for h in range(2): unpack(A,d+2*h,d+2*h+1,d+4+h)
        for h in range(2): A(f'v_pk_mul_f32 v[{d+2*h}:{d+2*h+1}], v[{d+2*h}:{d+2*h+1}], v[{20+4*j+2*h}:{21+4*j+2*h}]')
        for h in range(2): A(f'v_cvt_pk_bf16_f32 v{d+4+h}, v{d+2*h}, v{d+2*h+1}')
        for h in range(2): unpack(A,d+2*h,d+2*h+1,d+4+h)
        for r in range(4): A(f'v_lshlrev_b32 v{8+4*j+r}, 16, v{8+4*j+r}')
        for h in range(2): A(f'v_pk_add_f32 v[{d+2*h}:{d+2*h+1}], v[{d+2*h}:{d+2*h+1}], v[{8+4*j+2*h}:{9+4*j+2*h}]')
        for h in range(2): A(f'v_cvt_pk_bf16_f32 v{d+4+h}, v{d+2*h}, v{d+2*h+1}')
        if j==0:
            A('s_mov_b64 exec, s[84:85]')
            A('s_cbranch_execz K4_SK0')
        if j==2: A('s_mov_b64 exec, s[86:87]')
        A(f'buffer_store_dwordx2 v[{d+4}:{d+5}], v116, s[56:59], s28 offen offset:{j*32}')
        if j==0: A('K4_SK0:')
        if j in (0,2): A('s_mov_b64 exec, -1')
    stamp(A,3)
    if STAMP:
        A('s_waitcnt vmcnt(0)')
    stamp(A,4)
    if STAMP:
        A('s_cmp_ge_u32 s22, 4')
        A('s_cbranch_scc1 K4_END')
    stamp_out(A,5,3)
    A('K4_END:')
    A('s_endpgm')
    return A.text(), kd('k4_kernel',256)

def assemble(kernels, fn):
    hdr=open('cdna_kernels/'+NAME+'.s.ref').read().split('\n')
    out=[l for l in hdr if l.startswith(';') and '@launch' not in l and 'Override launch' not in l and 'grid=ceil' not in l]
    for k in kernels:
        out.append(f'; @launch kernel={k[0]} grid=({k[1]},1,1) block=({k[2]},1,1) lds={k[3]}')
    out.append('.amdgcn_target "amdgcn-amd-amdhsa--gfx950"')
    out.append('.text')
    seen=set()
    for k in kernels:
        if k[0] in seen: continue
        seen.add(k[0])
        out.append(f'.globl {k[0]}\n.p2align 8\n.type {k[0]},@function')
        out.append(k[4])
    seen=set()
    for k in kernels:
        if k[0] in seen: continue
        seen.add(k[0])
        out.append(k[5])
    open(fn,'w').write('\n'.join(out))

if __name__=='__main__':
    t1,d1=gen_k1(); t2,d2=gen_k2(); t3,d3=gen_k3(); t4,d4=gen_k4()
    ks=[('k1_kernel',K1_GRID,256,K1_LDS,t1,d1),('k2_kernel',K2_GRID,256,K2_LDS,t2,d2),
        ('k3_kernel',K3_GRID,256,K3_LDS,t3,d3),('k4_kernel',256,512,K4_LDS,t4,d4)]
    nk=int(os.environ.get('NK','4'))
    assemble(ks[:nk], sys.argv[1] if len(sys.argv)>1 else 'k.s')
```

```python
import sys,os
from asmlib import Asm

NAME='adaLN_cond__ssm_conv_s4d__dense_activation_silu__prompt'
KA=dict(x=0,lar=8,aim=16,cr=24,ci=32,logdt=40,dskip=48,w1=64,w2=72,c=80,wmod=88,out=96,dbg=104,ws=112)
WS=dict(MOD=0x0, CS=0x10000, BIAS=0x20000, STAT=0x30000, STAT2=0x38000, X1S=0x400000, XT=0x100000, XNT=0x400000, KF=0x700000, X1T=0xC00000,
        W1F=0x1000000, W2F=0x1800000, HF=0x2000000)
SZ_XT=576*2048*2
KF_CS=4160
SZ_KF=576*KF_CS
SZ_W=576*4608*2
SZ_H=2048*4608*2
LOG2E=0x3fb8aa3b
INV2PI=0x3e22f983

def srd(A, d, base, size, off=0):
    if off:
        A(f's_add_u32 s{d}, s{base}, {off:#x}')
        A(f's_addc_u32 s{d+1}, s{base+1}, 0')
    else:
        A(f's_mov_b32 s{d}, s{base}')
        A(f's_mov_b32 s{d+1}, s{base+1}')
    A(f's_mov_b32 s{d+2}, {size:#x}')
    A(f's_mov_b32 s{d+3}, 0x00020000')

def kd(name, vgpr, sgpr=102, agpr=0):
    acc=(vgpr+3)//4*4
    return f'''.section .rodata,"a"
.p2align 6
.amdhsa_kernel {name}
  .amdhsa_next_free_vgpr {acc+agpr if agpr else vgpr}
  .amdhsa_next_free_sgpr {sgpr}
  .amdhsa_accum_offset {acc}
  .amdhsa_group_segment_fixed_size 0
  .amdhsa_kernarg_size 120
  .amdhsa_user_sgpr_count 2
  .amdhsa_user_sgpr_kernarg_segment_ptr 1
  .amdhsa_system_sgpr_workgroup_id_x 1
.end_amdhsa_kernel
'''

STAMP=bool(os.environ.get('STAMP'))
POL=dict(XT='',KF='',W2F='sc1',X1='',W1F='sc1',H='sc1')
for kv in os.environ.get('POL','').split(','):
    if '=' in kv:
        k,v=kv.split('='); POL[k]=v.replace('+',' ')
def stamp(A,i):
    if STAMP:
        A(f's_mem{"real" if os.environ.get("STAMP")=="2" else ""}time s[{60+2*i}:{61+2*i}]')
def stamp_out(A,n,slot):
    if not STAMP: return
    A('s_waitcnt lgkmcnt(0)')
    srd(A,92,4,1<<22,0x8000000+slot*(1<<22))
    A('v_readfirstlane_b32 s96, v0')
    A('s_lshr_b32 s96, s96, 6')
    A('s_lshl_b32 s97, s2, 2')
    A('s_add_u32 s96, s96, s97')
    A('s_lshl_b32 s96, s96, 6')
    A('v_mov_b32 v1, 0')
    for i in range(n):
        A(f'v_mov_b32 v2, s{60+2*i}')
        A(f'buffer_store_dword v2, v1, s[92:95], s96 offen offset:{4*i}')

def unpack(A, dlo, dhi, src):
    A(f'v_lshlrev_b32 v{dlo}, 16, v{src}')
    A(f'v_and_b32 v{dhi}, 0xffff0000, v{src}')

K1_LN=64; K1_MOD=54; K1_W2=144; K1_KG=576
K1_GRID=K1_LN+K1_MOD+K1_KG
RS=1184
K1_LDS=32*RS

import os
SKIP=os.environ.get('SKIP','').split(',')
def gen_k1():
    A=Asm()
    A('k1_kernel:')
    A(f's_load_dwordx2 s[4:5], s[0:1], {KA["ws"]}')
    A('s_mov_b32 s3, s2')
    A(f's_cmp_lt_u32 s3, {K1_KG}')
    A('s_cbranch_scc1 K1_KG')
    A(f's_sub_u32 s3, s3, {K1_KG}')
    A(f's_cmp_lt_u32 s3, {K1_LN}')
    A('s_cbranch_scc1 K1_LN')
    A(f's_sub_u32 s3, s3, {K1_LN}')
    A(f's_cmp_lt_u32 s3, {K1_MOD}')
    A('s_cbranch_scc1 K1_MOD')
    A('s_endpgm')

    def load_tile(delta=False):
        A('v_lshrrev_b32 v1, 3, v0')
        A('v_and_b32 v2, 7, v0')
        A('v_add_u32 v3, s20, v1')
        if delta:
            A('v_lshrrev_b32 v4, 4, v1')
            A('v_mul_u32_u24 v4, s21, v4')
            A('v_add_u32 v3, v3, v4')
        A('v_mul_u32_u24 v3, 1152, v3')
        A('v_lshl_add_u32 v3, v2, 4, v3')
        for c in range(9):
            A(f'buffer_load_dwordx4 v[{8+4*c}:{11+4*c}], v3, s[8:11], 0 offen offset:{c*128}')
        A(f'v_mul_u32_u24 v4, {RS}, v1')
        A('v_lshl_add_u32 v4, v2, 4, v4')
    def write_tile(base):
        for c in range(9):
            A(f'ds_write_b128 v4, v[{base+4*c}:{base+3+4*c}] offset:{c*128}')

    A('K1_LN:')
    if 'K1_LN' in SKIP: A('s_endpgm')
    stamp(A,0)
    A('s_setprio 3')
    A(f's_load_dwordx2 s[6:7], s[0:1], {KA["x"]}')
    A('s_lshl_b32 s20, s3, 5')
    A('s_waitcnt lgkmcnt(0)')
    srd(A,8,6,SZ_XT)
    load_tile()
    srd(A,12,4,SZ_XT,WS['XT'])
    srd(A,16,4,0x8000+8192,WS['STAT'])
    A('v_and_b32 v116, 63, v0')
    A('v_lshrrev_b32 v117, 6, v0')
    A('v_lshrrev_b32 v118, 4, v116')
    A('v_and_b32 v119, 15, v116')
    A('v_lshrrev_b32 v120, 2, v119')
    A('v_lshl_add_u32 v120, v118, 3, v120')
    A(f'v_mul_u32_u24 v5, {RS}, v120')
    A('v_and_b32 v120, 3, v119')
    A('v_lshl_add_u32 v5, v120, 3, v5')
    A('v_mul_u32_u24 v120, 288, v117')
    A('v_add_u32 v5, v5, v120')
    A('v_mul_u32_u24 v6, 144, v117')
    A('v_add_u32 v6, v6, v119')
    A('v_lshlrev_b32 v6, 12, v6')
    A('v_lshl_add_u32 v6, v118, 4, v6')
    A('s_lshl_b32 s21, s20, 1')
    A('v_add_u32 v6, s21, v6')
    A('s_waitcnt vmcnt(0)')
    stamp(A,1)
    write_tile(8)
    U=44
    for i in range(36): unpack(A,U+2*i,U+2*i+1,8+i)
    A('s_waitcnt lgkmcnt(0)')
    A('s_barrier')
    def tr_tile(rows_h):
        for q in range(9):
            A(f'ds_read_b64_tr_b16 v[{8+4*q}:{9+4*q}], v5 offset:{q*32}')
            A(f'ds_read_b64_tr_b16 v[{10+4*q}:{11+4*q}], v5 offset:{q*32+rows_h*RS}')
    tr_tile(4)
    A(f'v_pk_add_f32 v[116:117], v[{U}:{U+1}], v[{U+2}:{U+3}]')
    A(f'v_pk_add_f32 v[118:119], v[{U+4}:{U+5}], v[{U+6}:{U+7}]')
    for i in range(4,36,2):
        A(f'v_pk_add_f32 v[116:117], v[116:117], v[{U+2*i}:{U+2*i+1}]')
        A(f'v_pk_add_f32 v[118:119], v[118:119], v[{U+2*i+2}:{U+2*i+3}]')
    A('v_pk_add_f32 v[116:117], v[116:117], v[118:119]')
    A('v_add_f32 v116, v116, v117')
    A('s_waitcnt lgkmcnt(0)')
    for q in range(9):
        A(f's_mov_b32 s22, {q*65536}')
        A(f'buffer_store_dwordx4 v[{8+4*q}:{11+4*q}], v6, s[12:15], s22 offen {POL["XT"]}')
    def red8(r):
        A(f'v_add_f32_dpp v{r}, v{r}, v{r} quad_perm:[1,0,3,2] row_mask:0xf bank_mask:0xf')
        A(f'v_add_f32_dpp v{r}, v{r}, v{r} quad_perm:[2,3,0,1] row_mask:0xf bank_mask:0xf')
        A(f'v_add_f32_dpp v{r}, v{r}, v{r} row_half_mirror row_mask:0xf bank_mask:0xf')
    red8(116)
    A('v_mul_f32 v116, 0x3ae38e39, v116')
    A('v_sub_f32 v118, 0, v116')
    for i in range(0,36,2):
        A(f'v_pk_add_f32 v[124:125], v[{U+2*i}:{U+2*i+1}], v[118:119] op_sel_hi:[1,0]')
        A(f'v_pk_add_f32 v[126:127], v[{U+2*i+2}:{U+2*i+3}], v[118:119] op_sel_hi:[1,0]')
        if i==0:
            A('v_pk_mul_f32 v[120:121], v[124:125], v[124:125]')
            A('v_pk_mul_f32 v[122:123], v[126:127], v[126:127]')
        else:
            A('v_pk_fma_f32 v[120:121], v[124:125], v[124:125], v[120:121]')
            A('v_pk_fma_f32 v[122:123], v[126:127], v[126:127], v[122:123]')
    A('v_pk_add_f32 v[120:121], v[120:121], v[122:123]')
    A('v_add_f32 v120, v120, v121')
    red8(120)
    A('v_mul_f32 v120, 0x3ae38e39, v120')
    A('v_cvt_pk_bf16_f32 v120, v120, v120')
    A('v_lshlrev_b32 v120, 16, v120')
    A('v_add_f32 v120, 0x3727c5ac, v120')
    A('v_cvt_pk_bf16_f32 v120, v120, v120')
    A('v_lshlrev_b32 v120, 16, v120')
    A('v_sqrt_f32 v120, v120')
    A('v_cvt_pk_bf16_f32 v120, v116, v120')
    A('v_lshlrev_b32 v121, 2, v1')
    A('v_cmp_eq_u32 vcc, 0, v2')
    A('s_lshl_b32 s21, s20, 2')
    A('s_and_saveexec_b64 s[26:27], vcc')
    A('buffer_store_dword v120, v121, s[16:19], s21 offen')
    A('v_mov_b32 v122, 0')
    A('s_add_u32 s21, s21, 0x8000')
    A('buffer_store_dword v122, v121, s[16:19], s21 offen')
    if STAMP: A('s_mov_b64 exec, -1')
    stamp(A,2)
    if STAMP: A('s_waitcnt vmcnt(0)')
    stamp(A,3)
    stamp_out(A,4,0)
    A('s_endpgm')

    A('K1_MOD:')
    if 'K1_MOD' in SKIP: A('s_endpgm')
    stamp(A,0)
    A('s_setprio 3')
    A(f's_load_dwordx2 s[6:7], s[0:1], {KA["wmod"]}')
    A(f's_load_dwordx2 s[24:25], s[0:1], {KA["c"]}')
    A('s_mov_b32 s23, s3')
    A('s_lshl_b32 s23, s23, 7')
    A('s_waitcnt lgkmcnt(0)')
    srd(A,8,6,576*3456*2)
    srd(A,12,24,1152)
    srd(A,16,4,3456*4,WS['MOD'])
    A('v_lshrrev_b32 v1, 3, v0')
    A('v_and_b32 v2, 7, v0')
    A('v_lshlrev_b32 v3, 1, v1')
    for c in range(18):
        A(f'buffer_load_ushort v{80+c}, v3, s[12:15], 0 offen offset:{c*64}')
    A('v_mul_u32_u24 v4, 6912, v1')
    A('v_lshl_add_u32 v4, v2, 4, v4')
    A('v_add_u32 v4, s23, v4')
    for c in range(18):
        A(f's_mov_b32 s22, {c*32*6912}')
        A(f'buffer_load_dwordx4 v[{8+4*c}:{11+4*c}], v4, s[8:11], s22 offen')
    A('s_waitcnt vmcnt(18)')
    for c in range(18):
        r=80+c
        A(f'v_lshlrev_b32 v{r}, 16, v{r}')
        A(f'v_mul_f32 v100, 0xbfb8aa3b, v{r}')
        A('v_exp_f32 v100, v100')
        A('v_add_f32 v100, 1.0, v100')
        A('v_rcp_f32 v100, v100')
        A(f'v_mul_f32 v{r}, v{r}, v100')
        A(f'v_cvt_pk_bf16_f32 v{r}, v{r}, v{r}')
        A(f'v_lshlrev_b32 v{r}, 16, v{r}')
    for e in range(8): A(f'v_mov_b32 v{104+e}, 0')
    for c in range(18):
        A(f's_waitcnt vmcnt({17-c})')
        for e in range(4):
            unpack(A,100,101,8+4*c+e)
            A(f'v_fmac_f32 v{104+2*e}, v{80+c}, v100')
            A(f'v_fmac_f32 v{105+2*e}, v{80+c}, v101')
    stamp(A,1)
    A('v_lshlrev_b32 v5, 8, v1')
    A('v_lshl_add_u32 v5, v2, 5, v5')
    A('ds_write_b128 v5, v[104:107]')
    A('ds_write_b128 v5, v[108:111] offset:16')
    A('s_waitcnt lgkmcnt(0)')
    A('s_barrier')
    A('v_cmp_gt_u32 vcc, 64, v0')
    A('s_and_saveexec_b64 s[26:27], vcc')
    A('s_cbranch_execz K1_MOD_END')
    A('v_lshlrev_b32 v5, 2, v0')
    for r in range(32):
        A(f'ds_read_b32 v{8+r}, v5 offset:{r*256}')
    A('s_waitcnt lgkmcnt(0)')
    for r in range(16): A(f'v_add_f32 v{8+r}, v{8+r}, v{24+r}')
    for r in range(8): A(f'v_add_f32 v{8+r}, v{8+r}, v{16+r}')
    for r in range(4): A(f'v_add_f32 v{8+r}, v{8+r}, v{12+r}')
    for r in range(2): A(f'v_add_f32 v{8+r}, v{8+r}, v{10+r}')
    A('v_add_f32 v8, v8, v9')
    A('v_cvt_pk_bf16_f32 v8, v8, v8')
    A('v_lshlrev_b32 v8, 16, v8')
    A('s_lshl_b32 s23, s23, 1')
    A('buffer_store_dword v8, v5, s[16:19], s23 offen')
    A('K1_MOD_END:')
    if STAMP:
        A('s_mov_b64 exec, -1')
        stamp(A,2)
        A('s_waitcnt vmcnt(0)')
        stamp(A,3)
        stamp_out(A,4,0)
    A('s_endpgm')

    A('K1_KG:')
    if 'K1_KG' in SKIP: A('s_endpgm')
    stamp(A,0)
    A(f's_load_dwordx4 s[24:27], s[0:1], {KA["lar"]}')
    A(f's_load_dwordx4 s[28:31], s[0:1], {KA["cr"]}')
    A(f's_load_dwordx2 s[32:33], s[0:1], {KA["logdt"]}')
    A('s_mov_b32 s23, s3')
    A('s_lshl_b32 s22, s23, 1')
    A('s_and_b32 s22, s22, 0xfffffffc')
    A('v_and_b32 v1, 63, v0')
    A('v_lshrrev_b32 v2, 4, v0')
    A('v_lshlrev_b32 v3, 4, v2')
    A('s_lshl_b32 s44, s23, 8')
    A('s_waitcnt lgkmcnt(0)')
    A('s_load_dword s34, s[32:33], s22')
    srd(A,8,24,576*128*2)
    A('buffer_load_dwordx4 v[8:11], v3, s[8:11], s44 offen')
    srd(A,12,26,576*128*2)
    A('buffer_load_dwordx4 v[12:15], v3, s[12:15], s44 offen')
    srd(A,16,28,576*128*2)
    A('buffer_load_dwordx4 v[16:19], v3, s[16:19], s44 offen')
    srd(A,36,30,576*128*2)
    A('buffer_load_dwordx4 v[20:23], v3, s[36:39], s44 offen')
    srd(A,40,4,SZ_KF,WS['KF'])
    A('v_and_b32 v4, 15, v0')
    def p_row(tile, vi, vd, t):
        if tile==0:
            A(f'v_lshrrev_b32 v{t}, 3, v{vi}')
            A(f'v_and_b32 v{vd}, 7, v{vi}')
            A(f'v_lshl_add_u32 v{vd}, v{t}, 7, v{vd}')
        elif tile==1:
            A(f'v_lshrrev_b32 v{t}, 2, v{vi}')
            A(f'v_and_b32 v{vd}, 3, v{vi}')
            A(f'v_lshlrev_b32 v{vd}, 1, v{vd}')
            A(f'v_lshl_add_u32 v{vd}, v{t}, 7, v{vd}')
            A(f'v_add_u32 v{vd}, 256, v{vd}')
            A(f'v_lshrrev_b32 v{t}, 1, v{vi}')
            A(f'v_lshlrev_b32 v{t}, 7, v{t}')
            A(f'v_and_b32 v{t+1}, 1, v{vi}')
            A(f'v_lshl_add_u32 v{t}, v{t+1}, 2, v{t}')
            A(f'v_cmp_gt_u32 vcc, 8, v{vi}')
            A(f'v_cndmask_b32 v{vd}, v{t}, v{vd}, vcc')
        else:
            A(f'v_lshlrev_b32 v{vd}, 7, v{vi}')
            A(f'v_add_u32 v{vd}, 1024, v{vd}')
    for t in range(3):
        p_row(t,4,24+2*t,112)
        A(f'v_cvt_f32_u32 v{24+2*t}, v{24+2*t}')
    A('v_lshlrev_b32 v30, 3, v4')
    A('v_cvt_f32_u32 v30, v30')
    A('v_mov_b32 v110, 0x41600000')
    A('v_mov_b32 v111, 0')
    A('v_lshlrev_b32 v5, 3, v0')
    for e in range(8):
        A(f'v_add_u32 v{114+e}, {e}, v5')
        A(f'v_cvt_f32_u32 v{114+e}, v{114+e}')
    for e in range(0,8,2):
        A(f'v_cvt_pk_bf16_f32 v{114+e}, v{114+e}, v{115+e}')
        A(f'v_and_b32 v{115+e}, 0xffff0000, v{114+e}')
        A(f'v_lshlrev_b32 v{114+e}, 16, v{114+e}')
    for e in range(8):
        A(f'v_cvt_u32_f32 v{114+e}, v{114+e}')
        A(f'v_lshlrev_b32 v{114+e}, 1, v{114+e}')
    A('s_waitcnt lgkmcnt(0)')
    A('s_and_b32 s22, s23, 1')
    A('s_lshl_b32 s22, s22, 4')
    A('s_lshr_b32 s34, s34, s22')
    A('s_lshl_b32 s34, s34, 16')
    A(f'v_mov_b32 v112, {LOG2E:#x}')
    A('v_mul_f32 v113, s34, v112')
    A('v_exp_f32 v113, v113')
    A('v_cvt_pk_bf16_f32 v113, v113, v113')
    A('v_lshlrev_b32 v113, 16, v113')
    A('v_mul_f32 v108, 0xbfb8aa3b, v113')
    A(f'v_mul_f32 v109, {INV2PI:#x}, v113')
    stamp(A,1)
    A('s_waitcnt vmcnt(0)')
    stamp(A,2)
    for e in range(4):
        unpack(A,32+4*e,34+4*e,8+e)
        unpack(A,33+4*e,35+4*e,12+e)
        unpack(A,48+4*e,50+4*e,16+e)
        unpack(A,49+4*e,51+4*e,20+e)
    for n in range(8):
        A(f'v_mul_f32 v{32+2*n}, v112, v{32+2*n}')
        A(f'v_exp_f32 v{32+2*n}, v{32+2*n}')
    A('v_max3_f32 v6, |v48|, |v49|, |v50|')
    for n in range(51,63,2): A(f'v_max3_f32 v6, |v{n}|, |v{n+1}|, v6')
    A('v_max_f32 v6, |v63|, v6')
    for n in range(0,8,2):
        A(f'v_cvt_pk_bf16_f32 v{32+2*n}, v{32+2*n}, v{34+2*n}')
        A(f'v_and_b32 v{34+2*n}, 0xffff0000, v{32+2*n}')
        A(f'v_lshlrev_b32 v{32+2*n}, 16, v{32+2*n}')
    for q in range(4): A(f'v_readlane_b32 s{48+q}, v6, {16*q}')
    for n in range(8):
        A(f'v_pk_mul_f32 v[{32+2*n}:{33+2*n}], v[{32+2*n}:{33+2*n}], v[108:109]')
    A('s_max_u32 s48, s48, s49')
    A('s_max_u32 s50, s50, s51')
    A('s_max_u32 s48, s48, s50')
    A('s_lshr_b32 s48, s48, 23')
    A('s_max_u32 s48, s48, 13')
    A('s_min_u32 s48, s48, 254')
    A('s_sub_u32 s50, 267, s48')
    A('s_lshl_b32 s50, s50, 23')
    A('s_mov_b32 s51, s50')
    A('s_sub_u32 s49, s48, 153')
    for n in range(8):
        A(f'v_pk_mul_f32 v[{48+2*n}:{49+2*n}], v[{48+2*n}:{49+2*n}], s[50:51]')
    A('v_ldexp_f32 v113, v113, s49')
    for s in range(8):
        Z=32+2*s; C=48+2*s; r=s&3
        for k in range(3):
            A(f'v_pk_fma_f32 v[{64+2*k}:{65+2*k}], v[{Z}:{Z+1}], v[{24+2*k}:{25+2*k}], v[110:111] op_sel_hi:[1,0,1]')
        A(f'v_pk_mul_f32 v[70:71], v[{Z}:{Z+1}], v[30:31] op_sel_hi:[1,0]')
        for k in range(4): A(f'v_fract_f32 v{65+2*k}, v{65+2*k}')
        for k in range(4):
            A(f'v_exp_f32 v{64+2*k}, v{64+2*k}')
            A(f'v_cos_f32 v{72+2*k}, v{65+2*k}')
            A(f'v_sin_f32 v{73+2*k}, v{65+2*k}')
        for k in range(4):
            A(f'v_pk_mul_f32 v[{72+2*k}:{73+2*k}], v[{72+2*k}:{73+2*k}], v[{64+2*k}:{65+2*k}] op_sel_hi:[1,0]')
        for k in range(3):
            A(f'v_cvt_pk_f16_f32 v{80+4*k+r}, v{72+2*k}, v{73+2*k}')
        A(f'v_pk_mul_f32 v[64:65], v[78:79], v[{C}:{C+1}] op_sel_hi:[1,0] neg_hi:[1,0]')
        A(f'v_pk_fma_f32 v[64:65], v[78:79], v[{C}:{C+1}], v[64:65] op_sel:[1,1,0] op_sel_hi:[0,1,1] neg_lo:[1,0,0] neg_hi:[1,0,0]')
        A(f'v_cvt_pk_f16_f32 v{92+r}, v64, v65')
        if r==3:
            for k in range(3):
                c = '0' if s==3 else f'v[{96+4*k}:{99+4*k}]'
                A(f'v_mfma_f32_16x16x32_f16 v[{96+4*k}:{99+4*k}], v[{80+4*k}:{83+4*k}], v[92:95], {c}')
    stamp(A,3)
    A('v_lshrrev_b32 v5, 6, v0')
    A('v_mul_u32_u24 v5, 3072, v5')
    A('v_lshl_add_u32 v5, v1, 4, v5')
    A('v_readfirstlane_b32 s45, v0')
    A('s_lshr_b32 s45, s45, 6')
    A('v_lshrrev_b32 v6, 4, v1')
    A('v_lshlrev_b32 v6, 2, v6')
    for r in range(1,4): A(f'v_add_u32 v{32+r}, {r}, v6')
    A('v_mov_b32 v32, v6')
    for k in range(6):
        A(f'v_pk_mul_f32 v[{96+2*k}:{97+2*k}], v[{96+2*k}:{97+2*k}], v[112:113] op_sel:[0,1] op_sel_hi:[1,1]')
    for k in range(3):
        A(f'ds_write_b128 v5, v[{96+4*k}:{99+4*k}] offset:{k*1024}')
    for t in range(3):
        A(f's_cmp_lg_u32 s45, {t}')
        A(f's_cbranch_scc1 K1_KG_T{t}')
        for r in range(4): p_row(t,32+r,36+r,40)
        A(f'K1_KG_T{t}:')
    A('s_waitcnt lgkmcnt(0)')
    A('s_barrier')
    A('s_cmp_ge_u32 s45, 3')
    A('s_cbranch_scc1 K1_KG_SKIP')
    A('v_lshlrev_b32 v5, 4, v0')
    for w in range(4):
        A(f'ds_read_b128 v[{8+4*w}:{11+4*w}], v5 offset:{w*3072}')
    for r in range(4):
        A(f'v_lshl_add_u32 v{36+r}, v4, 3, v{36+r}')
        A(f'v_lshlrev_b32 v{36+r}, 1, v{36+r}')
    A('s_waitcnt lgkmcnt(0)')
    A('v_pk_add_f32 v[8:9], v[8:9], v[12:13]')
    A('v_pk_add_f32 v[10:11], v[10:11], v[14:15]')
    A('v_pk_add_f32 v[16:17], v[16:17], v[20:21]')
    A('v_pk_add_f32 v[18:19], v[18:19], v[22:23]')
    A('v_pk_add_f32 v[8:9], v[8:9], v[16:17]')
    A('v_pk_add_f32 v[10:11], v[10:11], v[18:19]')
    A('v_cvt_pk_bf16_f32 v8, v8, v9')
    A('v_cvt_pk_bf16_f32 v10, v10, v11')
    A('ds_write_b16 v36, v8 offset:12288')
    A('ds_write_b16_d16_hi v37, v8 offset:12288')
    A('ds_write_b16 v38, v10 offset:12288')
    A('ds_write_b16_d16_hi v39, v10 offset:12288')
    A('K1_KG_SKIP:')
    A('s_waitcnt lgkmcnt(0)')
    A('s_barrier')
    stamp(A,4)
    for e in range(8):
        A(f'ds_read_u16 v{24+e}, v{114+e} offset:12288')
    A('v_lshlrev_b32 v5, 4, v0')
    A(f's_mul_i32 s44, s23, {KF_CS}')
    A('v_mov_b32 v40, 0\nv_mov_b32 v41, 0\nv_mov_b32 v42, 0\nv_mov_b32 v43, 0')
    A('s_waitcnt lgkmcnt(0)')
    for e in range(4):
        A(f'v_lshl_or_b32 v{16+e}, v{25+2*e}, 16, v{24+2*e}')
    A(f'buffer_store_dwordx4 v[16:19], v5, s[40:43], s44 offen offset:32 {POL["KF"]}')
    A('v_cmp_gt_u32 vcc, 2, v0')
    A('s_and_saveexec_b64 s[56:57], vcc')
    A('s_cbranch_execz K1_KG_END')
    A('buffer_store_dwordx4 v[40:43], v5, s[40:43], s44 offen')
    A('K1_KG_END:')
    if STAMP:
        A('s_mov_b64 exec, -1')
        stamp(A,5)
        stamp_out(A,6,0)
    A('s_endpgm')
    return A.text(), kd('k1_kernel',128)

K2_W1=144; K2_CV=576
K2_GRID=K2_W1+K2_CV+K1_W2
CV_U=0
CV_P=4608
CV_E=4608
W1S=80
W1_TAB=576*W1S
K2_LDS=max(CV_E+33024, 32*RS, W1_TAB+3456)

def load_tile_g(A,delta=False):
    A('v_lshrrev_b32 v1, 3, v0')
    A('v_and_b32 v2, 7, v0')
    A('v_add_u32 v3, s20, v1')
    if delta:
        A('v_lshrrev_b32 v4, 4, v1')
        A('v_mul_u32_u24 v4, s21, v4')
        A('v_add_u32 v3, v3, v4')
    A('v_mul_u32_u24 v3, 1152, v3')
    A('v_lshl_add_u32 v3, v2, 4, v3')
    for c in range(9):
        A(f'buffer_load_dwordx4 v[{8+4*c}:{11+4*c}], v3, s[8:11], 0 offen offset:{c*128}')
    A(f'v_mul_u32_u24 v4, {RS}, v1')
    A('v_lshl_add_u32 v4, v2, 4, v4')
def write_tile_g(A,base):
    for c in range(9):
        A(f'ds_write_b128 v4, v[{base+4*c}:{base+3+4*c}] offset:{c*128}')
def tr_tile_g(A,rows_h):
    for q in range(9):
        A(f'ds_read_b64_tr_b16 v[{8+4*q}:{9+4*q}], v5 offset:{q*32}')
        A(f'ds_read_b64_tr_b16 v[{10+4*q}:{11+4*q}], v5 offset:{q*32+rows_h*RS}')

def gen_k2():
    A=Asm()
    A('k2_kernel:')
    A(f's_load_dwordx2 s[4:5], s[0:1], {KA["ws"]}')
    A('s_mov_b32 s3, s2')
    A(f's_cmp_lt_u32 s3, {K2_CV}')
    A('s_cbranch_scc1 K2_CV')
    A(f's_sub_u32 s3, s3, {K2_CV}')
    A(f's_cmp_lt_u32 s3, {K2_W1}')
    A('s_cbranch_scc1 K2_W1')
    A(f's_sub_u32 s3, s3, {K2_W1}')
    A(f's_cmp_lt_u32 s3, {K1_W2}')
    A('s_cbranch_scc1 K1_W2')
    A('s_endpgm')
    A('K2_CV:')
    if 'K2_CV' in SKIP: A('s_endpgm')
    stamp(A,0)
    A(f's_load_dwordx2 s[6:7], s[0:1], {KA["dskip"]}')
    A('s_mov_b32 s23, s3')
    A('s_lshl_b32 s22, s23, 1')
    A('s_and_b32 s22, s22, 0xfffffffc')
    A('s_lshl_b32 s24, s23, 2')
    A('s_add_u32 s25, s24, 2304')
    A('s_add_u32 s26, s24, 4608')
    A('s_add_u32 s27, s24, 9216')
    A('s_lshl_b32 s44, s23, 12')
    A(f's_mul_i32 s45, s23, {KF_CS}')
    A('v_lshlrev_b32 v1, 4, v0')
    A('v_lshlrev_b32 v2, 5, v0')
    A('v_and_b32 v20, 15, v0')
    A('v_bfe_u32 v21, v0, 4, 2')
    A('v_lshrrev_b32 v22, 6, v0')
    A('s_waitcnt lgkmcnt(0)')
    stamp(A,8)
    A('s_load_dword s34, s[6:7], s22')
    A('s_load_dword s35, s[4:5], s24')
    A('s_load_dword s36, s[4:5], s25')
    A('s_load_dword s37, s[4:5], s26')
    A('s_load_dword s33, s[4:5], s27')
    srd(A,16,4,SZ_KF,WS['KF'])
    WA=72; WB=80; OA=88; OB=96
    A(f'buffer_load_dwordx4 v[{WA}:{WA+3}], v1, s[16:19], s45 offen offset:16')
    A(f'buffer_load_dwordx4 v[{WA+4}:{WA+7}], v1, s[16:19], s45 offen offset:32')
    A(f'buffer_load_dwordx4 v[{WB}:{WB+3}], v1, s[16:19], s45 offen offset:20')
    A(f'buffer_load_dwordx4 v[{WB+4}:{WB+7}], v1, s[16:19], s45 offen offset:36')
    srd(A,8,4,SZ_XT,WS['XT'])
    A('buffer_load_dwordx4 v[12:15], v1, s[8:11], s44 offen')
    srd(A,12,4,8192,WS['STAT'])
    A('buffer_load_dwordx4 v[40:43], v2, s[12:15], 0 offen')
    A('buffer_load_dwordx4 v[44:47], v2, s[12:15], 0 offen offset:16')
    srd(A,40,4,SZ_XT,WS['X1T'])
    stamp(A,9)
    A('v_mov_b32 v16, 0\nv_mov_b32 v17, 0\nv_mov_b32 v18, 0\nv_mov_b32 v19, 0')
    A(f'v_add_u32 v3, {CV_U+4096}, v1')
    A(f'v_add_u32 v23, {CV_E-512}, v1')
    A('v_cmp_gt_u32 vcc, 32, v0')
    A('v_cndmask_b32 v3, v23, v3, vcc')
    A('v_cmp_gt_u32 vcc, 40, v0')
    A('s_and_saveexec_b64 s[46:47], vcc')
    A('ds_write_b128 v3, v[16:19]')
    A('s_mov_b64 exec, s[46:47]')
    A('v_lshlrev_b32 v23, 7, v22')
    A('v_lshl_add_u32 v23, v21, 4, v23')
    A('v_lshlrev_b32 v25, 5, v20')
    A('v_sub_u32 v23, v23, v25')
    A(f'v_add_u32 v23, {CV_U+480}, v23')
    A(f'v_sub_u32 v25, {CV_U+4080}, v1')
    A('v_lshl_add_u32 v24, v21, 3, v20')
    A('v_lshl_add_u32 v24, v22, 6, v24')
    A('v_add_u32 v24, 1, v24')
    for res in range(2):
        if res: A('v_add_u32 v24, 32, v24')
        A('v_bfe_u32 v30, v24, 3, 3')
        A(f'v_xor_b32 v{30+res}, v24, v30')
        A(f'v_lshlrev_b32 v{30+res}, 4, v{30+res}')
        if res==0: A('v_mov_b32 v29, v30')
    A('v_mov_b32 v30, v29')
    A('v_add_u32 v26, 1, v0')
    A('v_and_b32 v27, 7, v26')
    A('v_lshlrev_b32 v27, 4, v27')
    A('v_lshlrev_b32 v26, 7, v26')
    for sft in range(8):
        A(f'v_xor_b32 v{104+sft}, {sft*16}, v27')
        A(f'v_add_u32 v{104+sft}, v26, v{104+sft}')
    stamp(A,1)
    A('s_waitcnt vmcnt(3)')
    stamp(A,2)
    for j in range(6):
        A(f'v_alignbit_b32 v{OA+j}, v{WA+j+1}, v{WA+j}, 16')
        A(f'v_alignbit_b32 v{OB+j}, v{WB+j+1}, v{WB+j}, 16')
    for sft,r in enumerate([WA,OA,WB,OB,WA+2,OA+2,WB+2,OB+2]):
        A(f'ds_write_b128 v{104+sft}, v[{r}:{r+3}] offset:{CV_E}')
    A('v_cmp_eq_u32 vcc, 255, v0')
    A('v_mov_b32 v3, 0')
    A('s_and_saveexec_b64 s[46:47], vcc')
    A(f'ds_write_b128 v3, v[{WA+4}:{WA+7}] offset:{CV_E+257*128+16}')
    A('s_mov_b64 exec, s[46:47]')
    A('s_waitcnt lgkmcnt(0)')
    A('s_and_b32 s22, s23, 1')
    A('s_lshl_b32 s22, s22, 4')
    A('s_lshr_b32 s34, s34, s22')
    A('s_lshl_b32 s34, s34, 16')
    A('s_mov_b32 s38, s35')
    A('s_mov_b32 s39, s35')
    A('v_add_f32 v26, 1.0, s36')
    A('v_cvt_pk_bf16_f32 v26, v26, v26')
    A('v_lshlrev_b32 v26, 16, v26')
    A('s_waitcnt vmcnt(0)')
    H=32; X=48; M=56; SD=64
    for e in range(4): unpack(A,X+2*e,X+1+2*e,12+e)
    for e in range(8): unpack(A,M+e,SD+e,40+e)
    for e in range(8): A(f'v_rcp_f32 v{SD+e}, v{SD+e}')
    for e in range(4): A(f'v_pk_add_f32 v[{H+2*e}:{H+1+2*e}], v[{X+2*e}:{X+1+2*e}], v[{M+2*e}:{M+1+2*e}] neg_lo:[0,1] neg_hi:[0,1]')
    def rnd(base,tmp):
        for e in range(4): A(f'v_cvt_pk_bf16_f32 v{tmp+e}, v{base+2*e}, v{base+2*e+1}')
        for e in range(4): unpack(A,base+2*e,base+2*e+1,tmp+e)
    rnd(H,4)
    for e in range(4): A(f'v_pk_mul_f32 v[{H+2*e}:{H+1+2*e}], v[{H+2*e}:{H+1+2*e}], v[{SD+2*e}:{SD+1+2*e}]')
    rnd(H,4)
    for e in range(4): A(f'v_pk_mul_f32 v[{H+2*e}:{H+1+2*e}], v[{H+2*e}:{H+1+2*e}], v[26:27] op_sel_hi:[1,0]')
    rnd(H,4)
    for e in range(4): A(f'v_pk_add_f32 v[{H+2*e}:{H+1+2*e}], v[{H+2*e}:{H+1+2*e}], s[38:39]')
    for e in range(4): A(f'v_cvt_pk_bf16_f32 v{4+e}, v{H+7-2*e}, v{H+6-2*e}')
    A('ds_write_b128 v25, v[4:7]')
    for e in range(4): unpack(A,H+7-2*e,H+6-2*e,4+e)
    for e in range(8): A(f'v_mul_f32 v{H+e}, s34, v{H+e}')
    A('v_and_b32 v27, 63, v0')
    A('v_lshlrev_b32 v27, 4, v27')
    A('v_lshl_add_u32 v27, v22, 13, v27')
    A('v_lshrrev_b32 v28, 5, v0')
    A('v_lshlrev_b32 v28, 10, v28')
    A('v_bfe_u32 v29, v0, 1, 4')
    A('v_lshl_add_u32 v28, v29, 4, v28')
    A('v_and_b32 v29, 1, v0')
    A('v_lshl_add_u32 v28, v29, 9, v28')
    A('s_waitcnt lgkmcnt(0)')
    A('s_barrier')
    stamp(A,3)
    Y=56; V=88; G=120
    for res in range(2):
        for n in range(8):
            A(f'ds_read_b128 v[{V+4*n}:{V+3+4*n}], v23 offset:{(7-n)*512+res*64}')
            A(f'ds_read_b128 v[{G+4*n}:{G+3+4*n}], v{30+res} offset:{CV_E+n*4096}')
        if res==0: rnd(H,4)
        done=set()
        for lev in range(8):
            A(f's_waitcnt lgkmcnt({2*(7-lev)})')
            if res==1 and lev==7: A('s_barrier')
            for q in range(lev+1):
                for n1 in range(lev+1):
                    if max(q,n1)!=lev or q+n1>7: continue
                    n=q+n1
                    c = f'v[{Y+4*n}:{Y+3+4*n}]' if (res or n in done) else '0'
                    done.add(n)
                    A(f'v_mfma_f32_16x16x32_bf16 v[{Y+4*n}:{Y+3+4*n}], v[{G+4*q}:{G+3+4*q}], v[{V+4*n1}:{V+3+4*n1}], {c}')
    stamp(A,4)
    for n in range(8):
        A(f'ds_write_b128 v27, v[{Y+4*n}:{Y+3+4*n}] offset:{CV_P+n*1024}')
    A('v_lshrrev_b32 v2, 3, v0')
    A('v_mul_u32_u24 v2, 73728, v2')
    A('v_and_b32 v3, 7, v0')
    A('v_lshl_add_u32 v2, v3, 4, v2')
    A('s_lshl_b32 s44, s23, 7')
    A('s_mov_b32 s38, s37')
    A('s_mov_b32 s39, s37')
    A('s_waitcnt lgkmcnt(0)')
    A('s_barrier')
    stamp(A,5)
    S=88
    for w in range(4):
        A(f'ds_read_b128 v[{S+8*w}:{S+3+8*w}], v28 offset:{CV_P+w*8192}')
        A(f'ds_read_b128 v[{S+4+8*w}:{S+7+8*w}], v28 offset:{CV_P+w*8192+256}')
    A('s_waitcnt lgkmcnt(0)')
    for e in range(0,8,2):
        A(f'v_pk_add_f32 v[{S+e}:{S+1+e}], v[{S+e}:{S+1+e}], v[{S+8+e}:{S+9+e}]')
        A(f'v_pk_add_f32 v[{S+16+e}:{S+17+e}], v[{S+16+e}:{S+17+e}], v[{S+24+e}:{S+25+e}]')
    for e in range(0,8,2):
        A(f'v_pk_add_f32 v[{S+e}:{S+1+e}], v[{S+e}:{S+1+e}], v[{S+16+e}:{S+17+e}]')
    rnd(S,4)
    for e in range(0,8,2): A(f'v_pk_add_f32 v[{S+e}:{S+1+e}], v[{S+e}:{S+1+e}], v[{H+e}:{H+1+e}]')
    rnd(S,4)
    for e in range(0,8,2): A(f'v_pk_mul_f32 v[{S+e}:{S+1+e}], v[{S+e}:{S+1+e}], s[38:39]')
    rnd(S,4)
    for e in range(0,8,2): A(f'v_pk_add_f32 v[{S+e}:{S+1+e}], v[{S+e}:{S+1+e}], v[{X+e}:{X+1+e}]')
    for e in range(4): A(f'v_cvt_pk_bf16_f32 v{4+e}, v{S+2*e}, v{S+1+2*e}')
    A(f'buffer_store_dwordx4 v[4:7], v2, s[40:43], s44 offen {POL["X1"]}')
    stamp(A,6)
    if STAMP: A('s_waitcnt vmcnt(0)')
    stamp(A,7)
    stamp_out(A,10,1)
    A('s_endpgm')

    A('K2_W1:')
    if 'K2_W1' in SKIP: A('s_endpgm')
    A(f's_load_dwordx2 s[6:7], s[0:1], {KA["w1"]}')
    A('s_lshl_b32 s23, s3, 6')
    A('v_lshrrev_b32 v2, 2, v0')
    A('v_and_b32 v3, 3, v0')
    A('v_mul_u32_u24 v4, 9216, v2')
    A('v_lshl_add_u32 v4, v3, 4, v4')
    A('v_add_u32 v4, s23, v4')
    A('v_lshlrev_b32 v1, 2, v0')
    A('s_waitcnt lgkmcnt(0)')
    srd(A,8,6,SZ_W)
    for c in range(9):
        A(f's_mov_b32 s22, {c*64*9216}')
        A(f'buffer_load_dwordx4 v[{8+4*c}:{11+4*c}], v4, s[8:11], s22 offen')
    srd(A,16,4,3456*4,WS['MOD'])
    for c in range(3):
        A(f's_mov_b32 s22, {(3*576+256*c)*4}')
        A(f'buffer_load_dword v{100+c}, v1, s[16:19], s22 offen')
        A(f's_mov_b32 s22, {(4*576+256*c)*4}')
        A(f'buffer_load_dword v{104+c}, v1, s[16:19], s22 offen')
    srd(A,12,4,SZ_W,WS['W1F'])
    srd(A,36,4,4608*4,WS['CS'])
    srd(A,40,4,4608*4,WS['BIAS'])
    A(f'v_mul_u32_u24 v5, {W1S}, v2')
    A('v_lshl_add_u32 v5, v3, 4, v5')
    A('v_and_b32 v116, 63, v0')
    A('v_bfe_u32 v117, v0, 6, 1')
    A('v_lshrrev_b32 v111, 7, v0')
    A('v_lshrrev_b32 v118, 2, v116')
    A(f'v_mul_u32_u24 v6, {W1S}, v118')
    A('v_and_b32 v118, 3, v116')
    A('v_lshl_add_u32 v6, v118, 3, v6')
    A('v_lshl_add_u32 v6, v117, 5, v6')
    A(f'v_mul_u32_u24 v118, {288*W1S}, v111')
    A('v_add_u32 v6, v6, v118')
    A('v_lshrrev_b32 v119, 4, v116')
    A('v_mul_u32_u24 v118, 1152, v111')
    A('v_lshl_add_u32 v7, v119, 4, v118')
    A('v_lshrrev_b32 v108, 1, v7')
    A('s_lshl_b32 s24, s3, 1')
    A('v_add_u32 v109, s24, v117')
    A('v_mul_u32_u24 v118, 57, v109')
    A('v_lshrrev_b32 v118, 9, v118')
    A('v_mul_u32_u24 v110, 9, v118')
    A('v_sub_u32 v109, v109, v110')
    A('v_readfirstlane_b32 s26, v109')
    A('v_readfirstlane_b32 s27, v118')
    A('v_readfirstlane_b32 s28, v111')
    A('s_lshl_b32 s29, s26, 10')
    A('s_mov_b32 s30, 4096')
    A('s_cmp_ge_u32 s26, 4')
    A(f's_cselect_b32 s31, {73728-4096}, 0')
    A('s_cselect_b32 s30, 3072, s30')
    A('s_cmp_ge_u32 s26, 7')
    A(f's_cselect_b32 s31, {129024-7168}, s31')
    A('s_cselect_b32 s30, 2048, s30')
    A('s_add_u32 s29, s29, s31')
    A('s_mul_i32 s27, s27, 165888')
    A('s_add_u32 s29, s29, s27')
    A('s_mul_i32 s28, s28, 9')
    A('s_mul_i32 s28, s28, s30')
    A('s_add_u32 s29, s29, s28')
    A('v_lshlrev_b32 v109, 4, v116')
    A('v_lshlrev_b32 v110, 1, v0')
    A('v_mov_b32 v112, 0x3f803f80\nv_mov_b32 v113, 0x3f803f80\nv_mov_b32 v114, 0x3f803f80\nv_mov_b32 v115, 0x3f803f80')
    for c in range(9):
        A(f's_waitcnt vmcnt({14-c})')
        A(f'ds_write_b128 v5, v[{8+4*c}:{11+4*c}] offset:{c*64*W1S}')
    A('s_waitcnt vmcnt(0)')
    for c in range(3):
        A(f'v_add_f32 v{104+c}, 1.0, v{104+c}')
        A(f'v_cvt_pk_bf16_f32 v{104+c}, v{104+c}, v{104+c}')
        A(f'v_lshlrev_b32 v{104+c}, 16, v{104+c}')
        if c==2:
            A('v_cmp_gt_u32 vcc, 64, v0')
            A('s_and_saveexec_b64 s[46:47], vcc')
        A(f'ds_write_b32 v1, v{104+c} offset:{W1_TAB+1024*c}')
        A(f'ds_write_b16_d16_hi v110, v{100+c} offset:{W1_TAB+2304+512*c}')
    A('s_mov_b64 exec, s[46:47]')
    A('s_waitcnt lgkmcnt(0)')
    A('s_barrier')
    def rd(kk,F):
        A(f'ds_read_b64_tr_b16 v[{F}:{F+1}], v6 offset:{kk*32*W1S}')
        A(f'ds_read_b64_tr_b16 v[{F+2}:{F+3}], v6 offset:{kk*32*W1S+16*W1S}')
        A(f'ds_read_b128 v[{F+4}:{F+7}], v7 offset:{W1_TAB+kk*128}')
        A(f'ds_read_b128 v[{F+8}:{F+11}], v7 offset:{W1_TAB+kk*128+64}')
        A(f'ds_read_b64 v[{F+12}:{F+13}], v108 offset:{W1_TAB+2304+kk*64}')
        A(f'ds_read_b64 v[{F+14}:{F+15}], v108 offset:{W1_TAB+2304+kk*64+32}')
    rd(0,48)
    for kk in range(9):
        F=48+16*(kk&1)
        if kk<8:
            rd(kk+1,48+16*((kk+1)&1))
            A('s_waitcnt lgkmcnt(6)')
        else: A('s_waitcnt lgkmcnt(0)')
        A(f'v_mfma_f32_16x16x32_bf16 v[124:127], v[{F}:{F+3}], v[{F+12}:{F+15}], {"v[124:127]" if kk else "0"}')
        O=8+4*kk
        for e in range(4): unpack(A,80+2*e,81+2*e,F+e)
        for e in range(4): A(f'v_pk_mul_f32 v[{80+2*e}:{81+2*e}], v[{80+2*e}:{81+2*e}], v[{F+4+2*e}:{F+5+2*e}]')
        for e in range(4): A(f'v_cvt_pk_bf16_f32 v{O+e}, v{80+2*e}, v{81+2*e}')
        A(f'v_mfma_f32_16x16x32_bf16 v[120:123], v[{O}:{O+3}], v[112:115], {"v[120:123]" if kk else "0"}')
        A(f'buffer_store_dwordx4 v[{O}:{O+3}], v109, s[12:15], s29 offen {POL["W1F"]}')
        A('s_add_u32 s29, s29, s30')
    A('s_barrier')
    A('v_and_b32 v1, 127, v0')
    A('v_lshlrev_b32 v1, 5, v1')
    A('v_readfirstlane_b32 s45, v111')
    A('s_cmp_eq_u32 s45, 0')
    A('s_cbranch_scc1 K2_W1_A')
    A('ds_write_b128 v1, v[120:123]')
    A('ds_write_b128 v1, v[124:127] offset:16')
    A('s_waitcnt lgkmcnt(0)')
    A('s_barrier')
    A('s_endpgm')
    A('K2_W1_A:')
    A('s_barrier')
    A('ds_read_b128 v[48:51], v1')
    A('ds_read_b128 v[52:55], v1 offset:16')
    A('v_and_b32 v2, 15, v0')
    A('v_cmp_eq_u32 vcc, 0, v2')
    A('s_lshl_b32 s24, s3, 7')
    A('s_waitcnt lgkmcnt(0)')
    for e in range(0,8,2): A(f'v_pk_add_f32 v[{120+e}:{121+e}], v[{120+e}:{121+e}], v[{48+e}:{49+e}]')
    for e in range(4): A(f'v_mul_f32 v{124+e}, 0xbfb8aa3b, v{124+e}')
    A('s_and_saveexec_b64 s[46:47], vcc')
    A('buffer_store_dwordx4 v[120:123], v0, s[36:39], s24 offen')
    A('buffer_store_dwordx4 v[124:127], v0, s[40:43], s24 offen')
    A('s_endpgm')
    A('K1_W2:')
    if 'K1_W2' in SKIP: A('s_endpgm')
    stamp(A,0)
    A(f's_load_dwordx2 s[6:7], s[0:1], {KA["w2"]}')
    A('s_mov_b32 s23, s3')
    A('s_mul_i32 s24, s23, 57')
    A('s_lshr_b32 s24, s24, 9')
    A('s_mul_i32 s25, s24, 9')
    A('s_sub_u32 s25, s23, s25')
    A('s_mul_i32 s24, s24, 18')
    A('s_and_b32 s27, s25, 3')
    A('s_lshl_b32 s26, s27, 1')
    A('s_cmp_eq_u32 s27, 3')
    A('s_addc_u32 s26, s26, 0')
    A('s_cmp_ge_u32 s25, 4')
    A('s_cselect_b32 s27, 9, 0')
    A('s_add_u32 s26, s26, s27')
    A('s_cmp_eq_u32 s25, 8')
    A('s_cselect_b32 s26, 6, s26')
    A('s_cselect_b32 s21, 128, 0')
    A('s_add_u32 s24, s24, s26')
    A('s_lshl_b32 s20, s24, 4')
    A('s_waitcnt lgkmcnt(0)')
    srd(A,8,6,SZ_W)
    srd(A,12,4,SZ_W,WS['W2F'])
    load_tile_g(A,True)
    A('v_and_b32 v116, 63, v0')
    A('v_lshrrev_b32 v117, 6, v0')
    A('v_lshrrev_b32 v120, 2, v116')
    A(f'v_mul_u32_u24 v5, {RS}, v120')
    A('v_and_b32 v120, 3, v116')
    A('v_lshl_add_u32 v5, v120, 3, v5')
    A('v_mul_u32_u24 v120, 288, v117')
    A('v_add_u32 v5, v5, v120')
    A('v_mul_u32_u24 v6, 9, v117')
    A('s_mul_i32 s24, s23, 36')
    A('v_add_u32 v6, s24, v6')
    A('v_lshl_add_u32 v6, v6, 6, v116')
    A('v_lshlrev_b32 v6, 4, v6')
    A('s_waitcnt vmcnt(0)')
    stamp(A,1)
    write_tile_g(A,8)
    A('s_waitcnt lgkmcnt(0)')
    A('s_barrier')
    tr_tile_g(A,16)
    A('s_waitcnt lgkmcnt(0)')
    for q in range(9):
        A(f's_mov_b32 s22, {q*1024}')
        A(f'buffer_store_dwordx4 v[{8+4*q}:{11+4*q}], v6, s[12:15], s22 offen {POL["W2F"]}')
    stamp(A,2)
    if STAMP: A('s_waitcnt vmcnt(0)')
    stamp(A,3)
    stamp_out(A,4,1)
    A('s_endpgm')

    return A.text(), kd('k2_kernel',152)

NOSTAT=bool(os.environ.get('NOSTAT'))
def interleave(A, mf, fill, per=None):
    n=len(mf); m=len(fill); k=0
    for i,x in enumerate(mf):
        A(x)
        tgt=(i+1)*m//n
        while k<tgt:
            A(fill[k]); k+=1
    while k<m:
        A(fill[k]); k+=1

K3_GRID=256
K3_A0=81920; K3_A1=49152; K3_CSL=155648; K3_LDS=156800
class VM:
    def __init__(s): s.q=[]
    def add(s,tag,n=1): s.q+= [tag]*n
    def after(s,tag):
        idx=max(i for i,t in enumerate(s.q) if t==tag)
        return min(63,len(s.q)-1-idx)

def wave_sum(A,r,t):
    A(f'v_add_f32_dpp v{r}, v{r}, v{r} quad_perm:[1,0,3,2] row_mask:0xf bank_mask:0xf')
    A(f'v_add_f32_dpp v{r}, v{r}, v{r} quad_perm:[2,3,0,1] row_mask:0xf bank_mask:0xf')
    A(f'v_add_f32_dpp v{r}, v{r}, v{r} row_half_mirror row_mask:0xf bank_mask:0xf')
    A(f'v_add_f32_dpp v{r}, v{r}, v{r} row_mirror row_mask:0xf bank_mask:0xf')
    A(f'v_mov_b32 v{t}, v{r}')
    A(f'v_permlane16_swap_b32 v{r}, v{t}')
    A(f'v_add_f32 v{r}, v{r}, v{t}')
    A(f'v_mov_b32 v{t}, v{r}')
    A(f'v_permlane32_swap_b32 v{r}, v{t}')
    A(f'v_add_f32 v{r}, v{r}, v{t}')

def row_stat(A,X,r):
    for c in range(9): A(f'v_lshlrev_b32 v{X+c}, 16, v{X+c}')
    A(f'v_add_f32 v{r}, v{X}, v{X+1}')
    for c in range(2,9): A(f'v_add_f32 v{r}, v{r}, v{X+c}')
    wave_sum(A,r,r+1)
    A(f'v_mul_f32 v{r}, 0x3ae38e39, v{r}')
    for c in range(9): A(f'v_sub_f32 v{X+c}, v{X+c}, v{r}')
    A(f'v_mul_f32 v{r+2}, v{X}, v{X}')
    for c in range(1,9): A(f'v_fmac_f32 v{r+2}, v{X+c}, v{X+c}')
    wave_sum(A,r+2,r+1)
    q=r+2
    A(f'v_mul_f32 v{q}, 0x3ae38e39, v{q}')
    A(f'v_cvt_pk_bf16_f32 v{q}, v{q}, v{q}')
    A(f'v_lshlrev_b32 v{q}, 16, v{q}')
    A(f'v_add_f32 v{q}, 0x3727c5ac, v{q}')
    A(f'v_cvt_pk_bf16_f32 v{q}, v{q}, v{q}')
    A(f'v_lshlrev_b32 v{q}, 16, v{q}')
    A(f'v_sqrt_f32 v{q}, v{q}')
    A(f'v_cvt_pk_bf16_f32 v{r}, v{r}, v{q}')

def gen_k3():
    A=Asm(); vm=VM()
    A('k3_kernel:')
    A(f's_cmp_ge_u32 s2, {K3_GRID}')
    A('s_cbranch_scc1 K3_END')
    stamp(A,0)
    A(f's_load_dwordx2 s[4:5], s[0:1], {KA["ws"]}')
    A('s_lshr_b32 s20, s2, 5')
    A('s_and_b32 s21, s2, 7')
    A('s_lshl_b32 s21, s21, 2')
    A('s_bfe_u32 s23, s2, 0x20003')
    A('s_add_u32 s21, s21, s23')
    AF=40; S1=88; S0=136; BX=200; T=232; CB=32; SS=88; SQ=104; ONE=120
    t0,t1,t2,t3,G,I=124,125,126,127,128,129
    A('v_and_b32 v1, 63, v0')
    A('v_lshrrev_b32 v2, 6, v0')
    A('v_readfirstlane_b32 s22, v2')
    A('v_lshlrev_b32 v3, 4, v1')
    A(f'v_lshrrev_b32 v{G}, 4, v1')
    A(f'v_and_b32 v{I}, 15, v1')
    A('v_lshrrev_b32 v8, 3, v1')
    A('v_lshlrev_b32 v8, 7, v8')
    A(f'v_and_b32 v{t0}, 7, v1')
    A(f'v_lshlrev_b32 v{t1}, 1, v{G}')
    A(f'v_xor_b32 v{t0}, v{t0}, v{t1}')
    A(f'v_lshl_add_u32 v8, v{t0}, 4, v8')
    A('s_lshl_b32 s23, s20, 2')
    A('s_add_u32 s23, s23, s22')
    A('s_mul_i32 s23, s23, 73728')
    A('v_add_u32 v8, s23, v8')
    A('s_mul_i32 s24, s21, 165888')
    A('s_lshl_b32 s33, s22, 10')
    A('s_mul_i32 s27, s22, 768')
    A('v_add_u32 v5, s33, v3')
    A('v_add_u32 v4, s27, v3')
    A('s_lshl_b32 s25, s22, 12')
    A(f's_add_u32 s26, s33, {K3_A0}')
    A(f's_add_u32 s27, s27, {K3_A1}')
    A('s_mov_b32 s56, -1\ns_mov_b32 s57, 0xffff')
    A('v_lshlrev_b32 v23, 2, v0')
    A('s_waitcnt lgkmcnt(0)')
    srd(A,8,4,SZ_W,WS['W1F'])
    srd(A,12,4,SZ_XT,WS['X1T'])
    def dmaB(ks):
        st=(ks%5)*16384; vm.add(f'b{ks}',4)
        return [(f's_add_u32 m0, s25, {st}\ns_mov_b32 s31, {ks*4096}\n' if c==0 else '')+f'buffer_load_dwordx4 v8, s[12:15], s31 offen offset:{c*1024} lds' for c in range(4)]
    def dmaA0(ks):
        vm.add(f'a{ks}')
        return f's_add_u32 m0, s26, {ks*4096}\ns_add_u32 s30, s24, {ks*4096}\nbuffer_load_dwordx4 v5, s[8:11], s30 offen lds'
    LOC=list(range(11,18))+list(range(0,11))
    def dma1(k):
        vm.add('a1')
        return f's_add_u32 m0, s27, {LOC[k]*3072}\ns_add_u32 s30, s24, {73728+k*3072}\ns_mov_b64 exec, s[56:57]\nbuffer_load_dwordx4 v4, s[8:11], s30 offen lds\ns_mov_b64 exec, -1'
    def dma2(k0):
        vm.add('a2')
        return f's_add_u32 m0, s33, {k0*2048}\ns_add_u32 s30, s24, {129024+k0*2048}\nbuffer_load_dwordx4 v5, s[8:11], s30 offen lds'
    for x in dmaB(0): A(x)
    for k in range(3): A(dmaA0(k))
    for x in dmaB(1): A(x)
    srd(A,44,4,0x10000+4608*4,WS['CS'])
    A('s_mul_i32 s30, s21, 576')
    A('buffer_load_dword v130, v23, s[44:47], s30 offen'); vm.add('cs')
    A('s_add_u32 s30, s30, 0x10000')
    A('buffer_load_dword v131, v23, s[44:47], s30 offen'); vm.add('cs')
    for x in dmaB(2): A(x)
    for k in range(3,6): A(dmaA0(k))
    A(f'v_lshrrev_b32 v{t0}, 1, v{G}')
    A(f'v_lshlrev_b32 v{t0}, 10, v{t0}')
    A(f'v_and_b32 v{t1}, 1, v{G}')
    A(f'v_lshrrev_b32 v{t2}, 2, v{I}')
    A(f'v_lshl_add_u32 v{t2}, v{t1}, 2, v{t2}')
    A(f'v_lshl_add_u32 v{t0}, v{t2}, 7, v{t0}')
    A(f'v_and_b32 v{t3}, 3, v{I}')
    A(f'v_lshl_add_u32 v{t0}, v{t3}, 3, v{t0}')
    A(f'v_add_u32 v{t0}, s25, v{t0}')
    A(f'v_lshrrev_b32 v{t2}, 1, v{t2}')
    A(f'v_lshlrev_b32 v{t2}, 5, v{t2}')
    for tt in range(4):
        A(f'v_xor_b32 v{10+tt}, {32*tt}, v{t2}')
        A(f'v_add_u32 v{10+tt}, v{t0}, v{10+tt}')
        A(f'v_add_u32 v{14+tt}, 0x10000, v{10+tt}')
    A(f'v_add_u32 v6, {K3_A0}, v3')
    A(f'v_add_u32 v18, {K3_A0+36864}, v3')
    A(f'v_add_u32 v20, {K3_A1}, v3')
    A(f'v_lshlrev_b32 v21, 4, v{G}')
    A(f'v_add_u32 v21, {K3_CSL}, v21')
    A(f'v_add_u32 v23, {K3_CSL}, v23')
    A('v_and_b32 v22, 3, v1')
    A('v_cmp_eq_u32 s[50:51], 1, v22')
    A('v_cmp_eq_u32 s[52:53], 2, v22')
    A('v_cmp_eq_u32 s[54:55], 3, v22')
    A('v_bfe_u32 v22, v1, 2, 2')
    A(f'v_lshl_add_u32 v22, v22, 4, v{I}')
    A('v_lshlrev_b32 v22, 2, v22')
    for r in range(4): A(f'v_mov_b32 v{ONE+r}, 0x3f803f80')
    srd(A,16,4,SZ_H,WS['HF'])
    AC=[S0,S1,S0]; NT=[4,3,2]; J0=[0,4,7]
    def breg(k,tt):
        return (f'a[{16*k+4*tt}:{16*k+4*tt+3}]', 'a', 16*k+4*tt) if k<16 else (f'v[{BX+16*(k-16)+4*tt}:{BX+16*(k-16)+4*tt+3}]','v',BX+16*(k-16)+4*tt)
    def rdB(ks):
        sl=ks%5; L=[]
        for tt in range(4):
            _,c,b=breg(ks,tt); ar=(10 if sl<4 else 14)+tt; o=(sl%4)*16384
            L.append(f'ds_read_b64_tr_b16 {c}[{b}:{b+1}], v{ar} offset:{o}')
            L.append(f'ds_read_b64_tr_b16 {c}[{b+2}:{b+3}], v{ar} offset:{o+2048}')
        return L
    def rdA(p,k):
        L=[]
        for j in range(NT[p]):
            a=AF+16*(k%3)+4*j
            if p==0: ar=(6 if k<9 else 18); o=(k%9)*4096+j*1024
            elif p==1: ar=20; o=LOC[k]*3072+j*1024
            else: ar=3; o=k*2048+j*1024
            L.append(f'ds_read_b128 v[{a}:{a+3}], v{ar} offset:{o}')
        return L
    def mm(p,k):
        L=[]
        for j in range(NT[p]):
            for tt in range(4):
                d=AC[p]+16*j+4*tt; a=AF+16*(k%3)+4*j
                L.append(f'v_mfma_f32_16x16x32_bf16 v[{d}:{d+3}], v[{a}:{a+3}], {breg(k,tt)[0]}, {f"v[{d}:{d+3}]" if k else "0"}')
        if p==0:
            for tt in range(4):
                bs=breg(k,tt)[0]
                L.append(f'v_mfma_f32_16x16x32_bf16 v[{SS+4*tt}:{SS+4*tt+3}], v[{ONE}:{ONE+3}], {bs}, {f"v[{SS+4*tt}:{SS+4*tt+3}]" if k else "0"}')
                L.append(f'v_mfma_f32_16x16x32_bf16 v[{SQ+4*tt}:{SQ+4*tt+3}], {bs}, {bs}, {f"v[{SQ+4*tt}:{SQ+4*tt+3}]" if k else "0"}')
        return L
    stamp(A,1)
    A(f's_waitcnt vmcnt({vm.after("cs")})')
    A('v_cmp_gt_u32 vcc, 144, v0')
    A('s_and_saveexec_b64 s[58:59], vcc')
    A('ds_write_b32 v23, v130')
    A('ds_write_b32 v23, v131 offset:576')
    A('s_mov_b64 exec, s[58:59]')
    A('s_barrier')
    stamp(A,2)
    for x in rdB(0)+rdA(0,0)+rdB(1)+rdA(0,1): A(x)
    for x in dmaB(3): A(x)
    for k in range(6,9): A(dmaA0(k))
    for x in dmaB(4): A(x)
    a1s={7:[0],8:[1],9:[2,3],10:[4,5],11:[6],13:[7,8,9,10,11],14:[12,13,14],15:[15,16,17]}
    for i in range(18):
        fill=[]
        if i+2<=17:
            need=[vm.after(f'b{i+2}')]
            bar=((i+2)%3==0) or i==14
            if (i+2)%3==0: need.append(vm.after(f'a{i+4}'))
            A(f's_waitcnt vmcnt({min(need)}) lgkmcnt(12)')
            if bar: A('s_barrier')
            fill+=rdB(i+2)+rdA(0,i+2)
        elif i==16: A('s_waitcnt lgkmcnt(12)')
        else: A('s_waitcnt lgkmcnt(0)')
        if i+5<=17: fill+=dmaB(i+5)
        if i+9<=17: fill.append(dmaA0(i+9))
        for k in a1s.get(i,[]): fill.append(dma1(k))
        interleave(A,mm(0,i),fill)
    stamp(A,3)
    A('s_waitcnt vmcnt(0)')
    vm.q=[]
    A('s_barrier')
    for x in rdA(1,0)+rdA(1,1): A(x)
    for k0 in range(0,18,2): A(dma2(k0))
    for tt in range(4):
        q=SQ+4*tt
        A(f'v_cndmask_b32 v{q}, v{q}, v{q+1}, s[50:51]')
        A(f'v_cndmask_b32 v{q}, v{q}, v{q+2}, s[52:53]')
        A(f'v_cndmask_b32 v{q}, v{q}, v{q+3}, s[54:55]')
        A(f'ds_bpermute_b32 v{25+2*tt}, v22, v{q}')
        A(f'v_mul_f32 v{24+2*tt}, 0x3ae38e39, v{SS+4*tt}')
    A('s_lshl_b32 s36, s20, 4')
    A('s_lshl_b32 s37, s22, 2')
    A('s_add_u32 s36, s36, s37')
    A('s_lshl_b32 s36, s36, 10')
    A('s_lshr_b32 s37, s21, 1')
    A('s_mul_i32 s37, s37, 1179648')
    A('s_add_u32 s36, s36, s37')
    A('s_and_b32 s35, s21, 1')
    A('s_lshl_b32 s37, s35, 19')
    A('s_add_u32 s58, s36, s37')
    A('s_lshl_b32 s37, s35, 3')
    A('s_add_u32 s59, s36, s37')
    A('s_add_u32 s59, s59, 1048576')
    fin=[]
    for tt in range(4):
        m=24+2*tt; q=m+1
        fin+=[f'v_mul_f32 v{q}, 0x3ae38e39, v{q}', f'v_fma_f32 v{q}, -v{m}, v{m}, v{q}', f'v_max_f32 v{q}, 0, v{q}',
              f'v_cvt_pk_bf16_f32 v{m}, v{m}, v{q}', f'v_and_b32 v{q}, 0xffff0000, v{m}', f'v_lshlrev_b32 v{m}, 16, v{m}',
              f'v_sub_f32 v{m}, 0, v{m}', f'v_add_f32 v{q}, 0x3727c5ac, v{q}', f'v_cvt_pk_bf16_f32 v{q}, v{q}, v{q}',
              f'v_lshlrev_b32 v{q}, 16, v{q}', f'v_sqrt_f32 v{q}, v{q}', f'v_cvt_pk_bf16_f32 v{q}, v{q}, v{q}',
              f'v_lshlrev_b32 v{q}, 16, v{q}', f'v_rcp_f32 v{q}, v{q}', f'v_mul_f32 v{q}, 0xbfb8aa3b, v{q}']
    def csb_rd(j):
        c=CB if j%2==0 else 8
        return [f'ds_read_b128 v[{c}:{c+3}], v21 offset:{j*64}', f'ds_read_b128 v[{c+4}:{c+7}], v21 offset:{j*64+576}']
    PAIR={1:0,3:1,5:2,8:3}
    def epi(p,jj):
        j=J0[p]+jj; L=[]; c=CB if j%2==0 else 8
        for hh in range(2):
            d0=AC[p]+16*jj+8*hh; TT=T+8*hh
            for t in range(2):
                tt=2*hh+t
                for r in range(4): L.append(f'v_fmac_f32 v{d0+4*t+r}, v{c+r}, v{24+2*tt}')
            for t in range(2):
                tt=2*hh+t
                for r in range(4): L.append(f'v_fma_f32 v{d0+4*t+r}, v{d0+4*t+r}, v{25+2*tt}, v{c+4+r}')
            for r in range(8): L.append(f'v_exp_f32 v{TT+r}, v{d0+r}')
            for r in range(8): L.append(f'v_add_f32 v{TT+r}, 1.0, v{TT+r}')
            for r in range(8): L.append(f'v_rcp_f32 v{TT+r}, v{TT+r}')
            for r in range(8): L.append(f'v_mul_f32 v{d0+r}, v{d0+r}, v{TT+r}')
            for t in range(2):
                d=d0+4*t; o = d-16+2 if j in PAIR else d
                L.append(f'v_cvt_pk_bf16_f32 v{o}, v{d}, v{d+1}')
                L.append(f'v_cvt_pk_bf16_f32 v{o+1}, v{d+2}, v{d+3}')
            for t in range(2):
                d=d0+4*t; tt=2*hh+t
                if j in PAIR:
                    L.append((f's_add_u32 s49, s58, {PAIR[j]*131072}\n' if tt==0 else '')+f'buffer_store_dwordx4 v[{d-16}:{d-13}], v3, s[16:19], s49 offen offset:{tt*1024} {POL["H"]}')
                elif j==6:
                    L.append(f'buffer_store_dwordx2 v[{d}:{d+1}], v3, s[16:19], s59 offen offset:{tt*1024} {POL["H"]}')
        return L
    A('s_waitcnt lgkmcnt(0)')
    for p in (1,2):
        n=NT[p-1]
        slots={k:[] for k in range(18)}
        k0=2 if p==1 else 0
        per=(18-k0)//n
        pre={k:[] for k in range(18)}
        for jj in range(n):
            ks0=k0+jj*per
            if ks0>=2: pre[ks0-2]+=csb_rd(J0[p-1]+jj)
            L=epi(p-1,jj); m=len(L)
            for c in range(per):
                slots[ks0+c]+=L[c*m//per:(c+1)*m//per]
        if p==1:
            slots[0]+=fin[:30]; slots[1]+=fin[30:]
            pre[16]+=csb_rd(J0[1])
        else:
            pre[16]+=csb_rd(7)
        nprev=NT[p]
        for k in range(18):
            A(f's_waitcnt lgkmcnt({nprev})')
            fill=list(pre[k])
            nprev=len(pre[k])
            if k+2<18:
                r=rdA(p,k+2); fill+=r; nprev+=len(r)
            elif p==1 and k==16:
                A('s_waitcnt vmcnt(4)')
                A('s_barrier')
                r=rdA(2,0); fill+=r; nprev+=len(r)
            elif p==1 and k==17:
                r=rdA(2,1); fill+=r; nprev+=len(r)
            fill+=slots[k]
            interleave(A,mm(p,k),fill)
    stamp(A,4)
    for x in csb_rd(8): A(x)
    A('s_waitcnt lgkmcnt(2)')
    for x in epi(2,0): A(x)
    A('s_waitcnt lgkmcnt(0)')
    for x in epi(2,1): A(x)
    stamp(A,5)
    if STAMP: A('s_waitcnt vmcnt(0)')
    stamp(A,6)
    stamp_out(A,7,2)
    A('K3_END:')
    A('s_endpgm')
    return A.text(), kd('k3_kernel',248,agpr=256)

K4_LDS=163840
def gen_k4():
    A=Asm()
    P=4; NKS=18
    A('k4_kernel:')
    A('s_cmp_ge_u32 s2, 256')
    A('s_cbranch_scc1 K4_END')
    stamp(A,0)
    A(f's_load_dwordx2 s[4:5], s[0:1], {KA["ws"]}')
    A(f's_load_dwordx2 s[6:7], s[0:1], {KA["out"]}')
    A('s_and_b32 s20, s2, 7')
    A('s_lshl_b32 s20, s20, 2')
    A('s_bfe_u32 s21, s2, 0x20003')
    A('s_add_u32 s20, s20, s21')
    A('s_lshr_b32 s21, s2, 5')
    A('s_mul_i32 s23, s21, 9')
    A('s_lshr_b32 s23, s23, 1')
    A('v_and_b32 v1, 63, v0')
    A('v_lshrrev_b32 v2, 6, v0')
    A('v_readfirstlane_b32 s22, v2')
    A('v_lshlrev_b32 v3, 4, v1')
    A('s_mul_i32 s24, s22, 663552')
    A('s_lshl_b32 s25, s23, 10')
    A('s_add_u32 s40, s24, s25')
    A('s_mul_i32 s24, s22, 2359296')
    A('s_lshl_b32 s25, s20, 12')
    A('s_add_u32 s41, s24, s25')
    A('v_add_u32 v31, 4096, v3')
    A('s_and_b32 s30, s21, 1')
    A('s_cmp_eq_u32 s30, 0')
    A('s_cselect_b32 s88, -1, 0xff00ff00')
    A('s_cselect_b32 s90, 0x00ff00ff, -1')
    A('s_mov_b32 s89, s88')
    A('s_mov_b32 s91, s90')
    for p in range(4):
        for j in (0,4):
            for r in range(4): A(f'v_mov_b32 v{112+36*p+4*j+r}, 0')
    A('s_waitcnt lgkmcnt(0)')
    srd(A,8,4,SZ_W,WS['W2F'])
    srd(A,12,4,SZ_H,WS['HF'])
    ACC=32; FR=112
    def loads(p):
        L=[]
        for tt in range(4):
            r=FR+36*p+20+4*tt
            L.append(f'buffer_load_dwordx4 v[{r}:{r+3}], v3, s[12:15], s41 offen offset:{tt*1024}')
        for j in range(5):
            r=FR+36*p+4*j
            pre = 's_mov_b64 exec, s[88:89]\n' if j==0 else ('s_mov_b64 exec, s[90:91]\n' if j==4 else '')
            post = '\ns_mov_b64 exec, -1' if j in (0,4) else ''
            L.append(pre+f'buffer_load_dwordx4 v[{r}:{r+3}], v{3 if j<4 else 31}, s[8:11], s40 offen offset:{(j&3)*1024}'+post)
        L.append('s_add_u32 s40, s40, 36864\ns_add_u32 s41, s41, 131072')
        return L
    for p in range(P):
        for x in loads(p): A(x)
    srd(A,16,4,SZ_XT,WS['X1T'])
    srd(A,52,4,3456*4,WS['MOD'])
    srd(A,56,6,SZ_XT)
    A('v_and_b32 v4, 15, v1')
    A('v_lshrrev_b32 v5, 4, v1')
    A('s_lshr_b32 s42, s22, 1')
    A('s_and_b32 s43, s22, 1')
    A('s_lshl_b32 s43, s43, 1')
    A('s_add_u32 s44, s23, s43')
    A('v_lshlrev_b32 v6, 9, v5')
    A('v_lshl_add_u32 v6, v4, 1, v6')
    A('s_mul_i32 s27, s20, 73728')
    A('s_lshl_b32 s28, s42, 5')
    A('s_add_u32 s27, s27, s28')
    A('s_lshl_b32 s28, s44, 11')
    A('s_add_u32 s27, s27, s28')
    A('v_lshlrev_b32 v7, 4, v5')
    A('s_lshl_b32 s29, s44, 6')
    A('s_add_u32 s29, s29, 11520')
    stamp(A,1)
    def mf(p,first):
        L=[]
        for j in range(5):
            for tt in range(4):
                d=ACC+16*j+4*tt; a=FR+36*p+4*j; b=FR+36*p+20+4*tt
                L.append(f'v_mfma_f32_16x16x32_bf16 v[{d}:{d+3}], v[{a}:{a+3}], v[{b}:{b+3}], {"0" if first else f"v[{d}:{d+3}]"}')
        return L
    NE=15
    for k in range(NKS):
        p=k%P
        nxt=min(NKS-1,k+P-1)-k
        extra = NE if k>NKS-P else 0
        A(f's_waitcnt vmcnt({9*nxt+extra})')
        for x in mf(p,k==0): A(x)
        if k+P<NKS:
            for x in loads(p): A(x)
        if k==NKS-P:
            for j in range(3):
                A(f's_add_u32 s30, s27, {j*2048}')
                for r in range(4):
                    A(f'buffer_load_ushort v{8+4*j+r}, v6, s[16:19], s30 offen offset:{r*128}')
                A(f'buffer_load_dwordx4 v[{20+4*j}:{23+4*j}], v7, s[52:55], s29 offen offset:{j*64}')
    stamp(A,2)
    A('v_mul_u32_u24 v112, 20480, v2')
    A('v_add_u32 v112, v112, v3')
    for tt in range(4):
        for j in range(5):
            d=ACC+16*j+4*tt
            A(f'ds_write_b128 v112, v[{d}:{d+3}] offset:{(tt*5+j)*1024}')
    A('s_mul_i32 s30, s42, 5120')
    A('s_lshl_b32 s31, s43, 10')
    A('s_add_u32 s30, s30, s31')
    A('v_add_u32 v113, s30, v3')
    A('v_add_u32 v114, 61440, v113')
    A('v_add_u32 v115, 122880, v113')
    A('s_waitcnt lgkmcnt(0)')
    A('s_barrier')
    R=128
    for j in range(3):
        for w in range(8):
            d=R+32*j+4*w
            A(f'ds_read_b128 v[{d}:{d+3}], v{113+w//3} offset:{(w%3)*20480+j*1024}')
    A('s_lshl_b32 s27, s20, 6')
    A('s_lshl_b32 s28, s42, 4')
    A('s_add_u32 s27, s27, s28')
    A('v_add_u32 v116, s27, v4')
    A('v_mul_u32_u24 v116, 1152, v116')
    A('v_lshl_add_u32 v116, v5, 3, v116')
    A('s_lshl_b32 s28, s44, 5')
    A('s_and_b32 s30, s21, 1')
    A('s_cmp_eq_u32 s30, 0')
    A('s_cselect_b32 s84, -1, 0')
    A('s_cselect_b32 s87, 0, -1')
    A('s_mov_b32 s85, -1')
    A('s_mov_b32 s86, -1')
    A('s_cmp_eq_u32 s43, 0')
    A('s_cselect_b32 s84, s84, 0')
    A('s_cselect_b32 s85, s85, 0')
    A('s_cselect_b32 s87, -1, s87')
    A('s_waitcnt vmcnt(0)')
    for j in range(3):
        A(f's_waitcnt lgkmcnt({min(15,8*(2-j))})')
        d=R+32*j
        for st in (16,8,4):
            for o in range(0,st,2):
                A(f'v_pk_add_f32 v[{d+o}:{d+o+1}], v[{d+o}:{d+o+1}], v[{d+o+st}:{d+o+st+1}]')
        for r in range(4): A(f'v_mul_f32 v{d+r}, 0xbf317218, v{d+r}')
        for h in range(2): A(f'v_cvt_pk_bf16_f32 v{d+4+h}, v{d+2*h}, v{d+2*h+1}')
        for h in range(2): unpack(A,d+2*h,d+2*h+1,d+4+h)
        for h in range(2): A(f'v_pk_mul_f32 v[{d+2*h}:{d+2*h+1}], v[{d+2*h}:{d+2*h+1}], v[{20+4*j+2*h}:{21+4*j+2*h}]')
        for h in range(2): A(f'v_cvt_pk_bf16_f32 v{d+4+h}, v{d+2*h}, v{d+2*h+1}')
        for h in range(2): unpack(A,d+2*h,d+2*h+1,d+4+h)
        for r in range(4): A(f'v_lshlrev_b32 v{8+4*j+r}, 16, v{8+4*j+r}')
        for h in range(2): A(f'v_pk_add_f32 v[{d+2*h}:{d+2*h+1}], v[{d+2*h}:{d+2*h+1}], v[{8+4*j+2*h}:{9+4*j+2*h}]')
        for h in range(2): A(f'v_cvt_pk_bf16_f32 v{d+4+h}, v{d+2*h}, v{d+2*h+1}')
        if j==0:
            A('s_mov_b64 exec, s[84:85]')
            A('s_cbranch_execz K4_SK0')
        if j==2: A('s_mov_b64 exec, s[86:87]')
        A(f'buffer_store_dwordx2 v[{d+4}:{d+5}], v116, s[56:59], s28 offen offset:{j*32}')
        if j==0: A('K4_SK0:')
        if j in (0,2): A('s_mov_b64 exec, -1')
    stamp(A,3)
    if STAMP:
        A('s_waitcnt vmcnt(0)')
    stamp(A,4)
    if STAMP:
        A('s_cmp_ge_u32 s22, 4')
        A('s_cbranch_scc1 K4_END')
    stamp_out(A,5,3)
    A('K4_END:')
    A('s_endpgm')
    return A.text(), kd('k4_kernel',256)

def assemble(kernels, fn):
    hdr=open('cdna_kernels/'+NAME+'.s.ref').read().split('\n')
    out=[l for l in hdr if l.startswith(';') and '@launch' not in l and 'Override launch' not in l and 'grid=ceil' not in l]
    for k in kernels:
        out.append(f'; @launch kernel={k[0]} grid=({k[1]},1,1) block=({k[2]},1,1) lds={k[3]}')
    out.append('.amdgcn_target "amdgcn-amd-amdhsa--gfx950"')
    out.append('.text')
    seen=set()
    for k in kernels:
        if k[0] in seen: continue
        seen.add(k[0])
        out.append(f'.globl {k[0]}\n.p2align 8\n.type {k[0]},@function')
        out.append(k[4])
    seen=set()
    for k in kernels:
        if k[0] in seen: continue
        seen.add(k[0])
        out.append(k[5])
    open(fn,'w').write('\n'.join(out))

if __name__=='__main__':
    t1,d1=gen_k1(); t2,d2=gen_k2(); t3,d3=gen_k3(); t4,d4=gen_k4()
    ks=[('k1_kernel',K1_GRID,256,K1_LDS,t1,d1),('k2_kernel',K2_GRID,256,K2_LDS,t2,d2),
        ('k3_kernel',K3_GRID,256,K3_LDS,t3,d3),('k4_kernel',256,512,K4_LDS,t4,d4)]
    nk=int(os.environ.get('NK','4'))
    assemble(ks[:nk], sys.argv[1] if len(sys.argv)>1 else 'k.s')
```

```python
import sys,os
from asmlib import Asm

NAME='adaLN_cond__ssm_conv_s4d__dense_activation_silu__prompt'
KA=dict(x=0,lar=8,aim=16,cr=24,ci=32,logdt=40,dskip=48,w1=64,w2=72,c=80,wmod=88,out=96,dbg=104,ws=112)
WS=dict(MOD=0x0, CS=0x10000, BIAS=0x20000, STAT=0x30000, STAT2=0x38000, X1S=0x400000, XT=0x100000, XNT=0x400000, KF=0x700000, X1T=0xC00000,
        W1F=0x1000000, W2F=0x1800000, HF=0x2000000)
SZ_XT=576*2048*2
KF_CS=4160
SZ_KF=576*KF_CS
SZ_W=576*4608*2
SZ_H=2048*4608*2
LOG2E=0x3fb8aa3b
INV2PI=0x3e22f983

def srd(A, d, base, size, off=0):
    if off:
        A(f's_add_u32 s{d}, s{base}, {off:#x}')
        A(f's_addc_u32 s{d+1}, s{base+1}, 0')
    else:
        A(f's_mov_b32 s{d}, s{base}')
        A(f's_mov_b32 s{d+1}, s{base+1}')
    A(f's_mov_b32 s{d+2}, {size:#x}')
    A(f's_mov_b32 s{d+3}, 0x00020000')

def kd(name, vgpr, sgpr=102, agpr=0):
    acc=(vgpr+3)//4*4
    return f'''.section .rodata,"a"
.p2align 6
.amdhsa_kernel {name}
  .amdhsa_next_free_vgpr {acc+agpr if agpr else vgpr}
  .amdhsa_next_free_sgpr {sgpr}
  .amdhsa_accum_offset {acc}
  .amdhsa_group_segment_fixed_size 0
  .amdhsa_kernarg_size 120
  .amdhsa_user_sgpr_count 2
  .amdhsa_user_sgpr_kernarg_segment_ptr 1
  .amdhsa_system_sgpr_workgroup_id_x 1
.end_amdhsa_kernel
'''

STAMP=bool(os.environ.get('STAMP'))
POL=dict(XT='',KF='',W2F='sc1',X1='',W1F='sc1',H='sc1')
for kv in os.environ.get('POL','').split(','):
    if '=' in kv:
        k,v=kv.split('='); POL[k]=v.replace('+',' ')
def stamp(A,i):
    if STAMP:
        A(f's_mem{"real" if os.environ.get("STAMP")=="2" else ""}time s[{60+2*i}:{61+2*i}]')
def stamp_out(A,n,slot):
    if not STAMP: return
    A('s_waitcnt lgkmcnt(0)')
    srd(A,92,4,1<<22,0x8000000+slot*(1<<22))
    A('v_readfirstlane_b32 s96, v0')
    A('s_lshr_b32 s96, s96, 6')
    A('s_lshl_b32 s97, s2, 2')
    A('s_add_u32 s96, s96, s97')
    A('s_lshl_b32 s96, s96, 6')
    A('v_mov_b32 v1, 0')
    for i in range(n):
        A(f'v_mov_b32 v2, s{60+2*i}')
        A(f'buffer_store_dword v2, v1, s[92:95], s96 offen offset:{4*i}')

def unpack(A, dlo, dhi, src):
    A(f'v_lshlrev_b32 v{dlo}, 16, v{src}')
    A(f'v_and_b32 v{dhi}, 0xffff0000, v{src}')

K1_LN=64; K1_MOD=54; K1_W2=144; K1_KG=576
K1_GRID=K1_LN+K1_MOD+K1_KG
RS=1184
K1_LDS=32*RS

import os
SKIP=os.environ.get('SKIP','').split(',')
def gen_k1():
    A=Asm()
    A('k1_kernel:')
    A(f's_load_dwordx2 s[4:5], s[0:1], {KA["ws"]}')
    A('s_mov_b32 s3, s2')
    A(f's_cmp_lt_u32 s3, {K1_KG}')
    A('s_cbranch_scc1 K1_KG')
    A(f's_sub_u32 s3, s3, {K1_KG}')
    A(f's_cmp_lt_u32 s3, {K1_LN}')
    A('s_cbranch_scc1 K1_LN')
    A(f's_sub_u32 s3, s3, {K1_LN}')
    A(f's_cmp_lt_u32 s3, {K1_MOD}')
    A('s_cbranch_scc1 K1_MOD')
    A('s_endpgm')

    def load_tile(delta=False):
        A('v_lshrrev_b32 v1, 3, v0')
        A('v_and_b32 v2, 7, v0')
        A('v_add_u32 v3, s20, v1')
        if delta:
            A('v_lshrrev_b32 v4, 4, v1')
            A('v_mul_u32_u24 v4, s21, v4')
            A('v_add_u32 v3, v3, v4')
        A('v_mul_u32_u24 v3, 1152, v3')
        A('v_lshl_add_u32 v3, v2, 4, v3')
        for c in range(9):
            A(f'buffer_load_dwordx4 v[{8+4*c}:{11+4*c}], v3, s[8:11], 0 offen offset:{c*128}')
        A(f'v_mul_u32_u24 v4, {RS}, v1')
        A('v_lshl_add_u32 v4, v2, 4, v4')
    def write_tile(base):
        for c in range(9):
            A(f'ds_write_b128 v4, v[{base+4*c}:{base+3+4*c}] offset:{c*128}')

    A('K1_LN:')
    if 'K1_LN' in SKIP: A('s_endpgm')
    stamp(A,0)
    A('s_setprio 3')
    A(f's_load_dwordx2 s[6:7], s[0:1], {KA["x"]}')
    A('s_lshl_b32 s20, s3, 5')
    A('s_waitcnt lgkmcnt(0)')
    srd(A,8,6,SZ_XT)
    load_tile()
    srd(A,12,4,SZ_XT,WS['XT'])
    srd(A,16,4,0x8000+8192,WS['STAT'])
    A('v_and_b32 v116, 63, v0')
    A('v_lshrrev_b32 v117, 6, v0')
    A('v_lshrrev_b32 v118, 4, v116')
    A('v_and_b32 v119, 15, v116')
    A('v_lshrrev_b32 v120, 2, v119')
    A('v_lshl_add_u32 v120, v118, 3, v120')
    A(f'v_mul_u32_u24 v5, {RS}, v120')
    A('v_and_b32 v120, 3, v119')
    A('v_lshl_add_u32 v5, v120, 3, v5')
    A('v_mul_u32_u24 v120, 288, v117')
    A('v_add_u32 v5, v5, v120')
    A('v_mul_u32_u24 v6, 144, v117')
    A('v_add_u32 v6, v6, v119')
    A('v_lshlrev_b32 v6, 12, v6')
    A('v_lshl_add_u32 v6, v118, 4, v6')
    A('s_lshl_b32 s21, s20, 1')
    A('v_add_u32 v6, s21, v6')
    A('s_waitcnt vmcnt(0)')
    stamp(A,1)
    write_tile(8)
    U=44
    for i in range(36): unpack(A,U+2*i,U+2*i+1,8+i)
    A('s_waitcnt lgkmcnt(0)')
    A('s_barrier')
    def tr_tile(rows_h):
        for q in range(9):
            A(f'ds_read_b64_tr_b16 v[{8+4*q}:{9+4*q}], v5 offset:{q*32}')
            A(f'ds_read_b64_tr_b16 v[{10+4*q}:{11+4*q}], v5 offset:{q*32+rows_h*RS}')
    tr_tile(4)
    A(f'v_pk_add_f32 v[116:117], v[{U}:{U+1}], v[{U+2}:{U+3}]')
    A(f'v_pk_add_f32 v[118:119], v[{U+4}:{U+5}], v[{U+6}:{U+7}]')
    for i in range(4,36,2):
        A(f'v_pk_add_f32 v[116:117], v[116:117], v[{U+2*i}:{U+2*i+1}]')
        A(f'v_pk_add_f32 v[118:119], v[118:119], v[{U+2*i+2}:{U+2*i+3}]')
    A('v_pk_add_f32 v[116:117], v[116:117], v[118:119]')
    A('v_add_f32 v116, v116, v117')
    A('s_waitcnt lgkmcnt(0)')
    for q in range(9):
        A(f's_mov_b32 s22, {q*65536}')
        A(f'buffer_store_dwordx4 v[{8+4*q}:{11+4*q}], v6, s[12:15], s22 offen {POL["XT"]}')
    def red8(r):
        A(f'v_add_f32_dpp v{r}, v{r}, v{r} quad_perm:[1,0,3,2] row_mask:0xf bank_mask:0xf')
        A(f'v_add_f32_dpp v{r}, v{r}, v{r} quad_perm:[2,3,0,1] row_mask:0xf bank_mask:0xf')
        A(f'v_add_f32_dpp v{r}, v{r}, v{r} row_half_mirror row_mask:0xf bank_mask:0xf')
    red8(116)
    A('v_mul_f32 v116, 0x3ae38e39, v116')
    A('v_sub_f32 v118, 0, v116')
    for i in range(0,36,2):
        A(f'v_pk_add_f32 v[124:125], v[{U+2*i}:{U+2*i+1}], v[118:119] op_sel_hi:[1,0]')
        A(f'v_pk_add_f32 v[126:127], v[{U+2*i+2}:{U+2*i+3}], v[118:119] op_sel_hi:[1,0]')
        if i==0:
            A('v_pk_mul_f32 v[120:121], v[124:125], v[124:125]')
            A('v_pk_mul_f32 v[122:123], v[126:127], v[126:127]')
        else:
            A('v_pk_fma_f32 v[120:121], v[124:125], v[124:125], v[120:121]')
            A('v_pk_fma_f32 v[122:123], v[126:127], v[126:127], v[122:123]')
    A('v_pk_add_f32 v[120:121], v[120:121], v[122:123]')
    A('v_add_f32 v120, v120, v121')
    red8(120)
    A('v_mul_f32 v120, 0x3ae38e39, v120')
    A('v_cvt_pk_bf16_f32 v120, v120, v120')
    A('v_lshlrev_b32 v120, 16, v120')
    A('v_add_f32 v120, 0x3727c5ac, v120')
    A('v_cvt_pk_bf16_f32 v120, v120, v120')
    A('v_lshlrev_b32 v120, 16, v120')
    A('v_sqrt_f32 v120, v120')
    A('v_cvt_pk_bf16_f32 v120, v116, v120')
    A('v_lshlrev_b32 v121, 2, v1')
    A('v_cmp_eq_u32 vcc, 0, v2')
    A('s_lshl_b32 s21, s20, 2')
    A('s_and_saveexec_b64 s[26:27], vcc')
    A('buffer_store_dword v120, v121, s[16:19], s21 offen')
    A('v_mov_b32 v122, 0')
    A('s_add_u32 s21, s21, 0x8000')
    A('buffer_store_dword v122, v121, s[16:19], s21 offen')
    if STAMP: A('s_mov_b64 exec, -1')
    stamp(A,2)
    if STAMP: A('s_waitcnt vmcnt(0)')
    stamp(A,3)
    stamp_out(A,4,0)
    A('s_endpgm')

    A('K1_MOD:')
    if 'K1_MOD' in SKIP: A('s_endpgm')
    stamp(A,0)
    A('s_setprio 3')
    A(f's_load_dwordx2 s[6:7], s[0:1], {KA["wmod"]}')
    A(f's_load_dwordx2 s[24:25], s[0:1], {KA["c"]}')
    A('s_mov_b32 s23, s3')
    A('s_lshl_b32 s23, s23, 7')
    A('s_waitcnt lgkmcnt(0)')
    srd(A,8,6,576*3456*2)
    srd(A,12,24,1152)
    srd(A,16,4,3456*4,WS['MOD'])
    A('v_lshrrev_b32 v1, 3, v0')
    A('v_and_b32 v2, 7, v0')
    A('v_lshlrev_b32 v3, 1, v1')
    for c in range(18):
        A(f'buffer_load_ushort v{80+c}, v3, s[12:15], 0 offen offset:{c*64}')
    A('v_mul_u32_u24 v4, 6912, v1')
    A('v_lshl_add_u32 v4, v2, 4, v4')
    A('v_add_u32 v4, s23, v4')
    for c in range(18):
        A(f's_mov_b32 s22, {c*32*6912}')
        A(f'buffer_load_dwordx4 v[{8+4*c}:{11+4*c}], v4, s[8:11], s22 offen')
    A('s_waitcnt vmcnt(18)')
    for c in range(18):
        r=80+c
        A(f'v_lshlrev_b32 v{r}, 16, v{r}')
        A(f'v_mul_f32 v100, 0xbfb8aa3b, v{r}')
        A('v_exp_f32 v100, v100')
        A('v_add_f32 v100, 1.0, v100')
        A('v_rcp_f32 v100, v100')
        A(f'v_mul_f32 v{r}, v{r}, v100')
        A(f'v_cvt_pk_bf16_f32 v{r}, v{r}, v{r}')
        A(f'v_lshlrev_b32 v{r}, 16, v{r}')
    for e in range(8): A(f'v_mov_b32 v{104+e}, 0')
    for c in range(18):
        A(f's_waitcnt vmcnt({17-c})')
        for e in range(4):
            unpack(A,100,101,8+4*c+e)
            A(f'v_fmac_f32 v{104+2*e}, v{80+c}, v100')
            A(f'v_fmac_f32 v{105+2*e}, v{80+c}, v101')
    stamp(A,1)
    A('v_lshlrev_b32 v5, 8, v1')
    A('v_lshl_add_u32 v5, v2, 5, v5')
    A('ds_write_b128 v5, v[104:107]')
    A('ds_write_b128 v5, v[108:111] offset:16')
    A('s_waitcnt lgkmcnt(0)')
    A('s_barrier')
    A('v_cmp_gt_u32 vcc, 64, v0')
    A('s_and_saveexec_b64 s[26:27], vcc')
    A('s_cbranch_execz K1_MOD_END')
    A('v_lshlrev_b32 v5, 2, v0')
    for r in range(32):
        A(f'ds_read_b32 v{8+r}, v5 offset:{r*256}')
    A('s_waitcnt lgkmcnt(0)')
    for r in range(16): A(f'v_add_f32 v{8+r}, v{8+r}, v{24+r}')
    for r in range(8): A(f'v_add_f32 v{8+r}, v{8+r}, v{16+r}')
    for r in range(4): A(f'v_add_f32 v{8+r}, v{8+r}, v{12+r}')
    for r in range(2): A(f'v_add_f32 v{8+r}, v{8+r}, v{10+r}')
    A('v_add_f32 v8, v8, v9')
    A('v_cvt_pk_bf16_f32 v8, v8, v8')
    A('v_lshlrev_b32 v8, 16, v8')
    A('s_lshl_b32 s23, s23, 1')
    A('buffer_store_dword v8, v5, s[16:19], s23 offen')
    A('K1_MOD_END:')
    if STAMP:
        A('s_mov_b64 exec, -1')
        stamp(A,2)
        A('s_waitcnt vmcnt(0)')
        stamp(A,3)
        stamp_out(A,4,0)
    A('s_endpgm')

    A('K1_KG:')
    if 'K1_KG' in SKIP: A('s_endpgm')
    stamp(A,0)
    A(f's_load_dwordx4 s[24:27], s[0:1], {KA["lar"]}')
    A(f's_load_dwordx4 s[28:31], s[0:1], {KA["cr"]}')
    A(f's_load_dwordx2 s[32:33], s[0:1], {KA["logdt"]}')
    A('s_mov_b32 s23, s3')
    A('s_lshl_b32 s22, s23, 1')
    A('s_and_b32 s22, s22, 0xfffffffc')
    A('v_and_b32 v1, 63, v0')
    A('v_lshrrev_b32 v2, 4, v0')
    A('v_lshlrev_b32 v3, 4, v2')
    A('s_lshl_b32 s44, s23, 8')
    A('s_waitcnt lgkmcnt(0)')
    A('s_load_dword s34, s[32:33], s22')
    srd(A,8,24,576*128*2)
    A('buffer_load_dwordx4 v[8:11], v3, s[8:11], s44 offen')
    srd(A,12,26,576*128*2)
    A('buffer_load_dwordx4 v[12:15], v3, s[12:15], s44 offen')
    srd(A,16,28,576*128*2)
    A('buffer_load_dwordx4 v[16:19], v3, s[16:19], s44 offen')
    srd(A,36,30,576*128*2)
    A('buffer_load_dwordx4 v[20:23], v3, s[36:39], s44 offen')
    srd(A,40,4,SZ_KF,WS['KF'])
    A('v_and_b32 v4, 15, v0')
    def p_row(tile, vi, vd, t):
        if tile==0:
            A(f'v_lshrrev_b32 v{t}, 3, v{vi}')
            A(f'v_and_b32 v{vd}, 7, v{vi}')
            A(f'v_lshl_add_u32 v{vd}, v{t}, 7, v{vd}')
        elif tile==1:
            A(f'v_lshrrev_b32 v{t}, 2, v{vi}')
            A(f'v_and_b32 v{vd}, 3, v{vi}')
            A(f'v_lshlrev_b32 v{vd}, 1, v{vd}')
            A(f'v_lshl_add_u32 v{vd}, v{t}, 7, v{vd}')
            A(f'v_add_u32 v{vd}, 256, v{vd}')
            A(f'v_lshrrev_b32 v{t}, 1, v{vi}')
            A(f'v_lshlrev_b32 v{t}, 7, v{t}')
            A(f'v_and_b32 v{t+1}, 1, v{vi}')
            A(f'v_lshl_add_u32 v{t}, v{t+1}, 2, v{t}')
            A(f'v_cmp_gt_u32 vcc, 8, v{vi}')
            A(f'v_cndmask_b32 v{vd}, v{t}, v{vd}, vcc')
        else:
            A(f'v_lshlrev_b32 v{vd}, 7, v{vi}')
            A(f'v_add_u32 v{vd}, 1024, v{vd}')
    for t in range(3):
        p_row(t,4,24+2*t,112)
        A(f'v_cvt_f32_u32 v{24+2*t}, v{24+2*t}')
    A('v_lshlrev_b32 v30, 3, v4')
    A('v_cvt_f32_u32 v30, v30')
    A('v_mov_b32 v110, 0x41600000')
    A('v_mov_b32 v111, 0')
    A('v_lshlrev_b32 v5, 3, v0')
    for e in range(8):
        A(f'v_add_u32 v{114+e}, {e}, v5')
        A(f'v_cvt_f32_u32 v{114+e}, v{114+e}')
    for e in range(0,8,2):
        A(f'v_cvt_pk_bf16_f32 v{114+e}, v{114+e}, v{115+e}')
        A(f'v_and_b32 v{115+e}, 0xffff0000, v{114+e}')
        A(f'v_lshlrev_b32 v{114+e}, 16, v{114+e}')
    for e in range(8):
        A(f'v_cvt_u32_f32 v{114+e}, v{114+e}')
        A(f'v_lshlrev_b32 v{114+e}, 1, v{114+e}')
    A('s_waitcnt lgkmcnt(0)')
    A('s_and_b32 s22, s23, 1')
    A('s_lshl_b32 s22, s22, 4')
    A('s_lshr_b32 s34, s34, s22')
    A('s_lshl_b32 s34, s34, 16')
    A(f'v_mov_b32 v112, {LOG2E:#x}')
    A('v_mul_f32 v113, s34, v112')
    A('v_exp_f32 v113, v113')
    A('v_cvt_pk_bf16_f32 v113, v113, v113')
    A('v_lshlrev_b32 v113, 16, v113')
    A('v_mul_f32 v108, 0xbfb8aa3b, v113')
    A(f'v_mul_f32 v109, {INV2PI:#x}, v113')
    stamp(A,1)
    A('s_waitcnt vmcnt(0)')
    stamp(A,2)
    for e in range(4):
        unpack(A,32+4*e,34+4*e,8+e)
        unpack(A,33+4*e,35+4*e,12+e)
        unpack(A,48+4*e,50+4*e,16+e)
        unpack(A,49+4*e,51+4*e,20+e)
    for n in range(8):
        A(f'v_mul_f32 v{32+2*n}, v112, v{32+2*n}')
        A(f'v_exp_f32 v{32+2*n}, v{32+2*n}')
    A('v_max3_f32 v6, |v48|, |v49|, |v50|')
    for n in range(51,63,2): A(f'v_max3_f32 v6, |v{n}|, |v{n+1}|, v6')
    A('v_max_f32 v6, |v63|, v6')
    for n in range(0,8,2):
        A(f'v_cvt_pk_bf16_f32 v{32+2*n}, v{32+2*n}, v{34+2*n}')
        A(f'v_and_b32 v{34+2*n}, 0xffff0000, v{32+2*n}')
        A(f'v_lshlrev_b32 v{32+2*n}, 16, v{32+2*n}')
    for q in range(4): A(f'v_readlane_b32 s{48+q}, v6, {16*q}')
    for n in range(8):
        A(f'v_pk_mul_f32 v[{32+2*n}:{33+2*n}], v[{32+2*n}:{33+2*n}], v[108:109]')
    A('s_max_u32 s48, s48, s49')
    A('s_max_u32 s50, s50, s51')
    A('s_max_u32 s48, s48, s50')
    A('s_lshr_b32 s48, s48, 23')
    A('s_max_u32 s48, s48, 13')
    A('s_min_u32 s48, s48, 254')
    A('s_sub_u32 s50, 267, s48')
    A('s_lshl_b32 s50, s50, 23')
    A('s_mov_b32 s51, s50')
    A('s_sub_u32 s49, s48, 153')
    for n in range(8):
        A(f'v_pk_mul_f32 v[{48+2*n}:{49+2*n}], v[{48+2*n}:{49+2*n}], s[50:51]')
    A('v_ldexp_f32 v113, v113, s49')
    for s in range(8):
        Z=32+2*s; C=48+2*s; r=s&3
        for k in range(3):
            A(f'v_pk_fma_f32 v[{64+2*k}:{65+2*k}], v[{Z}:{Z+1}], v[{24+2*k}:{25+2*k}], v[110:111] op_sel_hi:[1,0,1]')
        A(f'v_pk_mul_f32 v[70:71], v[{Z}:{Z+1}], v[30:31] op_sel_hi:[1,0]')
        for k in range(4): A(f'v_fract_f32 v{65+2*k}, v{65+2*k}')
        for k in range(4):
            A(f'v_exp_f32 v{64+2*k}, v{64+2*k}')
            A(f'v_cos_f32 v{72+2*k}, v{65+2*k}')
            A(f'v_sin_f32 v{73+2*k}, v{65+2*k}')
        for k in range(4):
            A(f'v_pk_mul_f32 v[{72+2*k}:{73+2*k}], v[{72+2*k}:{73+2*k}], v[{64+2*k}:{65+2*k}] op_sel_hi:[1,0]')
        for k in range(3):
            A(f'v_cvt_pk_f16_f32 v{80+4*k+r}, v{72+2*k}, v{73+2*k}')
        A(f'v_pk_mul_f32 v[64:65], v[78:79], v[{C}:{C+1}] op_sel_hi:[1,0] neg_hi:[1,0]')
        A(f'v_pk_fma_f32 v[64:65], v[78:79], v[{C}:{C+1}], v[64:65] op_sel:[1,1,0] op_sel_hi:[0,1,1] neg_lo:[1,0,0] neg_hi:[1,0,0]')
        A(f'v_cvt_pk_f16_f32 v{92+r}, v64, v65')
        if r==3:
            for k in range(3):
                c = '0' if s==3 else f'v[{96+4*k}:{99+4*k}]'
                A(f'v_mfma_f32_16x16x32_f16 v[{96+4*k}:{99+4*k}], v[{80+4*k}:{83+4*k}], v[92:95], {c}')
    stamp(A,3)
    A('v_lshrrev_b32 v5, 6, v0')
    A('v_mul_u32_u24 v5, 3072, v5')
    A('v_lshl_add_u32 v5, v1, 4, v5')
    A('v_readfirstlane_b32 s45, v0')
    A('s_lshr_b32 s45, s45, 6')
    A('v_lshrrev_b32 v6, 4, v1')
    A('v_lshlrev_b32 v6, 2, v6')
    for r in range(1,4): A(f'v_add_u32 v{32+r}, {r}, v6')
    A('v_mov_b32 v32, v6')
    for k in range(6):
        A(f'v_pk_mul_f32 v[{96+2*k}:{97+2*k}], v[{96+2*k}:{97+2*k}], v[112:113] op_sel:[0,1] op_sel_hi:[1,1]')
    for k in range(3):
        A(f'ds_write_b128 v5, v[{96+4*k}:{99+4*k}] offset:{k*1024}')
    for t in range(3):
        A(f's_cmp_lg_u32 s45, {t}')
        A(f's_cbranch_scc1 K1_KG_T{t}')
        for r in range(4): p_row(t,32+r,36+r,40)
        A(f'K1_KG_T{t}:')
    A('s_waitcnt lgkmcnt(0)')
    A('s_barrier')
    A('s_cmp_ge_u32 s45, 3')
    A('s_cbranch_scc1 K1_KG_SKIP')
    A('v_lshlrev_b32 v5, 4, v0')
    for w in range(4):
        A(f'ds_read_b128 v[{8+4*w}:{11+4*w}], v5 offset:{w*3072}')
    for r in range(4):
        A(f'v_lshl_add_u32 v{36+r}, v4, 3, v{36+r}')
        A(f'v_lshlrev_b32 v{36+r}, 1, v{36+r}')
    A('s_waitcnt lgkmcnt(0)')
    A('v_pk_add_f32 v[8:9], v[8:9], v[12:13]')
    A('v_pk_add_f32 v[10:11], v[10:11], v[14:15]')
    A('v_pk_add_f32 v[16:17], v[16:17], v[20:21]')
    A('v_pk_add_f32 v[18:19], v[18:19], v[22:23]')
    A('v_pk_add_f32 v[8:9], v[8:9], v[16:17]')
    A('v_pk_add_f32 v[10:11], v[10:11], v[18:19]')
    A('v_cvt_pk_bf16_f32 v8, v8, v9')
    A('v_cvt_pk_bf16_f32 v10, v10, v11')
    A('ds_write_b16 v36, v8 offset:12288')
    A('ds_write_b16_d16_hi v37, v8 offset:12288')
    A('ds_write_b16 v38, v10 offset:12288')
    A('ds_write_b16_d16_hi v39, v10 offset:12288')
    A('K1_KG_SKIP:')
    A('s_waitcnt lgkmcnt(0)')
    A('s_barrier')
    stamp(A,4)
    for e in range(8):
        A(f'ds_read_u16 v{24+e}, v{114+e} offset:12288')
    A('v_lshlrev_b32 v5, 4, v0')
    A(f's_mul_i32 s44, s23, {KF_CS}')
    A('v_mov_b32 v40, 0\nv_mov_b32 v41, 0\nv_mov_b32 v42, 0\nv_mov_b32 v43, 0')
    A('s_waitcnt lgkmcnt(0)')
    for e in range(4):
        A(f'v_lshl_or_b32 v{16+e}, v{25+2*e}, 16, v{24+2*e}')
    A(f'buffer_store_dwordx4 v[16:19], v5, s[40:43], s44 offen offset:32 {POL["KF"]}')
    A('v_cmp_gt_u32 vcc, 2, v0')
    A('s_and_saveexec_b64 s[56:57], vcc')
    A('s_cbranch_execz K1_KG_END')
    A('buffer_store_dwordx4 v[40:43], v5, s[40:43], s44 offen')
    A('K1_KG_END:')
    if STAMP:
        A('s_mov_b64 exec, -1')
        stamp(A,5)
        stamp_out(A,6,0)
    A('s_endpgm')
    return A.text(), kd('k1_kernel',128)

K2_W1=72; K2_CV=576
K2_GRID=K2_W1+K2_CV+K1_W2
CV_U=0
CV_P=4608
CV_E=4608
W1S=80
W1_TAB=576*W1S
K2_LDS=max(CV_E+33024, 32*RS)

def load_tile_g(A,delta=False):
    A('v_lshrrev_b32 v1, 3, v0')
    A('v_and_b32 v2, 7, v0')
    A('v_add_u32 v3, s20, v1')
    if delta:
        A('v_lshrrev_b32 v4, 4, v1')
        A('v_mul_u32_u24 v4, s21, v4')
        A('v_add_u32 v3, v3, v4')
    A('v_mul_u32_u24 v3, 1152, v3')
    A('v_lshl_add_u32 v3, v2, 4, v3')
    for c in range(9):
        A(f'buffer_load_dwordx4 v[{8+4*c}:{11+4*c}], v3, s[8:11], 0 offen offset:{c*128}')
    A(f'v_mul_u32_u24 v4, {RS}, v1')
    A('v_lshl_add_u32 v4, v2, 4, v4')
def write_tile_g(A,base):
    for c in range(9):
        A(f'ds_write_b128 v4, v[{base+4*c}:{base+3+4*c}] offset:{c*128}')
def tr_tile_g(A,rows_h):
    for q in range(9):
        A(f'ds_read_b64_tr_b16 v[{8+4*q}:{9+4*q}], v5 offset:{q*32}')
        A(f'ds_read_b64_tr_b16 v[{10+4*q}:{11+4*q}], v5 offset:{q*32+rows_h*RS}')

def gen_k2():
    A=Asm()
    A('k2_kernel:')
    A(f's_load_dwordx2 s[4:5], s[0:1], {KA["ws"]}')
    A('s_mov_b32 s3, s2')
    A(f's_cmp_lt_u32 s3, {K2_CV}')
    A('s_cbranch_scc1 K2_CV')
    A(f's_sub_u32 s3, s3, {K2_CV}')
    A(f's_cmp_lt_u32 s3, {K2_W1}')
    A('s_cbranch_scc1 K2_W1')
    A(f's_sub_u32 s3, s3, {K2_W1}')
    A(f's_cmp_lt_u32 s3, {K1_W2}')
    A('s_cbranch_scc1 K1_W2')
    A('s_endpgm')
    A('K2_CV:')
    if 'K2_CV' in SKIP: A('s_endpgm')
    stamp(A,0)
    A(f's_load_dwordx2 s[6:7], s[0:1], {KA["dskip"]}')
    A('s_mov_b32 s23, s3')
    A('s_lshl_b32 s22, s23, 1')
    A('s_and_b32 s22, s22, 0xfffffffc')
    A('s_lshl_b32 s24, s23, 2')
    A('s_add_u32 s25, s24, 2304')
    A('s_add_u32 s26, s24, 4608')
    A('s_add_u32 s27, s24, 9216')
    A('s_lshl_b32 s44, s23, 12')
    A(f's_mul_i32 s45, s23, {KF_CS}')
    A('v_lshlrev_b32 v1, 4, v0')
    A('v_lshlrev_b32 v2, 5, v0')
    A('v_and_b32 v20, 15, v0')
    A('v_bfe_u32 v21, v0, 4, 2')
    A('v_lshrrev_b32 v22, 6, v0')
    A('s_waitcnt lgkmcnt(0)')
    stamp(A,8)
    A('s_load_dword s34, s[6:7], s22')
    A('s_load_dword s35, s[4:5], s24')
    A('s_load_dword s36, s[4:5], s25')
    A('s_load_dword s37, s[4:5], s26')
    A('s_load_dword s33, s[4:5], s27')
    srd(A,16,4,SZ_KF,WS['KF'])
    WA=72; WB=80; OA=88; OB=96
    A(f'buffer_load_dwordx4 v[{WA}:{WA+3}], v1, s[16:19], s45 offen offset:16')
    A(f'buffer_load_dwordx4 v[{WA+4}:{WA+7}], v1, s[16:19], s45 offen offset:32')
    A(f'buffer_load_dwordx4 v[{WB}:{WB+3}], v1, s[16:19], s45 offen offset:20')
    A(f'buffer_load_dwordx4 v[{WB+4}:{WB+7}], v1, s[16:19], s45 offen offset:36')
    srd(A,8,4,SZ_XT,WS['XT'])
    A('buffer_load_dwordx4 v[12:15], v1, s[8:11], s44 offen')
    srd(A,12,4,8192,WS['STAT'])
    A('buffer_load_dwordx4 v[40:43], v2, s[12:15], 0 offen')
    A('buffer_load_dwordx4 v[44:47], v2, s[12:15], 0 offen offset:16')
    srd(A,40,4,SZ_XT,WS['X1T'])
    stamp(A,9)
    A('v_mov_b32 v16, 0\nv_mov_b32 v17, 0\nv_mov_b32 v18, 0\nv_mov_b32 v19, 0')
    A(f'v_add_u32 v3, {CV_U+4096}, v1')
    A(f'v_add_u32 v23, {CV_E-512}, v1')
    A('v_cmp_gt_u32 vcc, 32, v0')
    A('v_cndmask_b32 v3, v23, v3, vcc')
    A('v_cmp_gt_u32 vcc, 40, v0')
    A('s_and_saveexec_b64 s[46:47], vcc')
    A('ds_write_b128 v3, v[16:19]')
    A('s_mov_b64 exec, s[46:47]')
    A('v_lshlrev_b32 v23, 7, v22')
    A('v_lshl_add_u32 v23, v21, 4, v23')
    A('v_lshlrev_b32 v25, 5, v20')
    A('v_sub_u32 v23, v23, v25')
    A(f'v_add_u32 v23, {CV_U+480}, v23')
    A(f'v_sub_u32 v25, {CV_U+4080}, v1')
    A('v_lshl_add_u32 v24, v21, 3, v20')
    A('v_lshl_add_u32 v24, v22, 6, v24')
    A('v_add_u32 v24, 1, v24')
    for res in range(2):
        if res: A('v_add_u32 v24, 32, v24')
        A('v_bfe_u32 v30, v24, 3, 3')
        A(f'v_xor_b32 v{30+res}, v24, v30')
        A(f'v_lshlrev_b32 v{30+res}, 4, v{30+res}')
        if res==0: A('v_mov_b32 v29, v30')
    A('v_mov_b32 v30, v29')
    A('v_add_u32 v26, 1, v0')
    A('v_and_b32 v27, 7, v26')
    A('v_lshlrev_b32 v27, 4, v27')
    A('v_lshlrev_b32 v26, 7, v26')
    for sft in range(8):
        A(f'v_xor_b32 v{104+sft}, {sft*16}, v27')
        A(f'v_add_u32 v{104+sft}, v26, v{104+sft}')
    stamp(A,1)
    A('s_waitcnt vmcnt(3)')
    stamp(A,2)
    for j in range(6):
        A(f'v_alignbit_b32 v{OA+j}, v{WA+j+1}, v{WA+j}, 16')
        A(f'v_alignbit_b32 v{OB+j}, v{WB+j+1}, v{WB+j}, 16')
    for sft,r in enumerate([WA,OA,WB,OB,WA+2,OA+2,WB+2,OB+2]):
        A(f'ds_write_b128 v{104+sft}, v[{r}:{r+3}] offset:{CV_E}')
    A('v_cmp_eq_u32 vcc, 255, v0')
    A('v_mov_b32 v3, 0')
    A('s_and_saveexec_b64 s[46:47], vcc')
    A(f'ds_write_b128 v3, v[{WA+4}:{WA+7}] offset:{CV_E+257*128+16}')
    A('s_mov_b64 exec, s[46:47]')
    A('s_waitcnt lgkmcnt(0)')
    A('s_and_b32 s22, s23, 1')
    A('s_lshl_b32 s22, s22, 4')
    A('s_lshr_b32 s34, s34, s22')
    A('s_lshl_b32 s34, s34, 16')
    A('s_mov_b32 s38, s35')
    A('s_mov_b32 s39, s35')
    A('v_add_f32 v26, 1.0, s36')
    A('v_cvt_pk_bf16_f32 v26, v26, v26')
    A('v_lshlrev_b32 v26, 16, v26')
    A('s_waitcnt vmcnt(0)')
    H=32; X=48; M=56; SD=64
    for e in range(4): unpack(A,X+2*e,X+1+2*e,12+e)
    for e in range(8): unpack(A,M+e,SD+e,40+e)
    for e in range(8): A(f'v_rcp_f32 v{SD+e}, v{SD+e}')
    for e in range(4): A(f'v_pk_add_f32 v[{H+2*e}:{H+1+2*e}], v[{X+2*e}:{X+1+2*e}], v[{M+2*e}:{M+1+2*e}] neg_lo:[0,1] neg_hi:[0,1]')
    def rnd(base,tmp):
        for e in range(4): A(f'v_cvt_pk_bf16_f32 v{tmp+e}, v{base+2*e}, v{base+2*e+1}')
        for e in range(4): unpack(A,base+2*e,base+2*e+1,tmp+e)
    rnd(H,4)
    for e in range(4): A(f'v_pk_mul_f32 v[{H+2*e}:{H+1+2*e}], v[{H+2*e}:{H+1+2*e}], v[{SD+2*e}:{SD+1+2*e}]')
    rnd(H,4)
    for e in range(4): A(f'v_pk_mul_f32 v[{H+2*e}:{H+1+2*e}], v[{H+2*e}:{H+1+2*e}], v[26:27] op_sel_hi:[1,0]')
    rnd(H,4)
    for e in range(4): A(f'v_pk_add_f32 v[{H+2*e}:{H+1+2*e}], v[{H+2*e}:{H+1+2*e}], s[38:39]')
    for e in range(4): A(f'v_cvt_pk_bf16_f32 v{4+e}, v{H+7-2*e}, v{H+6-2*e}')
    A('ds_write_b128 v25, v[4:7]')
    for e in range(4): unpack(A,H+7-2*e,H+6-2*e,4+e)
    for e in range(8): A(f'v_mul_f32 v{H+e}, s34, v{H+e}')
    A('v_and_b32 v27, 63, v0')
    A('v_lshlrev_b32 v27, 4, v27')
    A('v_lshl_add_u32 v27, v22, 13, v27')
    A('v_lshrrev_b32 v28, 5, v0')
    A('v_lshlrev_b32 v28, 10, v28')
    A('v_bfe_u32 v29, v0, 1, 4')
    A('v_lshl_add_u32 v28, v29, 4, v28')
    A('v_and_b32 v29, 1, v0')
    A('v_lshl_add_u32 v28, v29, 9, v28')
    A('s_waitcnt lgkmcnt(0)')
    A('s_barrier')
    stamp(A,3)
    Y=56; V=88; G=120
    for res in range(2):
        for n in range(8):
            A(f'ds_read_b128 v[{V+4*n}:{V+3+4*n}], v23 offset:{(7-n)*512+res*64}')
            A(f'ds_read_b128 v[{G+4*n}:{G+3+4*n}], v{30+res} offset:{CV_E+n*4096}')
        if res==0: rnd(H,4)
        done=set()
        for lev in range(8):
            A(f's_waitcnt lgkmcnt({2*(7-lev)})')
            if res==1 and lev==7: A('s_barrier')
            for q in range(lev+1):
                for n1 in range(lev+1):
                    if max(q,n1)!=lev or q+n1>7: continue
                    n=q+n1
                    c = f'v[{Y+4*n}:{Y+3+4*n}]' if (res or n in done) else '0'
                    done.add(n)
                    A(f'v_mfma_f32_16x16x32_bf16 v[{Y+4*n}:{Y+3+4*n}], v[{G+4*q}:{G+3+4*q}], v[{V+4*n1}:{V+3+4*n1}], {c}')
    stamp(A,4)
    for n in range(8):
        A(f'ds_write_b128 v27, v[{Y+4*n}:{Y+3+4*n}] offset:{CV_P+n*1024}')
    A('v_lshrrev_b32 v2, 3, v0')
    A('v_mul_u32_u24 v2, 73728, v2')
    A('v_and_b32 v3, 7, v0')
    A('v_lshl_add_u32 v2, v3, 4, v2')
    A('s_lshl_b32 s44, s23, 7')
    A('s_mov_b32 s38, s37')
    A('s_mov_b32 s39, s37')
    A('s_waitcnt lgkmcnt(0)')
    A('s_barrier')
    stamp(A,5)
    S=88
    for w in range(4):
        A(f'ds_read_b128 v[{S+8*w}:{S+3+8*w}], v28 offset:{CV_P+w*8192}')
        A(f'ds_read_b128 v[{S+4+8*w}:{S+7+8*w}], v28 offset:{CV_P+w*8192+256}')
    A('s_waitcnt lgkmcnt(0)')
    for e in range(0,8,2):
        A(f'v_pk_add_f32 v[{S+e}:{S+1+e}], v[{S+e}:{S+1+e}], v[{S+8+e}:{S+9+e}]')
        A(f'v_pk_add_f32 v[{S+16+e}:{S+17+e}], v[{S+16+e}:{S+17+e}], v[{S+24+e}:{S+25+e}]')
    for e in range(0,8,2):
        A(f'v_pk_add_f32 v[{S+e}:{S+1+e}], v[{S+e}:{S+1+e}], v[{S+16+e}:{S+17+e}]')
    rnd(S,4)
    for e in range(0,8,2): A(f'v_pk_add_f32 v[{S+e}:{S+1+e}], v[{S+e}:{S+1+e}], v[{H+e}:{H+1+e}]')
    rnd(S,4)
    for e in range(0,8,2): A(f'v_pk_mul_f32 v[{S+e}:{S+1+e}], v[{S+e}:{S+1+e}], s[38:39]')
    rnd(S,4)
    for e in range(0,8,2): A(f'v_pk_add_f32 v[{S+e}:{S+1+e}], v[{S+e}:{S+1+e}], v[{X+e}:{X+1+e}]')
    for e in range(4): A(f'v_cvt_pk_bf16_f32 v{4+e}, v{S+2*e}, v{S+1+2*e}')
    A(f'buffer_store_dwordx4 v[4:7], v2, s[40:43], s44 offen {POL["X1"]}')
    srd(A,48,4,SZ_XT,WS['X1S'])
    A('v_add_f32 v26, 1.0, s33')
    A('v_cvt_pk_bf16_f32 v26, v26, v26')
    A('v_lshlrev_b32 v26, 16, v26')
    for e in range(4): unpack(A,S+2*e,S+1+2*e,4+e)
    for e in range(4): A(f'v_pk_mul_f32 v[{S+2*e}:{S+1+2*e}], v[{S+2*e}:{S+1+2*e}], v[26:27] op_sel_hi:[1,0]')
    for e in range(4): A(f'v_cvt_pk_bf16_f32 v{8+e}, v{S+2*e}, v{S+1+2*e}')
    A(f'buffer_store_dwordx4 v[8:11], v2, s[48:51], s44 offen {POL["X1"]}')
    stamp(A,6)
    if STAMP: A('s_waitcnt vmcnt(0)')
    stamp(A,7)
    stamp_out(A,10,1)
    A('s_endpgm')

    A('K2_W1:')
    if 'K2_W1' in SKIP: A('s_endpgm')
    A(f's_load_dwordx2 s[6:7], s[0:1], {KA["w1"]}')
    A('s_and_b32 s23, s3, 7')
    A('s_mul_i32 s23, s23, 9')
    A('s_lshr_b32 s24, s3, 3')
    A('s_add_u32 s23, s23, s24')
    A('s_lshl_b32 s23, s23, 7')
    A('v_lshrrev_b32 v1, 3, v0')
    A('v_and_b32 v2, 7, v0')
    A('v_mul_u32_u24 v4, 9216, v1')
    A('v_lshl_add_u32 v4, v2, 4, v4')
    A('v_add_u32 v4, s23, v4')
    A('v_lshlrev_b32 v3, 2, v0')
    A('s_waitcnt lgkmcnt(0)')
    srd(A,16,4,3456*4,WS['MOD'])
    for c in range(3):
        A(f's_mov_b32 s22, {(4*576+256*c)*4}')
        A(f'buffer_load_dword v{100+2*c}, v3, s[16:19], s22 offen')
        A(f's_mov_b32 s22, {(3*576+256*c)*4}')
        A(f'buffer_load_dword v{101+2*c}, v3, s[16:19], s22 offen')
    srd(A,8,6,SZ_W)
    for c in range(18):
        A(f's_mov_b32 s22, {c*32*9216}')
        A(f'buffer_load_dwordx4 v[{8+4*c}:{11+4*c}], v4, s[8:11], s22 offen')
    srd(A,36,4,4608*4,WS['CS'])
    srd(A,40,4,4608*4,WS['BIAS'])
    A('v_lshlrev_b32 v5, 3, v0')
    A('s_waitcnt vmcnt(18)')
    for c in range(3):
        A(f'v_add_f32 v{100+2*c}, 1.0, v{100+2*c}')
        A(f'v_cvt_pk_bf16_f32 v{100+2*c}, v{100+2*c}, v{100+2*c}')
        A(f'v_lshlrev_b32 v{100+2*c}, 16, v{100+2*c}')
        A(f'ds_write_b64 v5, v[{100+2*c}:{101+2*c}] offset:{2048*c}')
    A('v_lshlrev_b32 v6, 3, v1')
    A('s_waitcnt lgkmcnt(0)')
    A('s_barrier')
    for c in range(18):
        A(f'ds_read_b64 v[{108+2*c}:{109+2*c}], v6 offset:{c*256}')
    CA=80
    for c in range(18):
        A(f's_waitcnt vmcnt({17-c}) lgkmcnt({min(15,17-c)})')
        for e in range(4):
            t=96+2*(e&1)
            unpack(A,t,t+1,8+4*c+e)
            k=108+2*c
            if c==0:
                A(f'v_pk_mul_f32 v[{CA+2*e}:{CA+2*e+1}], v[{t}:{t+1}], v[{k}:{k+1}] op_sel_hi:[1,0]')
                A(f'v_pk_mul_f32 v[{CA+8+2*e}:{CA+9+2*e}], v[{t}:{t+1}], v[{k}:{k+1}] op_sel:[0,1] op_sel_hi:[1,1]')
            else:
                A(f'v_pk_fma_f32 v[{CA+2*e}:{CA+2*e+1}], v[{t}:{t+1}], v[{k}:{k+1}], v[{CA+2*e}:{CA+2*e+1}] op_sel_hi:[1,0,1]')
                A(f'v_pk_fma_f32 v[{CA+8+2*e}:{CA+9+2*e}], v[{t}:{t+1}], v[{k}:{k+1}], v[{CA+8+2*e}:{CA+9+2*e}] op_sel:[0,1,0] op_sel_hi:[1,1,1]')
    A('v_lshlrev_b32 v5, 9, v1')
    A('v_lshl_add_u32 v5, v2, 5, v5')
    A(f'ds_write_b128 v5, v[{CA}:{CA+3}] offset:8192')
    A(f'ds_write_b128 v5, v[{CA+4}:{CA+7}] offset:8208')
    A(f'ds_write_b128 v5, v[{CA+8}:{CA+11}] offset:{8192+256}')
    A(f'ds_write_b128 v5, v[{CA+12}:{CA+15}] offset:{8192+272}')
    A('s_waitcnt lgkmcnt(0)')
    A('s_barrier')
    A('v_readfirstlane_b32 s45, v0')
    A('s_cmp_ge_u32 s45, 128')
    A('s_cbranch_scc1 K2_CS_END')
    for r in range(32):
        A(f'ds_read_b32 v{8+r}, v3 offset:{8192+r*512}')
    A('v_and_b32 v6, 63, v0')
    A('v_lshlrev_b32 v6, 2, v6')
    A('s_lshl_b32 s23, s23, 1')
    A('s_waitcnt lgkmcnt(0)')
    for st in (16,8,4,2):
        for o in range(0,st,2):
            A(f'v_pk_add_f32 v[{8+o}:{9+o}], v[{8+o}:{9+o}], v[{8+o+st}:{9+o+st}]')
    A('v_add_f32 v8, v8, v9')
    A('s_cmp_ge_u32 s45, 64')
    A('s_cbranch_scc1 K2_CS_B')
    A('buffer_store_dword v8, v6, s[36:39], s23 offen')
    A('s_endpgm')
    A('K2_CS_B:')
    A('v_mul_f32 v8, 0xbfb8aa3b, v8')
    A('buffer_store_dword v8, v6, s[40:43], s23 offen')
    A('K2_CS_END:')
    A('s_endpgm')

    A('K1_W2:')
    if 'K1_W2' in SKIP: A('s_endpgm')
    stamp(A,0)
    A(f's_load_dwordx2 s[6:7], s[0:1], {KA["w2"]}')
    A('s_mov_b32 s23, s3')
    A('s_mul_i32 s24, s23, 57')
    A('s_lshr_b32 s24, s24, 9')
    A('s_mul_i32 s25, s24, 9')
    A('s_sub_u32 s25, s23, s25')
    A('s_mul_i32 s24, s24, 18')
    A('s_and_b32 s27, s25, 3')
    A('s_lshl_b32 s26, s27, 1')
    A('s_cmp_eq_u32 s27, 3')
    A('s_addc_u32 s26, s26, 0')
    A('s_cmp_ge_u32 s25, 4')
    A('s_cselect_b32 s27, 9, 0')
    A('s_add_u32 s26, s26, s27')
    A('s_cmp_eq_u32 s25, 8')
    A('s_cselect_b32 s26, 6, s26')
    A('s_cselect_b32 s21, 128, 0')
    A('s_add_u32 s24, s24, s26')
    A('s_lshl_b32 s20, s24, 4')
    A('s_waitcnt lgkmcnt(0)')
    srd(A,8,6,SZ_W)
    srd(A,12,4,SZ_W,WS['W2F'])
    load_tile_g(A,True)
    A('v_and_b32 v116, 63, v0')
    A('v_lshrrev_b32 v117, 6, v0')
    A('v_lshrrev_b32 v120, 2, v116')
    A(f'v_mul_u32_u24 v5, {RS}, v120')
    A('v_and_b32 v120, 3, v116')
    A('v_lshl_add_u32 v5, v120, 3, v5')
    A('v_mul_u32_u24 v120, 288, v117')
    A('v_add_u32 v5, v5, v120')
    A('v_mul_u32_u24 v6, 9, v117')
    A('s_mul_i32 s24, s23, 36')
    A('v_add_u32 v6, s24, v6')
    A('v_lshl_add_u32 v6, v6, 6, v116')
    A('v_lshlrev_b32 v6, 4, v6')
    A('s_waitcnt vmcnt(0)')
    stamp(A,1)
    write_tile_g(A,8)
    A('s_waitcnt lgkmcnt(0)')
    A('s_barrier')
    tr_tile_g(A,16)
    A('s_waitcnt lgkmcnt(0)')
    for q in range(9):
        A(f's_mov_b32 s22, {q*1024}')
        A(f'buffer_store_dwordx4 v[{8+4*q}:{11+4*q}], v6, s[12:15], s22 offen {POL["W2F"]}')
    stamp(A,2)
    if STAMP: A('s_waitcnt vmcnt(0)')
    stamp(A,3)
    stamp_out(A,4,1)
    A('s_endpgm')

    return A.text(), kd('k2_kernel',152)

NOSTAT=bool(os.environ.get('NOSTAT'))
def interleave(A, mf, fill, per=None):
    n=len(mf); m=len(fill); k=0
    for i,x in enumerate(mf):
        A(x)
        tgt=(i+1)*m//n
        while k<tgt:
            A(fill[k]); k+=1
    while k<m:
        A(fill[k]); k+=1

K3_GRID=256
K3_A0=81920; K3_A1=49152; K3_CSL=155648; K3_LDS=156800
class VM:
    def __init__(s): s.q=[]
    def add(s,tag,n=1): s.q+= [tag]*n
    def after(s,tag):
        idx=max(i for i,t in enumerate(s.q) if t==tag)
        return min(63,len(s.q)-1-idx)

def wave_sum(A,r,t):
    A(f'v_add_f32_dpp v{r}, v{r}, v{r} quad_perm:[1,0,3,2] row_mask:0xf bank_mask:0xf')
    A(f'v_add_f32_dpp v{r}, v{r}, v{r} quad_perm:[2,3,0,1] row_mask:0xf bank_mask:0xf')
    A(f'v_add_f32_dpp v{r}, v{r}, v{r} row_half_mirror row_mask:0xf bank_mask:0xf')
    A(f'v_add_f32_dpp v{r}, v{r}, v{r} row_mirror row_mask:0xf bank_mask:0xf')
    A(f'v_mov_b32 v{t}, v{r}')
    A(f'v_permlane16_swap_b32 v{r}, v{t}')
    A(f'v_add_f32 v{r}, v{r}, v{t}')
    A(f'v_mov_b32 v{t}, v{r}')
    A(f'v_permlane32_swap_b32 v{r}, v{t}')
    A(f'v_add_f32 v{r}, v{r}, v{t}')

def row_stat(A,X,r):
    for c in range(9): A(f'v_lshlrev_b32 v{X+c}, 16, v{X+c}')
    A(f'v_add_f32 v{r}, v{X}, v{X+1}')
    for c in range(2,9): A(f'v_add_f32 v{r}, v{r}, v{X+c}')
    wave_sum(A,r,r+1)
    A(f'v_mul_f32 v{r}, 0x3ae38e39, v{r}')
    for c in range(9): A(f'v_sub_f32 v{X+c}, v{X+c}, v{r}')
    A(f'v_mul_f32 v{r+2}, v{X}, v{X}')
    for c in range(1,9): A(f'v_fmac_f32 v{r+2}, v{X+c}, v{X+c}')
    wave_sum(A,r+2,r+1)
    q=r+2
    A(f'v_mul_f32 v{q}, 0x3ae38e39, v{q}')
    A(f'v_cvt_pk_bf16_f32 v{q}, v{q}, v{q}')
    A(f'v_lshlrev_b32 v{q}, 16, v{q}')
    A(f'v_add_f32 v{q}, 0x3727c5ac, v{q}')
    A(f'v_cvt_pk_bf16_f32 v{q}, v{q}, v{q}')
    A(f'v_lshlrev_b32 v{q}, 16, v{q}')
    A(f'v_sqrt_f32 v{q}, v{q}')
    A(f'v_cvt_pk_bf16_f32 v{r}, v{r}, v{q}')

K3_GRID=512; K3_NS=4; K3_STG=17408; K3_CSL=K3_NS*K3_STG; K3_SJ=K3_CSL+1152; K3_LDS=K3_SJ+9216
def gen_k3():
    A=Asm(); vm=VM()
    A('k3_kernel:')
    A(f's_cmp_ge_u32 s2, {K3_GRID}')
    A('s_cbranch_scc1 K3_END')
    stamp(A,0)
    A(f's_load_dwordx2 s[4:5], s[0:1], {KA["ws"]}')
    A(f's_load_dwordx2 s[6:7], s[0:1], {KA["w1"]}')
    A('s_getreg_b32 s23, hwreg(HW_REG_HW_ID, 0, 1)')
    A('s_setprio 2')
    A('s_cmp_eq_u32 s23, 0')
    A('s_cbranch_scc0 K3_LOW')
    A('s_setprio 3')
    A('K3_LOW:')
    A('s_lshr_b32 s20, s2, 5')
    A('s_and_b32 s21, s2, 7')
    A('s_lshl_b32 s21, s21, 2')
    A('s_bfe_u32 s23, s2, 0x20003')
    A('s_add_u32 s21, s21, s23')
    ACC=64; AF=136; BF=208; T=224; CB=[32,40]
    t0,t1,t2,t3,G,I=48,49,50,51,52,53
    A('v_and_b32 v1, 63, v0')
    A('v_lshrrev_b32 v2, 6, v0')
    A('v_readfirstlane_b32 s22, v2')
    A('v_lshlrev_b32 v3, 4, v1')
    A(f'v_lshrrev_b32 v{G}, 4, v1')
    A(f'v_and_b32 v{I}, 15, v1')
    A('v_lshrrev_b32 v8, 3, v1')
    A('v_lshlrev_b32 v8, 7, v8')
    A(f'v_and_b32 v{t0}, 7, v1')
    A(f'v_lshlrev_b32 v{t1}, 1, v{G}')
    A(f'v_xor_b32 v{t0}, v{t0}, v{t1}')
    A(f'v_lshl_add_u32 v8, v{t0}, 4, v8')
    A('s_lshl_b32 s23, s20, 1')
    A('s_lshr_b32 s27, s22, 1')
    A('s_add_u32 s23, s23, s27')
    A('s_mul_i32 s23, s23, 73728')
    A('s_and_b32 s27, s22, 1')
    A('s_lshl_b32 s27, s27, 11')
    A('s_add_u32 s23, s23, s27')
    A('v_add_u32 v8, s23, v8')
    A('s_mul_i32 s24, s21, 288')
    A(f'v_mov_b32 v{t3}, 144')
    A(f'v_mad_u32_u24 v{t0}, v2, v{t3}, v1')
    for i in range(3):
        if i: A(f'v_add_u32 v{t0}, 64, v{t0}')
        A(f'v_mul_u32_u24 v{t1}, 3641, v{t0}')
        A(f'v_lshrrev_b32 v{t1}, 16, v{t1}')
        A(f'v_mul_u32_u24 v{t2}, 18, v{t1}')
        A(f'v_sub_u32 v{t2}, v{t0}, v{t2}')
        A(f'v_mul_u32_u24 v{t1}, 9216, v{t1}')
        A(f'v_lshl_add_u32 v{4+i}, v{t2}, 4, v{t1}')
        A(f'v_add_u32 v{4+i}, s24, v{4+i}')
    A('s_mul_i32 s25, s22, 2304')
    A('s_lshl_b32 s26, s22, 11')
    A('s_add_u32 s26, s26, 9216')
    A('s_lshl_b32 s33, s22, 10')
    A('s_lshl_b32 s36, s20, 7')
    A('s_lshl_b32 s37, s21, 2')
    A('s_add_u32 s36, s36, s37')
    A('s_lshr_b32 s37, s36, 6')
    A('s_mul_i32 s37, s37, 73728')
    A('s_and_b32 s38, s36, 56')
    A('s_lshl_b32 s38, s38, 1')
    A('s_add_u32 s37, s37, s38')
    A('s_add_u32 s36, s36, s22')
    A('v_lshlrev_b32 v22, 7, v0')
    A('v_lshlrev_b32 v23, 2, v0')
    A('s_waitcnt lgkmcnt(0)')
    srd(A,8,6,SZ_W)
    srd(A,12,4,SZ_XT,WS['X1S'])
    def dma(ks):
        st=(ks%K3_NS)*K3_STG; vm.add(f'g{ks}',5)
        return [f's_add_u32 m0, s26, {st}\ns_mov_b32 s31, {ks*4096}\nbuffer_load_dwordx4 v8, s[12:15], s31 offen lds',
                'buffer_load_dwordx4 v8, s[12:15], s31 offen offset:1024 lds',
                f's_add_u32 m0, s25, {st}\ns_mov_b32 s30, {ks*32*9216}\nbuffer_load_dwordx4 v4, s[8:11], s30 offen lds',
                f's_add_u32 m0, s25, {st+1024}\ns_nop 0\nbuffer_load_dwordx4 v5, s[8:11], s30 offen lds',
                f's_add_u32 m0, s25, {st+2048}\ns_mov_b64 exec, 0xffff\nbuffer_load_dwordx4 v6, s[8:11], s30 offen lds\ns_mov_b64 exec, -1']
    for x in dma(0): A(x)
    srd(A,40,4,SZ_XT,WS['X1T'])
    A(f's_add_u32 m0, s33, {K3_SJ}')
    A('buffer_load_dwordx4 v22, s[40:43], s37 offen lds'); vm.add('sj')
    A(f's_add_u32 m0, s33, {K3_SJ+4096}')
    A('s_add_u32 s38, s37, 32768')
    A('buffer_load_dwordx4 v22, s[40:43], s38 offen lds'); vm.add('sj')
    A('s_lshl_b32 s38, s22, 8')
    A(f's_add_u32 m0, s38, {K3_SJ+8192}')
    A('s_lshl_b32 s38, s22, 11')
    A('s_add_u32 s38, s38, s37')
    A('s_add_u32 s38, s38, 65536')
    A(f'v_lshlrev_b32 v{t0}, 7, v1')
    A('s_mov_b64 exec, 0xffff')
    A(f'buffer_load_dwordx4 v{t0}, s[40:43], s38 offen lds'); vm.add('sj')
    A('s_mov_b64 exec, -1')
    srd(A,44,4,0x10000+4608*4,WS['CS'])
    A('s_mul_i32 s30, s21, 576')
    A('buffer_load_dword v54, v23, s[44:47], s30 offen'); vm.add('cs')
    A('s_add_u32 s30, s30, 0x10000')
    A('buffer_load_dword v55, v23, s[44:47], s30 offen'); vm.add('cs')
    for ks in range(1,K3_NS):
        for x in dma(ks): A(x)
    A(f'v_lshrrev_b32 v{t0}, 1, v{G}')
    A(f'v_lshlrev_b32 v{t0}, 10, v{t0}')
    A(f'v_and_b32 v{t1}, 1, v{G}')
    A(f'v_lshrrev_b32 v{t2}, 2, v{I}')
    A(f'v_lshl_add_u32 v{t2}, v{t1}, 2, v{t2}')
    A(f'v_lshl_add_u32 v{t0}, v{t2}, 7, v{t0}')
    A(f'v_and_b32 v{t3}, 3, v{I}')
    A(f'v_lshl_add_u32 v{t0}, v{t3}, 3, v{t0}')
    A('v_lshrrev_b32 v10, 1, v2')
    A(f'v_lshl_add_u32 v{t0}, v10, 12, v{t0}')
    A(f'v_add_u32 v{t0}, 9216, v{t0}')
    A(f'v_lshrrev_b32 v{t2}, 1, v{t2}')
    A(f'v_lshlrev_b32 v{t2}, 5, v{t2}')
    A('v_and_b32 v10, 1, v2')
    A('v_lshlrev_b32 v10, 6, v10')
    A(f'v_xor_b32 v{t2}, v{t2}, v10')
    A(f'v_add_u32 v10, v{t0}, v{t2}')
    A(f'v_xor_b32 v{t2}, 32, v{t2}')
    A(f'v_add_u32 v11, v{t0}, v{t2}')
    A(f'v_lshrrev_b32 v{t0}, 2, v1')
    A(f'v_mul_u32_u24 v12, 288, v{t0}')
    A(f'v_lshl_add_u32 v12, v{t3}, 3, v12')
    A(f'v_lshlrev_b32 v21, 4, v{G}')
    A(f'v_add_u32 v21, {K3_CSL}, v21')
    A('s_and_b32 s38, s36, 7')
    A('s_lshl_b32 s38, s38, 1')
    A(f's_add_u32 s38, s38, {K3_SJ}')
    A('v_add_u32 v13, s38, v3')
    A(f'v_add_u32 v23, {K3_CSL}, v23')
    A('v_mov_b32 v22, 0')
    A(f'v_lshlrev_b32 v14, 2, v{I}')
    srd(A,16,4,SZ_H,WS['HF'])
    srd(A,48,4,8192,WS['STAT2'])
    def reads(ks):
        st=(ks%K3_NS)*K3_STG; se=ks&1; L=[]
        for tt in range(2):
            b=BF+8*se+4*tt
            L.append(f'ds_read_b64_tr_b16 v[{b}:{b+1}], v{10+tt} offset:{st}')
            L.append(f'ds_read_b64_tr_b16 v[{b+2}:{b+3}], v{10+tt} offset:{st+2048}')
        for j in range(9):
            a=AF+36*se+4*j
            L.append(f'ds_read_b64_tr_b16 v[{a}:{a+1}], v12 offset:{st+j*32}')
            L.append(f'ds_read_b64_tr_b16 v[{a+2}:{a+3}], v12 offset:{st+4608+j*32}')
        return L
    stamp(A,1)
    A(f's_waitcnt vmcnt({vm.after("cs")})')
    A('v_cmp_gt_u32 vcc, 144, v0')
    A('s_and_saveexec_b64 s[58:59], vcc')
    A('ds_write_b32 v23, v54')
    A('ds_write_b32 v23, v55 offset:576')
    A('s_mov_b64 exec, s[58:59]')
    A('s_barrier')
    stamp(A,2)
    for x in reads(0): A(x)
    SX=224
    for c in range(9): A(f'ds_read_u16 v{SX+c}, v13 offset:{c*1024}')
    A('s_lshl_b32 s39, s20, 9')
    A('s_lshl_b32 s37, s22, 7')
    A('s_add_u32 s39, s39, s37')
    for ks in range(18):
        se=ks&1; fill=[]
        if ks+1<18:
            A(f's_waitcnt vmcnt({vm.after(f"g{ks+1}")}) lgkmcnt(0)')
            A('s_barrier')
            fill+=reads(ks+1)
            if ks+K3_NS<18: fill+=dma(ks+K3_NS)
        else:
            A('s_waitcnt lgkmcnt(0)')
            for tt in range(2): fill.append(f'buffer_load_dword v{24+2*tt}, v14, s[48:51], s39 offen offset:{64*tt} sc1')
            fill+=[f'ds_read_b128 v[{CB[0]}:{CB[0]+3}], v21', f'ds_read_b128 v[{CB[0]+4}:{CB[0]+7}], v21 offset:576']
        if ks==0:
            B2=Asm(); row_stat(B2,SX,236)
            B2('s_lshl_b32 s38, s36, 2')
            fill+=[l.strip() for l in B2.lines]
            fill.append('s_mov_b64 exec, 1\nbuffer_store_dword v236, v22, s[48:51], s38 offen sc1\ns_mov_b64 exec, -1'); vm.add('ss')
        mf=[]
        for j in range(9):
            for tt in range(2):
                d=ACC+8*j+4*tt; a=AF+36*se+4*j; b=BF+8*se+4*tt
                mf.append(f'v_mfma_f32_16x16x32_bf16 v[{d}:{d+3}], v[{a}:{a+3}], v[{b}:{b+3}], {f"v[{d}:{d+3}]" if ks else "0"}')
        interleave(A,mf[:-3],fill)
        for x in mf[-3:]: A(x)
    stamp(A,3)
    A('s_setprio 0')
    A('s_mov_b32 s35, 0')
    A('s_lshl_b32 s36, s20, 3')
    A('s_lshl_b32 s37, s22, 1')
    A('s_add_u32 s36, s36, s37')
    A('s_lshl_b32 s36, s36, 10')
    A('s_lshr_b32 s37, s21, 1')
    A('s_mul_i32 s37, s37, 1179648')
    A('s_add_u32 s36, s36, s37')
    A('s_and_b32 s34, s21, 1')
    A('s_lshl_b32 s37, s34, 19')
    A('s_add_u32 s58, s36, s37')
    A('s_lshl_b32 s37, s34, 3')
    A('s_add_u32 s59, s36, s37')
    A('s_add_u32 s59, s59, 1048576')
    A('K3_POLL:')
    A('s_waitcnt vmcnt(0)')
    A('v_min_u32 v25, v24, v26')
    A('v_cmp_eq_u32 vcc, 0, v25')
    A('s_nop 4')
    A('s_cbranch_vccz K3_HAVE')
    for tt in range(2): A(f'buffer_load_dword v{24+2*tt}, v14, s[48:51], s39 offen offset:{64*tt} sc1')
    A('s_add_u32 s35, s35, 1')
    A('s_cmp_lt_u32 s35, 4096')
    A('s_cbranch_scc1 K3_POLL')
    A('s_lshl_b32 s36, s20, 1')
    A('s_lshr_b32 s37, s22, 1')
    A('s_add_u32 s36, s36, s37')
    A('s_mul_i32 s36, s36, 73728')
    A('s_and_b32 s37, s22, 1')
    A('s_lshl_b32 s37, s37, 6')
    A('s_add_u32 s36, s36, s37')
    A('s_mov_b32 s35, 0')
    A('v_lshlrev_b32 v23, 7, v1')
    A('v_and_b32 v0, 15, v1')
    A('K3_FB:')
    A('s_lshl_b32 s38, s35, 1')
    A('s_add_u32 s37, s36, s38')
    for c in range(9):
        A(f's_add_u32 s38, s37, {c*8192}')
        A(f'buffer_load_ushort v{SX+c}, v23, s[40:43], s38 offen')
    A('s_waitcnt vmcnt(0)')
    row_stat(A,SX,236)
    A('s_and_b32 s30, s35, 15')
    A('v_cmp_eq_u32 vcc, s30, v0')
    A('s_lshr_b32 s30, s35, 4')
    for tt in range(2):
        A(f's_cmp_lg_u32 s30, {tt}')
        A(f's_cbranch_scc1 K3_FBS{tt}')
        A(f'v_cndmask_b32 v{24+2*tt}, v{24+2*tt}, v236, vcc')
        A(f'K3_FBS{tt}:')
    A('s_add_u32 s35, s35, 1')
    A('s_cmp_lt_u32 s35, 32')
    A('s_cbranch_scc1 K3_FB')
    A('K3_HAVE:')
    for tt in range(2):
        r=24+2*tt
        for x in [f'v_and_b32 v{r+1}, 0xffff0000, v{r}', f'v_lshlrev_b32 v{r}, 16, v{r}', f'v_rcp_f32 v{r+1}, v{r+1}',
              f'v_sub_f32 v{r}, 0, v{r}', f'v_mul_f32 v{r+1}, 0xbfb8aa3b, v{r+1}']: A(x)
    PAIR={1:0,3:1,5:2,8:3}
    for j in range(9):
        c=CB[j&1]; d0=ACC+8*j; TT=T+8*(j&1)
        A('s_waitcnt lgkmcnt(0)')
        if j<8:
            c2=CB[(j+1)&1]
            A(f'ds_read_b128 v[{c2}:{c2+3}], v21 offset:{(j+1)*64}')
            A(f'ds_read_b128 v[{c2+4}:{c2+7}], v21 offset:{(j+1)*64+576}')
        for tt in range(2):
            for r in range(4): A(f'v_fmac_f32 v{d0+4*tt+r}, v{c+r}, v{24+2*tt}')
        for tt in range(2):
            for r in range(4): A(f'v_fma_f32 v{d0+4*tt+r}, v{d0+4*tt+r}, v{25+2*tt}, v{c+4+r}')
        for r in range(8): A(f'v_exp_f32 v{TT+r}, v{d0+r}')
        for r in range(8): A(f'v_add_f32 v{TT+r}, 1.0, v{TT+r}')
        for r in range(8): A(f'v_rcp_f32 v{TT+r}, v{TT+r}')
        for r in range(8): A(f'v_mul_f32 v{d0+r}, v{d0+r}, v{TT+r}')
        for tt in range(2):
            d=d0+4*tt; o = d-8+2 if j in PAIR else d
            A(f'v_cvt_pk_bf16_f32 v{o}, v{d}, v{d+1}')
            A(f'v_cvt_pk_bf16_f32 v{o+1}, v{d+2}, v{d+3}')
        for tt in range(2):
            d=d0+4*tt
            if j in PAIR:
                if tt==0: A(f's_add_u32 s57, s58, {PAIR[j]*131072}')
                A(f'buffer_store_dwordx4 v[{d-8}:{d-5}], v3, s[16:19], s57 offen offset:{tt*1024} {POL["H"]}')
            elif j==6:
                A(f'buffer_store_dwordx2 v[{d}:{d+1}], v3, s[16:19], s59 offen offset:{tt*1024} {POL["H"]}')
    stamp(A,4)
    if STAMP: A('s_waitcnt vmcnt(0)')
    stamp(A,5)
    if STAMP: A('v_lshlrev_b32 v0, 6, v2')
    stamp_out(A,6,2)
    A('K3_END:')
    A('s_endpgm')
    return A.text(), kd('k3_kernel',240)

K4_LDS=163840
def gen_k4():
    A=Asm()
    P=4; NKS=18
    A('k4_kernel:')
    A('s_cmp_ge_u32 s2, 256')
    A('s_cbranch_scc1 K4_END')
    stamp(A,0)
    A(f's_load_dwordx2 s[4:5], s[0:1], {KA["ws"]}')
    A(f's_load_dwordx2 s[6:7], s[0:1], {KA["out"]}')
    A('s_and_b32 s20, s2, 7')
    A('s_lshl_b32 s20, s20, 2')
    A('s_bfe_u32 s21, s2, 0x20003')
    A('s_add_u32 s20, s20, s21')
    A('s_lshr_b32 s21, s2, 5')
    A('s_mul_i32 s23, s21, 9')
    A('s_lshr_b32 s23, s23, 1')
    A('v_and_b32 v1, 63, v0')
    A('v_lshrrev_b32 v2, 6, v0')
    A('v_readfirstlane_b32 s22, v2')
    A('v_lshlrev_b32 v3, 4, v1')
    A('s_mul_i32 s24, s22, 663552')
    A('s_lshl_b32 s25, s23, 10')
    A('s_add_u32 s40, s24, s25')
    A('s_mul_i32 s24, s22, 2359296')
    A('s_lshl_b32 s25, s20, 12')
    A('s_add_u32 s41, s24, s25')
    A('v_add_u32 v31, 4096, v3')
    A('s_and_b32 s30, s21, 1')
    A('s_cmp_eq_u32 s30, 0')
    A('s_cselect_b32 s88, -1, 0xff00ff00')
    A('s_cselect_b32 s90, 0x00ff00ff, -1')
    A('s_mov_b32 s89, s88')
    A('s_mov_b32 s91, s90')
    for p in range(4):
        for j in (0,4):
            for r in range(4): A(f'v_mov_b32 v{112+36*p+4*j+r}, 0')
    A('s_waitcnt lgkmcnt(0)')
    srd(A,8,4,SZ_W,WS['W2F'])
    srd(A,12,4,SZ_H,WS['HF'])
    ACC=32; FR=112
    def loads(p):
        L=[]
        for tt in range(4):
            r=FR+36*p+20+4*tt
            L.append(f'buffer_load_dwordx4 v[{r}:{r+3}], v3, s[12:15], s41 offen offset:{tt*1024}')
        for j in range(5):
            r=FR+36*p+4*j
            pre = 's_mov_b64 exec, s[88:89]\n' if j==0 else ('s_mov_b64 exec, s[90:91]\n' if j==4 else '')
            post = '\ns_mov_b64 exec, -1' if j in (0,4) else ''
            L.append(pre+f'buffer_load_dwordx4 v[{r}:{r+3}], v{3 if j<4 else 31}, s[8:11], s40 offen offset:{(j&3)*1024}'+post)
        L.append('s_add_u32 s40, s40, 36864\ns_add_u32 s41, s41, 131072')
        return L
    for p in range(P):
        for x in loads(p): A(x)
    srd(A,16,4,SZ_XT,WS['X1T'])
    srd(A,52,4,3456*4,WS['MOD'])
    srd(A,56,6,SZ_XT)
    A('v_and_b32 v4, 15, v1')
    A('v_lshrrev_b32 v5, 4, v1')
    A('s_lshr_b32 s42, s22, 1')
    A('s_and_b32 s43, s22, 1')
    A('s_lshl_b32 s43, s43, 1')
    A('s_add_u32 s44, s23, s43')
    A('v_lshlrev_b32 v6, 9, v5')
    A('v_lshl_add_u32 v6, v4, 1, v6')
    A('s_mul_i32 s27, s20, 73728')
    A('s_lshl_b32 s28, s42, 5')
    A('s_add_u32 s27, s27, s28')
    A('s_lshl_b32 s28, s44, 11')
    A('s_add_u32 s27, s27, s28')
    A('v_lshlrev_b32 v7, 4, v5')
    A('s_lshl_b32 s29, s44, 6')
    A('s_add_u32 s29, s29, 11520')
    stamp(A,1)
    def mf(p,first):
        L=[]
        for j in range(5):
            for tt in range(4):
                d=ACC+16*j+4*tt; a=FR+36*p+4*j; b=FR+36*p+20+4*tt
                L.append(f'v_mfma_f32_16x16x32_bf16 v[{d}:{d+3}], v[{a}:{a+3}], v[{b}:{b+3}], {"0" if first else f"v[{d}:{d+3}]"}')
        return L
    NE=15
    for k in range(NKS):
        p=k%P
        nxt=min(NKS-1,k+P-1)-k
        extra = NE if k>NKS-P else 0
        A(f's_waitcnt vmcnt({9*nxt+extra})')
        for x in mf(p,k==0): A(x)
        if k+P<NKS:
            for x in loads(p): A(x)
        if k==NKS-P:
            for j in range(3):
                A(f's_add_u32 s30, s27, {j*2048}')
                for r in range(4):
                    A(f'buffer_load_ushort v{8+4*j+r}, v6, s[16:19], s30 offen offset:{r*128}')
                A(f'buffer_load_dwordx4 v[{20+4*j}:{23+4*j}], v7, s[52:55], s29 offen offset:{j*64}')
    stamp(A,2)
    A('v_mul_u32_u24 v112, 20480, v2')
    A('v_add_u32 v112, v112, v3')
    for tt in range(4):
        for j in range(5):
            d=ACC+16*j+4*tt
            A(f'ds_write_b128 v112, v[{d}:{d+3}] offset:{(tt*5+j)*1024}')
    A('s_mul_i32 s30, s42, 5120')
    A('s_lshl_b32 s31, s43, 10')
    A('s_add_u32 s30, s30, s31')
    A('v_add_u32 v113, s30, v3')
    A('v_add_u32 v114, 61440, v113')
    A('v_add_u32 v115, 122880, v113')
    A('s_waitcnt lgkmcnt(0)')
    A('s_barrier')
    R=128
    for j in range(3):
        for w in range(8):
            d=R+32*j+4*w
            A(f'ds_read_b128 v[{d}:{d+3}], v{113+w//3} offset:{(w%3)*20480+j*1024}')
    A('s_lshl_b32 s27, s20, 6')
    A('s_lshl_b32 s28, s42, 4')
    A('s_add_u32 s27, s27, s28')
    A('v_add_u32 v116, s27, v4')
    A('v_mul_u32_u24 v116, 1152, v116')
    A('v_lshl_add_u32 v116, v5, 3, v116')
    A('s_lshl_b32 s28, s44, 5')
    A('s_and_b32 s30, s21, 1')
    A('s_cmp_eq_u32 s30, 0')
    A('s_cselect_b32 s84, -1, 0')
    A('s_cselect_b32 s87, 0, -1')
    A('s_mov_b32 s85, -1')
    A('s_mov_b32 s86, -1')
    A('s_cmp_eq_u32 s43, 0')
    A('s_cselect_b32 s84, s84, 0')
    A('s_cselect_b32 s85, s85, 0')
    A('s_cselect_b32 s87, -1, s87')
    A('s_waitcnt vmcnt(0)')
    for j in range(3):
        A(f's_waitcnt lgkmcnt({min(15,8*(2-j))})')
        d=R+32*j
        for st in (16,8,4):
            for o in range(0,st,2):
                A(f'v_pk_add_f32 v[{d+o}:{d+o+1}], v[{d+o}:{d+o+1}], v[{d+o+st}:{d+o+st+1}]')
        for r in range(4): A(f'v_mul_f32 v{d+r}, 0xbf317218, v{d+r}')
        for h in range(2): A(f'v_cvt_pk_bf16_f32 v{d+4+h}, v{d+2*h}, v{d+2*h+1}')
        for h in range(2): unpack(A,d+2*h,d+2*h+1,d+4+h)
        for h in range(2): A(f'v_pk_mul_f32 v[{d+2*h}:{d+2*h+1}], v[{d+2*h}:{d+2*h+1}], v[{20+4*j+2*h}:{21+4*j+2*h}]')
        for h in range(2): A(f'v_cvt_pk_bf16_f32 v{d+4+h}, v{d+2*h}, v{d+2*h+1}')
        for h in range(2): unpack(A,d+2*h,d+2*h+1,d+4+h)
        for r in range(4): A(f'v_lshlrev_b32 v{8+4*j+r}, 16, v{8+4*j+r}')
        for h in range(2): A(f'v_pk_add_f32 v[{d+2*h}:{d+2*h+1}], v[{d+2*h}:{d+2*h+1}], v[{8+4*j+2*h}:{9+4*j+2*h}]')
        for h in range(2): A(f'v_cvt_pk_bf16_f32 v{d+4+h}, v{d+2*h}, v{d+2*h+1}')
        if j==0:
            A('s_mov_b64 exec, s[84:85]')
            A('s_cbranch_execz K4_SK0')
        if j==2: A('s_mov_b64 exec, s[86:87]')
        A(f'buffer_store_dwordx2 v[{d+4}:{d+5}], v116, s[56:59], s28 offen offset:{j*32}')
        if j==0: A('K4_SK0:')
        if j in (0,2): A('s_mov_b64 exec, -1')
    stamp(A,3)
    if STAMP:
        A('s_waitcnt vmcnt(0)')
    stamp(A,4)
    if STAMP:
        A('s_cmp_ge_u32 s22, 4')
        A('s_cbranch_scc1 K4_END')
    stamp_out(A,5,3)
    A('K4_END:')
    A('s_endpgm')
    return A.text(), kd('k4_kernel',256)

def assemble(kernels, fn):
    hdr=open('cdna_kernels/'+NAME+'.s.ref').read().split('\n')
    out=[l for l in hdr if l.startswith(';') and '@launch' not in l and 'Override launch' not in l and 'grid=ceil' not in l]
    for k in kernels:
        out.append(f'; @launch kernel={k[0]} grid=({k[1]},1,1) block=({k[2]},1,1) lds={k[3]}')
    out.append('.amdgcn_target "amdgcn-amd-amdhsa--gfx950"')
    out.append('.text')
    seen=set()
    for k in kernels:
        if k[0] in seen: continue
        seen.add(k[0])
        out.append(f'.globl {k[0]}\n.p2align 8\n.type {k[0]},@function')
        out.append(k[4])
    seen=set()
    for k in kernels:
        if k[0] in seen: continue
        seen.add(k[0])
        out.append(k[5])
    open(fn,'w').write('\n'.join(out))

if __name__=='__main__':
    t1,d1=gen_k1(); t2,d2=gen_k2(); t3,d3=gen_k3(); t4,d4=gen_k4()
    ks=[('k1_kernel',K1_GRID,256,K1_LDS,t1,d1),('k2_kernel',K2_GRID,256,K2_LDS,t2,d2),
        ('k3_kernel',K3_GRID,256,K3_LDS,t3,d3),('k4_kernel',256,512,K4_LDS,t4,d4)]
    nk=int(os.environ.get('NK','4'))
    assemble(ks[:nk], sys.argv[1] if len(sys.argv)>1 else 'k.s')
```

```python
import sys,os
from asmlib import Asm

NAME='adaLN_cond__ssm_conv_s4d__dense_activation_silu__prompt'
KA=dict(x=0,lar=8,aim=16,cr=24,ci=32,logdt=40,dskip=48,w1=64,w2=72,c=80,wmod=88,out=96,dbg=104,ws=112)
WS=dict(MOD=0x0, CS=0x10000, BIAS=0x20000, STAT=0x30000, STAT2=0x38000, X1S=0x400000, XT=0x100000, XNT=0x400000, KF=0x700000, X1T=0xC00000,
        W1F=0x1000000, W2F=0x1800000, HF=0x2000000)
SZ_XT=576*2048*2
KFC=4160
SZ_KF=576*KFC
SZ_W=576*4608*2
SZ_H=2048*4608*2
LOG2E=0x3fb8aa3b
INV2PI=0x3e22f983

def srd(A, d, base, size, off=0):
    if off:
        A(f's_add_u32 s{d}, s{base}, {off:#x}')
        A(f's_addc_u32 s{d+1}, s{base+1}, 0')
    else:
        A(f's_mov_b32 s{d}, s{base}')
        A(f's_mov_b32 s{d+1}, s{base+1}')
    A(f's_mov_b32 s{d+2}, {size:#x}')
    A(f's_mov_b32 s{d+3}, 0x00020000')

def kd(name, vgpr, sgpr=102, agpr=0):
    acc=(vgpr+3)//4*4
    return f'''.section .rodata,"a"
.p2align 6
.amdhsa_kernel {name}
  .amdhsa_next_free_vgpr {acc+agpr if agpr else vgpr}
  .amdhsa_next_free_sgpr {sgpr}
  .amdhsa_accum_offset {acc}
  .amdhsa_group_segment_fixed_size 0
  .amdhsa_kernarg_size 120
  .amdhsa_user_sgpr_count 2
  .amdhsa_user_sgpr_kernarg_segment_ptr 1
  .amdhsa_system_sgpr_workgroup_id_x 1
.end_amdhsa_kernel
'''

STAMP=bool(os.environ.get('STAMP'))
POL=dict(XT='',KF='',W2F='sc1',X1='',W1F='sc1',H='sc1')
for kv in os.environ.get('POL','').split(','):
    if '=' in kv:
        k,v=kv.split('='); POL[k]=v.replace('+',' ')
def stamp(A,i):
    if STAMP:
        A(f's_mem{"real" if os.environ.get("STAMP")=="2" else ""}time s[{60+2*i}:{61+2*i}]')
def stamp_out(A,n,slot):
    if not STAMP: return
    A('s_waitcnt lgkmcnt(0)')
    srd(A,92,4,1<<22,0x8000000+slot*(1<<22))
    A('v_readfirstlane_b32 s96, v0')
    A('s_lshr_b32 s96, s96, 6')
    A('s_lshl_b32 s97, s2, 2')
    A('s_add_u32 s96, s96, s97')
    A('s_lshl_b32 s96, s96, 6')
    A('v_mov_b32 v1, 0')
    for i in range(n):
        A(f'v_mov_b32 v2, s{60+2*i}')
        A(f'buffer_store_dword v2, v1, s[92:95], s96 offen offset:{4*i}')

def unpack(A, dlo, dhi, src):
    A(f'v_lshlrev_b32 v{dlo}, 16, v{src}')
    A(f'v_and_b32 v{dhi}, 0xffff0000, v{src}')

K1_LN=64; K1_MOD=54; K1_W2=144; K1_KG=576
K1_PAD=2
K1_GRID=K1_LN+K1_MOD+K1_KG+((K1_W2+K1_PAD) if os.environ.get('W2K1','1')=='1' else 0)
RS=1184
K1_LDS=32*RS

import os
SKIP=os.environ.get('SKIP','').split(',')
W2K1=os.environ.get('W2K1','1')=='1'
def gen_w2(A,slot):
    A('K1_W2:')
    if 'K1_W2' in SKIP: A('s_endpgm')
    A('s_and_b32 s24, s3, 7')
    A('s_mul_i32 s24, s24, 18')
    A('s_lshr_b32 s3, s3, 3')
    A('s_add_u32 s3, s3, s24')
    stamp(A,0)
    A(f's_load_dwordx2 s[6:7], s[0:1], {KA["w2"]}')
    A('s_mov_b32 s23, s3')
    A('s_lshl_b32 s20, s23, 5')
    A('s_waitcnt lgkmcnt(0)')
    srd(A,8,6,SZ_W)
    srd(A,12,4,SZ_W,WS['W2F'])
    load_tile_g(A,False)
    A('v_and_b32 v116, 63, v0')
    A('v_lshrrev_b32 v117, 6, v0')
    A('v_lshrrev_b32 v120, 2, v116')
    A(f'v_mul_u32_u24 v5, {RS}, v120')
    A('v_and_b32 v120, 3, v116')
    A('v_lshl_add_u32 v5, v120, 3, v5')
    A('v_mul_u32_u24 v120, 288, v117')
    A('v_add_u32 v5, v5, v120')
    A('s_mul_i32 s24, s23, 57')
    A('s_lshr_b32 s24, s24, 10')
    A('s_mul_i32 s25, s24, 18')
    A('s_sub_u32 s25, s23, s25')
    A('s_mul_i32 s24, s24, 663552')
    A('s_mul_i32 s25, s25, 3072')
    A('s_add_u32 s24, s24, s25')
    A('v_mul_u32_u24 v6, 165888, v117')
    A('v_lshl_add_u32 v6, v116, 4, v6')
    A('v_add_u32 v6, s24, v6')
    A('s_waitcnt vmcnt(0)')
    stamp(A,1)
    write_tile_g(A,8)
    A('s_waitcnt lgkmcnt(0)')
    A('s_barrier')
    tr_tile_g(A,16)
    A('s_waitcnt lgkmcnt(0)')
    for q in range(9):
        A(f's_mov_b32 s22, {(q//3)*55296+(q%3)*1024}')
        A(f'buffer_store_dwordx4 v[{8+4*q}:{11+4*q}], v6, s[12:15], s22 offen {POL["W2F"]}')
    stamp(A,2)
    if STAMP: A('s_waitcnt vmcnt(0)')
    stamp(A,3)
    stamp_out(A,4,slot)
    A('s_endpgm')


def gen_k1():
    A=Asm()
    A('k1_kernel:')
    A(f's_load_dwordx2 s[4:5], s[0:1], {KA["ws"]}')
    A('s_mov_b32 s3, s2')
    A(f's_cmp_lt_u32 s3, {K1_KG}')
    A('s_cbranch_scc1 K1_KG')
    A(f's_sub_u32 s3, s3, {K1_KG}')
    A(f's_cmp_lt_u32 s3, {K1_LN}')
    A('s_cbranch_scc1 K1_LN')
    A(f's_sub_u32 s3, s3, {K1_LN}')
    A(f's_cmp_lt_u32 s3, {K1_MOD}')
    A('s_cbranch_scc1 K1_MOD')
    if W2K1:
        A(f's_sub_u32 s3, s3, {K1_MOD+K1_PAD}')
        A(f's_cmp_lt_u32 s3, {K1_W2}')
        A('s_cbranch_scc1 K1_W2')
    A('s_endpgm')

    def load_tile(delta=False):
        A('v_lshrrev_b32 v1, 3, v0')
        A('v_and_b32 v2, 7, v0')
        A('v_add_u32 v3, s20, v1')
        if delta:
            A('v_lshrrev_b32 v4, 4, v1')
            A('v_mul_u32_u24 v4, s21, v4')
            A('v_add_u32 v3, v3, v4')
        A('v_mul_u32_u24 v3, 1152, v3')
        A('v_lshl_add_u32 v3, v2, 4, v3')
        for c in range(9):
            A(f'buffer_load_dwordx4 v[{8+4*c}:{11+4*c}], v3, s[8:11], 0 offen offset:{c*128} nt')
        A(f'v_mul_u32_u24 v4, {RS}, v1')
        A('v_lshl_add_u32 v4, v2, 4, v4')
    def write_tile(base):
        for c in range(9):
            A(f'ds_write_b128 v4, v[{base+4*c}:{base+3+4*c}] offset:{c*128}')

    A('K1_LN:')
    if 'K1_LN' in SKIP: A('s_endpgm')
    stamp(A,0)
    A('s_setprio 3')
    A(f's_load_dwordx2 s[6:7], s[0:1], {KA["x"]}')
    A('s_lshl_b32 s20, s3, 5')
    A('s_waitcnt lgkmcnt(0)')
    srd(A,8,6,SZ_XT)
    load_tile()
    srd(A,12,4,SZ_XT,WS['XT'])
    srd(A,16,4,0x8000+8192,WS['STAT'])
    A('v_and_b32 v116, 63, v0')
    A('v_lshrrev_b32 v117, 6, v0')
    A('v_lshrrev_b32 v118, 4, v116')
    A('v_and_b32 v119, 15, v116')
    A('v_lshrrev_b32 v120, 2, v119')
    A('v_lshl_add_u32 v120, v118, 3, v120')
    A(f'v_mul_u32_u24 v5, {RS}, v120')
    A('v_and_b32 v120, 3, v119')
    A('v_lshl_add_u32 v5, v120, 3, v5')
    A('v_mul_u32_u24 v120, 288, v117')
    A('v_add_u32 v5, v5, v120')
    A('v_mul_u32_u24 v6, 144, v117')
    A('v_add_u32 v6, v6, v119')
    A('v_lshlrev_b32 v6, 12, v6')
    A('v_lshl_add_u32 v6, v118, 4, v6')
    A('s_lshl_b32 s21, s20, 1')
    A('v_add_u32 v6, s21, v6')
    A('s_waitcnt vmcnt(0)')
    stamp(A,1)
    write_tile(8)
    U=44
    for i in range(36): unpack(A,U+2*i,U+2*i+1,8+i)
    A('s_waitcnt lgkmcnt(0)')
    A('s_barrier')
    def tr_tile(rows_h):
        for q in range(9):
            A(f'ds_read_b64_tr_b16 v[{8+4*q}:{9+4*q}], v5 offset:{q*32}')
            A(f'ds_read_b64_tr_b16 v[{10+4*q}:{11+4*q}], v5 offset:{q*32+rows_h*RS}')
    tr_tile(4)
    A(f'v_pk_add_f32 v[116:117], v[{U}:{U+1}], v[{U+2}:{U+3}]')
    A(f'v_pk_add_f32 v[118:119], v[{U+4}:{U+5}], v[{U+6}:{U+7}]')
    for i in range(4,36,2):
        A(f'v_pk_add_f32 v[116:117], v[116:117], v[{U+2*i}:{U+2*i+1}]')
        A(f'v_pk_add_f32 v[118:119], v[118:119], v[{U+2*i+2}:{U+2*i+3}]')
    A('v_pk_add_f32 v[116:117], v[116:117], v[118:119]')
    A('v_add_f32 v116, v116, v117')
    A('s_waitcnt lgkmcnt(0)')
    for q in range(9):
        A(f's_mov_b32 s22, {q*65536}')
        A(f'buffer_store_dwordx4 v[{8+4*q}:{11+4*q}], v6, s[12:15], s22 offen {POL["XT"]}')
    def red8(r):
        A(f'v_add_f32_dpp v{r}, v{r}, v{r} quad_perm:[1,0,3,2] row_mask:0xf bank_mask:0xf')
        A(f'v_add_f32_dpp v{r}, v{r}, v{r} quad_perm:[2,3,0,1] row_mask:0xf bank_mask:0xf')
        A(f'v_add_f32_dpp v{r}, v{r}, v{r} row_half_mirror row_mask:0xf bank_mask:0xf')
    red8(116)
    A('v_mul_f32 v116, 0x3ae38e39, v116')
    A('v_sub_f32 v118, 0, v116')
    for i in range(0,36,2):
        A(f'v_pk_add_f32 v[124:125], v[{U+2*i}:{U+2*i+1}], v[118:119] op_sel_hi:[1,0]')
        A(f'v_pk_add_f32 v[126:127], v[{U+2*i+2}:{U+2*i+3}], v[118:119] op_sel_hi:[1,0]')
        if i==0:
            A('v_pk_mul_f32 v[120:121], v[124:125], v[124:125]')
            A('v_pk_mul_f32 v[122:123], v[126:127], v[126:127]')
        else:
            A('v_pk_fma_f32 v[120:121], v[124:125], v[124:125], v[120:121]')
            A('v_pk_fma_f32 v[122:123], v[126:127], v[126:127], v[122:123]')
    A('v_pk_add_f32 v[120:121], v[120:121], v[122:123]')
    A('v_add_f32 v120, v120, v121')
    red8(120)
    A('v_mul_f32 v120, 0x3ae38e39, v120')
    A('v_cvt_pk_bf16_f32 v120, v120, v120')
    A('v_lshlrev_b32 v120, 16, v120')
    A('v_add_f32 v120, 0x3727c5ac, v120')
    A('v_cvt_pk_bf16_f32 v120, v120, v120')
    A('v_lshlrev_b32 v120, 16, v120')
    A('v_sqrt_f32 v120, v120')
    A('v_cvt_pk_bf16_f32 v120, v116, v120')
    A('v_lshlrev_b32 v121, 2, v1')
    A('v_cmp_eq_u32 vcc, 0, v2')
    A('s_lshl_b32 s21, s20, 2')
    A('s_and_saveexec_b64 s[26:27], vcc')
    A('buffer_store_dword v120, v121, s[16:19], s21 offen')
    A('v_mov_b32 v122, 0')
    A('s_add_u32 s21, s21, 0x8000')
    A('buffer_store_dword v122, v121, s[16:19], s21 offen')
    if STAMP: A('s_mov_b64 exec, -1')
    stamp(A,2)
    if STAMP: A('s_waitcnt vmcnt(0)')
    stamp(A,3)
    stamp_out(A,4,0)
    A('s_endpgm')

    A('K1_MOD:')
    if 'K1_MOD' in SKIP: A('s_endpgm')
    stamp(A,0)
    A('s_setprio 3')
    A(f's_load_dwordx2 s[6:7], s[0:1], {KA["wmod"]}')
    A(f's_load_dwordx2 s[24:25], s[0:1], {KA["c"]}')
    A('s_mov_b32 s23, s3')
    A('s_lshl_b32 s23, s23, 7')
    A('s_waitcnt lgkmcnt(0)')
    srd(A,8,6,576*3456*2)
    srd(A,12,24,1152)
    srd(A,16,4,3456*4,WS['MOD'])
    A('v_lshrrev_b32 v1, 3, v0')
    A('v_and_b32 v2, 7, v0')
    A('v_lshlrev_b32 v3, 1, v1')
    for c in range(18):
        A(f'buffer_load_ushort v{80+c}, v3, s[12:15], 0 offen offset:{c*64}')
    A('v_mul_u32_u24 v4, 6912, v1')
    A('v_lshl_add_u32 v4, v2, 4, v4')
    A('v_add_u32 v4, s23, v4')
    for c in range(18):
        A(f's_mov_b32 s22, {c*32*6912}')
        A(f'buffer_load_dwordx4 v[{8+4*c}:{11+4*c}], v4, s[8:11], s22 offen nt')
    A('s_waitcnt vmcnt(18)')
    for c in range(18):
        r=80+c
        A(f'v_lshlrev_b32 v{r}, 16, v{r}')
        A(f'v_mul_f32 v100, 0xbfb8aa3b, v{r}')
        A('v_exp_f32 v100, v100')
        A('v_add_f32 v100, 1.0, v100')
        A('v_rcp_f32 v100, v100')
        A(f'v_mul_f32 v{r}, v{r}, v100')
        A(f'v_cvt_pk_bf16_f32 v{r}, v{r}, v{r}')
        A(f'v_lshlrev_b32 v{r}, 16, v{r}')
    for e in range(8): A(f'v_mov_b32 v{104+e}, 0')
    for c in range(18):
        A(f's_waitcnt vmcnt({17-c})')
        for e in range(4):
            unpack(A,100,101,8+4*c+e)
            A(f'v_fmac_f32 v{104+2*e}, v{80+c}, v100')
            A(f'v_fmac_f32 v{105+2*e}, v{80+c}, v101')
    stamp(A,1)
    A('v_lshlrev_b32 v5, 8, v1')
    A('v_lshl_add_u32 v5, v2, 5, v5')
    A('ds_write_b128 v5, v[104:107]')
    A('ds_write_b128 v5, v[108:111] offset:16')
    A('s_waitcnt lgkmcnt(0)')
    A('s_barrier')
    A('v_cmp_gt_u32 vcc, 64, v0')
    A('s_and_saveexec_b64 s[26:27], vcc')
    A('s_cbranch_execz K1_MOD_END')
    A('v_lshlrev_b32 v5, 2, v0')
    for r in range(32):
        A(f'ds_read_b32 v{8+r}, v5 offset:{r*256}')
    A('s_waitcnt lgkmcnt(0)')
    for r in range(16): A(f'v_add_f32 v{8+r}, v{8+r}, v{24+r}')
    for r in range(8): A(f'v_add_f32 v{8+r}, v{8+r}, v{16+r}')
    for r in range(4): A(f'v_add_f32 v{8+r}, v{8+r}, v{12+r}')
    for r in range(2): A(f'v_add_f32 v{8+r}, v{8+r}, v{10+r}')
    A('v_add_f32 v8, v8, v9')
    A('v_cvt_pk_bf16_f32 v8, v8, v8')
    A('v_lshlrev_b32 v8, 16, v8')
    A('s_lshl_b32 s23, s23, 1')
    A('buffer_store_dword v8, v5, s[16:19], s23 offen')
    A('K1_MOD_END:')
    if STAMP:
        A('s_mov_b64 exec, -1')
        stamp(A,2)
        A('s_waitcnt vmcnt(0)')
        stamp(A,3)
        stamp_out(A,4,0)
    A('s_endpgm')

    A('K1_KG:')
    if 'K1_KG' in SKIP: A('s_endpgm')
    stamp(A,0)
    A(f's_load_dwordx4 s[24:27], s[0:1], {KA["lar"]}')
    A(f's_load_dwordx4 s[28:31], s[0:1], {KA["cr"]}')
    A(f's_load_dwordx2 s[32:33], s[0:1], {KA["logdt"]}')
    A('s_mov_b32 s23, s3')
    A('s_lshl_b32 s22, s23, 1')
    A('s_and_b32 s22, s22, 0xfffffffc')
    A('v_and_b32 v1, 63, v0')
    A('v_lshrrev_b32 v2, 4, v0')
    A('v_lshlrev_b32 v3, 4, v2')
    A('s_lshl_b32 s44, s23, 8')
    A('s_waitcnt lgkmcnt(0)')
    A('s_load_dword s34, s[32:33], s22')
    srd(A,8,24,576*128*2)
    A('buffer_load_dwordx4 v[8:11], v3, s[8:11], s44 offen nt')
    srd(A,12,26,576*128*2)
    A('buffer_load_dwordx4 v[12:15], v3, s[12:15], s44 offen nt')
    srd(A,16,28,576*128*2)
    A('buffer_load_dwordx4 v[16:19], v3, s[16:19], s44 offen nt')
    srd(A,36,30,576*128*2)
    A('buffer_load_dwordx4 v[20:23], v3, s[36:39], s44 offen nt')
    srd(A,40,4,SZ_KF,WS['KF'])
    A('v_and_b32 v4, 15, v0')
    def p_row(tile, vi, vd, t):
        if tile==0:
            A(f'v_lshrrev_b32 v{t}, 3, v{vi}')
            A(f'v_and_b32 v{vd}, 7, v{vi}')
            A(f'v_lshl_add_u32 v{vd}, v{t}, 7, v{vd}')
        elif tile==1:
            A(f'v_lshrrev_b32 v{t}, 2, v{vi}')
            A(f'v_and_b32 v{vd}, 3, v{vi}')
            A(f'v_lshlrev_b32 v{vd}, 1, v{vd}')
            A(f'v_lshl_add_u32 v{vd}, v{t}, 7, v{vd}')
            A(f'v_add_u32 v{vd}, 256, v{vd}')
            A(f'v_lshrrev_b32 v{t}, 1, v{vi}')
            A(f'v_lshlrev_b32 v{t}, 7, v{t}')
            A(f'v_and_b32 v{t+1}, 1, v{vi}')
            A(f'v_lshl_add_u32 v{t}, v{t+1}, 2, v{t}')
            A(f'v_cmp_gt_u32 vcc, 8, v{vi}')
            A(f'v_cndmask_b32 v{vd}, v{t}, v{vd}, vcc')
        else:
            A(f'v_lshlrev_b32 v{vd}, 7, v{vi}')
            A(f'v_add_u32 v{vd}, 1024, v{vd}')
    for t in range(3):
        p_row(t,4,24+2*t,112)
        A(f'v_cvt_f32_u32 v{24+2*t}, v{24+2*t}')
    A('v_lshlrev_b32 v30, 3, v4')
    A('v_cvt_f32_u32 v30, v30')
    A('v_mov_b32 v110, 0x41600000')
    A('v_mov_b32 v111, 0')
    A('v_lshlrev_b32 v5, 3, v0')
    for e in range(8):
        A(f'v_add_u32 v{114+e}, {e}, v5')
        A(f'v_cvt_f32_u32 v{114+e}, v{114+e}')
    for e in range(0,8,2):
        A(f'v_cvt_pk_bf16_f32 v{114+e}, v{114+e}, v{115+e}')
        A(f'v_and_b32 v{115+e}, 0xffff0000, v{114+e}')
        A(f'v_lshlrev_b32 v{114+e}, 16, v{114+e}')
    for e in range(8):
        A(f'v_cvt_u32_f32 v{114+e}, v{114+e}')
        A(f'v_lshlrev_b32 v{114+e}, 1, v{114+e}')
    A('s_waitcnt lgkmcnt(0)')
    A('s_and_b32 s22, s23, 1')
    A('s_lshl_b32 s22, s22, 4')
    A('s_lshr_b32 s34, s34, s22')
    A('s_lshl_b32 s34, s34, 16')
    A(f'v_mov_b32 v112, {LOG2E:#x}')
    A('v_mul_f32 v113, s34, v112')
    A('v_exp_f32 v113, v113')
    A('v_cvt_pk_bf16_f32 v113, v113, v113')
    A('v_lshlrev_b32 v113, 16, v113')
    A('v_mul_f32 v108, 0xbfb8aa3b, v113')
    A(f'v_mul_f32 v109, {INV2PI:#x}, v113')
    stamp(A,1)
    A('s_waitcnt vmcnt(0)')
    stamp(A,2)
    for e in range(4):
        unpack(A,32+4*e,34+4*e,8+e)
        unpack(A,33+4*e,35+4*e,12+e)
        unpack(A,48+4*e,50+4*e,16+e)
        unpack(A,49+4*e,51+4*e,20+e)
    for n in range(8):
        A(f'v_mul_f32 v{32+2*n}, v112, v{32+2*n}')
        A(f'v_exp_f32 v{32+2*n}, v{32+2*n}')
    A('v_max3_f32 v6, |v48|, |v49|, |v50|')
    for n in range(51,63,2): A(f'v_max3_f32 v6, |v{n}|, |v{n+1}|, v6')
    A('v_max_f32 v6, |v63|, v6')
    for n in range(0,8,2):
        A(f'v_cvt_pk_bf16_f32 v{32+2*n}, v{32+2*n}, v{34+2*n}')
        A(f'v_and_b32 v{34+2*n}, 0xffff0000, v{32+2*n}')
        A(f'v_lshlrev_b32 v{32+2*n}, 16, v{32+2*n}')
    for q in range(4): A(f'v_readlane_b32 s{48+q}, v6, {16*q}')
    for n in range(8):
        A(f'v_pk_mul_f32 v[{32+2*n}:{33+2*n}], v[{32+2*n}:{33+2*n}], v[108:109]')
    A('s_max_u32 s48, s48, s49')
    A('s_max_u32 s50, s50, s51')
    A('s_max_u32 s48, s48, s50')
    A('s_lshr_b32 s48, s48, 23')
    A('s_max_u32 s48, s48, 13')
    A('s_min_u32 s48, s48, 254')
    A('s_sub_u32 s50, 267, s48')
    A('s_lshl_b32 s50, s50, 23')
    A('s_mov_b32 s51, s50')
    A('s_sub_u32 s49, s48, 153')
    for n in range(8):
        A(f'v_pk_mul_f32 v[{48+2*n}:{49+2*n}], v[{48+2*n}:{49+2*n}], s[50:51]')
    A('v_ldexp_f32 v113, v113, s49')
    for s in range(8):
        Z=32+2*s; C=48+2*s; r=s&3
        for k in range(3):
            A(f'v_pk_fma_f32 v[{64+2*k}:{65+2*k}], v[{Z}:{Z+1}], v[{24+2*k}:{25+2*k}], v[110:111] op_sel_hi:[1,0,1]')
        A(f'v_pk_mul_f32 v[70:71], v[{Z}:{Z+1}], v[30:31] op_sel_hi:[1,0]')
        for k in range(4): A(f'v_fract_f32 v{65+2*k}, v{65+2*k}')
        for k in range(4):
            A(f'v_exp_f32 v{64+2*k}, v{64+2*k}')
            A(f'v_cos_f32 v{72+2*k}, v{65+2*k}')
            A(f'v_sin_f32 v{73+2*k}, v{65+2*k}')
        for k in range(4):
            A(f'v_pk_mul_f32 v[{72+2*k}:{73+2*k}], v[{72+2*k}:{73+2*k}], v[{64+2*k}:{65+2*k}] op_sel_hi:[1,0]')
        for k in range(3):
            A(f'v_cvt_pk_f16_f32 v{80+4*k+r}, v{72+2*k}, v{73+2*k}')
        A(f'v_pk_mul_f32 v[64:65], v[78:79], v[{C}:{C+1}] op_sel_hi:[1,0] neg_hi:[1,0]')
        A(f'v_pk_fma_f32 v[64:65], v[78:79], v[{C}:{C+1}], v[64:65] op_sel:[1,1,0] op_sel_hi:[0,1,1] neg_lo:[1,0,0] neg_hi:[1,0,0]')
        A(f'v_cvt_pk_f16_f32 v{92+r}, v64, v65')
        if r==3:
            for k in range(3):
                c = '0' if s==3 else f'v[{96+4*k}:{99+4*k}]'
                A(f'v_mfma_f32_16x16x32_f16 v[{96+4*k}:{99+4*k}], v[{80+4*k}:{83+4*k}], v[92:95], {c}')
    stamp(A,3)
    A('v_lshrrev_b32 v5, 6, v0')
    A('v_mul_u32_u24 v5, 3072, v5')
    A('v_lshl_add_u32 v5, v1, 4, v5')
    A('v_readfirstlane_b32 s45, v0')
    A('s_lshr_b32 s45, s45, 6')
    A('v_lshrrev_b32 v6, 4, v1')
    A('v_lshlrev_b32 v6, 2, v6')
    for r in range(1,4): A(f'v_add_u32 v{32+r}, {r}, v6')
    A('v_mov_b32 v32, v6')
    for k in range(6):
        A(f'v_pk_mul_f32 v[{96+2*k}:{97+2*k}], v[{96+2*k}:{97+2*k}], v[112:113] op_sel:[0,1] op_sel_hi:[1,1]')
    for k in range(3):
        A(f'ds_write_b128 v5, v[{96+4*k}:{99+4*k}] offset:{k*1024}')
    for t in range(3):
        A(f's_cmp_lg_u32 s45, {t}')
        A(f's_cbranch_scc1 K1_KG_T{t}')
        for r in range(4): p_row(t,32+r,36+r,40)
        A(f'K1_KG_T{t}:')
    A('s_waitcnt lgkmcnt(0)')
    A('s_barrier')
    A('s_cmp_ge_u32 s45, 3')
    A('s_cbranch_scc1 K1_KG_SKIP')
    A('v_lshlrev_b32 v5, 4, v0')
    for w in range(4):
        A(f'ds_read_b128 v[{8+4*w}:{11+4*w}], v5 offset:{w*3072}')
    for r in range(4):
        A(f'v_lshl_add_u32 v{36+r}, v4, 3, v{36+r}')
        A(f'v_lshlrev_b32 v{36+r}, 1, v{36+r}')
    A('s_waitcnt lgkmcnt(0)')
    A('v_pk_add_f32 v[8:9], v[8:9], v[12:13]')
    A('v_pk_add_f32 v[10:11], v[10:11], v[14:15]')
    A('v_pk_add_f32 v[16:17], v[16:17], v[20:21]')
    A('v_pk_add_f32 v[18:19], v[18:19], v[22:23]')
    A('v_pk_add_f32 v[8:9], v[8:9], v[16:17]')
    A('v_pk_add_f32 v[10:11], v[10:11], v[18:19]')
    A('v_cvt_pk_bf16_f32 v8, v8, v9')
    A('v_cvt_pk_bf16_f32 v10, v10, v11')
    A('ds_write_b16 v36, v8 offset:12288')
    A('ds_write_b16_d16_hi v37, v8 offset:12288')
    A('ds_write_b16 v38, v10 offset:12288')
    A('ds_write_b16_d16_hi v39, v10 offset:12288')
    A('K1_KG_SKIP:')
    A('s_waitcnt lgkmcnt(0)')
    A('s_barrier')
    stamp(A,4)
    for e in range(8):
        A(f'ds_read_u16 v{24+e}, v{114+e} offset:12288')
    A('v_lshlrev_b32 v5, 4, v0')
    A(f's_mul_i32 s44, s23, {KFC}')
    A('v_mov_b32 v40, 0\nv_mov_b32 v41, 0\nv_mov_b32 v42, 0\nv_mov_b32 v43, 0')
    A('s_waitcnt lgkmcnt(0)')
    for e in range(4):
        A(f'v_lshl_or_b32 v{16+e}, v{25+2*e}, 16, v{24+2*e}')
    A(f'buffer_store_dwordx4 v[16:19], v5, s[40:43], s44 offen offset:32 {POL["KF"]}')
    A('v_cmp_gt_u32 vcc, 2, v0')
    A('s_and_saveexec_b64 s[56:57], vcc')
    A('s_cbranch_execz K1_KG_END')
    A('buffer_store_dwordx4 v[40:43], v5, s[40:43], s44 offen')
    A('K1_KG_END:')
    if STAMP:
        A('s_mov_b64 exec, -1')
        stamp(A,5)
        stamp_out(A,6,0)
    A('s_endpgm')
    if W2K1: gen_w2(A,0)
    return A.text(), kd('k1_kernel',128)

K2_W1=144; K2_CV=576
K2_GRID=K2_W1+K2_CV+(0 if os.environ.get('W2K1','1')=='1' else K1_W2)
CV_U=0
CV_P=4608
CV_E=4608
W1S=64
W1_TAB=576*W1S
K2_LDS=max(CV_E+33024, 32*RS, W1_TAB+3456)

def load_tile_g(A,delta=False):
    A('v_lshrrev_b32 v1, 3, v0')
    A('v_and_b32 v2, 7, v0')
    A('v_add_u32 v3, s20, v1')
    if delta:
        A('v_lshrrev_b32 v4, 4, v1')
        A('v_mul_u32_u24 v4, s21, v4')
        A('v_add_u32 v3, v3, v4')
    A('v_mul_u32_u24 v3, 1152, v3')
    A('v_lshl_add_u32 v3, v2, 4, v3')
    for c in range(9):
        A(f'buffer_load_dwordx4 v[{8+4*c}:{11+4*c}], v3, s[8:11], 0 offen offset:{c*128} nt')
    A(f'v_mul_u32_u24 v4, {RS}, v1')
    A('v_lshl_add_u32 v4, v2, 4, v4')
def write_tile_g(A,base):
    for c in range(9):
        A(f'ds_write_b128 v4, v[{base+4*c}:{base+3+4*c}] offset:{c*128}')
def tr_tile_g(A,rows_h):
    for q in range(9):
        A(f'ds_read_b64_tr_b16 v[{8+4*q}:{9+4*q}], v5 offset:{q*32}')
        A(f'ds_read_b64_tr_b16 v[{10+4*q}:{11+4*q}], v5 offset:{q*32+rows_h*RS}')

def gen_k2():
    A=Asm()
    A('k2_kernel:')
    A(f's_load_dwordx2 s[4:5], s[0:1], {KA["ws"]}')
    A('s_mov_b32 s3, s2')
    A(f's_cmp_lt_u32 s3, {K2_CV}')
    A('s_cbranch_scc1 K2_CV')
    A(f's_sub_u32 s3, s3, {K2_CV}')
    A(f's_cmp_lt_u32 s3, {K2_W1}')
    A('s_cbranch_scc1 K2_W1')
    if not W2K1:
        A(f's_sub_u32 s3, s3, {K2_W1}')
        A(f's_cmp_lt_u32 s3, {K1_W2}')
        A('s_cbranch_scc1 K1_W2')
    A('s_endpgm')
    A('K2_CV:')
    if 'K2_CV' in SKIP: A('s_endpgm')
    stamp(A,0)
    A(f's_load_dwordx2 s[6:7], s[0:1], {KA["dskip"]}')
    A('s_mov_b32 s23, s3')
    A('s_lshl_b32 s22, s23, 1')
    A('s_and_b32 s22, s22, 0xfffffffc')
    A('s_lshl_b32 s24, s23, 2')
    A('s_add_u32 s25, s24, 2304')
    A('s_add_u32 s26, s24, 4608')
    A('s_add_u32 s27, s24, 9216')
    A('s_lshl_b32 s44, s23, 12')
    A(f's_mul_i32 s45, s23, {KFC}')
    A('v_lshlrev_b32 v1, 4, v0')
    A('v_lshlrev_b32 v2, 5, v0')
    A('v_and_b32 v20, 15, v0')
    A('v_bfe_u32 v21, v0, 4, 2')
    A('v_lshrrev_b32 v22, 6, v0')
    A('s_waitcnt lgkmcnt(0)')
    stamp(A,8)
    A('s_load_dword s34, s[6:7], s22')
    A('s_load_dword s35, s[4:5], s24')
    A('s_load_dword s36, s[4:5], s25')
    A('s_load_dword s37, s[4:5], s26')
    A('s_load_dword s33, s[4:5], s27')
    srd(A,16,4,SZ_KF,WS['KF'])
    WA=72; WB=80; OA=88; OB=96
    A(f'buffer_load_dwordx4 v[{WA}:{WA+3}], v1, s[16:19], s45 offen offset:16')
    A(f'buffer_load_dwordx4 v[{WA+4}:{WA+7}], v1, s[16:19], s45 offen offset:32')
    A(f'buffer_load_dwordx4 v[{WB}:{WB+3}], v1, s[16:19], s45 offen offset:20')
    A(f'buffer_load_dwordx4 v[{WB+4}:{WB+7}], v1, s[16:19], s45 offen offset:36')
    srd(A,8,4,SZ_XT,WS['XT'])
    A('buffer_load_dwordx4 v[12:15], v1, s[8:11], s44 offen')
    srd(A,12,4,8192,WS['STAT'])
    A('buffer_load_dwordx4 v[40:43], v2, s[12:15], 0 offen')
    A('buffer_load_dwordx4 v[44:47], v2, s[12:15], 0 offen offset:16')
    srd(A,40,4,SZ_XT,WS['X1T'])
    stamp(A,9)
    A('v_mov_b32 v16, 0\nv_mov_b32 v17, 0\nv_mov_b32 v18, 0\nv_mov_b32 v19, 0')
    A(f'v_add_u32 v3, {CV_U+4096}, v1')
    A(f'v_add_u32 v23, {CV_E-512}, v1')
    A('v_cmp_gt_u32 vcc, 32, v0')
    A('v_cndmask_b32 v3, v23, v3, vcc')
    A('v_cmp_gt_u32 vcc, 40, v0')
    A('s_and_saveexec_b64 s[46:47], vcc')
    A('ds_write_b128 v3, v[16:19]')
    A('s_mov_b64 exec, s[46:47]')
    A('v_lshlrev_b32 v23, 7, v22')
    A('v_lshl_add_u32 v23, v21, 4, v23')
    A('v_lshlrev_b32 v25, 5, v20')
    A('v_sub_u32 v23, v23, v25')
    A(f'v_add_u32 v23, {CV_U+480}, v23')
    A(f'v_sub_u32 v25, {CV_U+4080}, v1')
    A('v_lshl_add_u32 v24, v21, 3, v20')
    A('v_lshl_add_u32 v24, v22, 6, v24')
    A('v_add_u32 v24, 1, v24')
    for res in range(2):
        if res: A('v_add_u32 v24, 32, v24')
        A('v_bfe_u32 v30, v24, 3, 3')
        A(f'v_xor_b32 v{30+res}, v24, v30')
        A(f'v_lshlrev_b32 v{30+res}, 4, v{30+res}')
        if res==0: A('v_mov_b32 v29, v30')
    A('v_mov_b32 v30, v29')
    A('v_add_u32 v26, 1, v0')
    A('v_and_b32 v27, 7, v26')
    A('v_lshlrev_b32 v27, 4, v27')
    A('v_lshlrev_b32 v26, 7, v26')
    for sft in range(8):
        A(f'v_xor_b32 v{104+sft}, {sft*16}, v27')
        A(f'v_add_u32 v{104+sft}, v26, v{104+sft}')
    stamp(A,1)
    A('s_waitcnt vmcnt(3)')
    stamp(A,2)
    for j in range(6):
        A(f'v_alignbit_b32 v{OA+j}, v{WA+j+1}, v{WA+j}, 16')
        A(f'v_alignbit_b32 v{OB+j}, v{WB+j+1}, v{WB+j}, 16')
    for sft,r in enumerate([WA,OA,WB,OB,WA+2,OA+2,WB+2,OB+2]):
        A(f'ds_write_b128 v{104+sft}, v[{r}:{r+3}] offset:{CV_E}')
    A('v_cmp_eq_u32 vcc, 255, v0')
    A('v_mov_b32 v3, 0')
    A('s_and_saveexec_b64 s[46:47], vcc')
    A(f'ds_write_b128 v3, v[{WA+4}:{WA+7}] offset:{CV_E+257*128+16}')
    A('s_mov_b64 exec, s[46:47]')
    A('s_waitcnt lgkmcnt(0)')
    A('s_and_b32 s22, s23, 1')
    A('s_lshl_b32 s22, s22, 4')
    A('s_lshr_b32 s34, s34, s22')
    A('s_lshl_b32 s34, s34, 16')
    A('s_mov_b32 s38, s35')
    A('s_mov_b32 s39, s35')
    A('v_add_f32 v26, 1.0, s36')
    A('v_cvt_pk_bf16_f32 v26, v26, v26')
    A('v_lshlrev_b32 v26, 16, v26')
    A('s_waitcnt vmcnt(0)')
    H=32; X=48; M=56; SD=64
    for e in range(4): unpack(A,X+2*e,X+1+2*e,12+e)
    for e in range(8): unpack(A,M+e,SD+e,40+e)
    for e in range(8): A(f'v_rcp_f32 v{SD+e}, v{SD+e}')
    for e in range(4): A(f'v_pk_add_f32 v[{H+2*e}:{H+1+2*e}], v[{X+2*e}:{X+1+2*e}], v[{M+2*e}:{M+1+2*e}] neg_lo:[0,1] neg_hi:[0,1]')
    def rnd(base,tmp):
        for e in range(4): A(f'v_cvt_pk_bf16_f32 v{tmp+e}, v{base+2*e}, v{base+2*e+1}')
        for e in range(4): unpack(A,base+2*e,base+2*e+1,tmp+e)
    rnd(H,4)
    for e in range(4): A(f'v_pk_mul_f32 v[{H+2*e}:{H+1+2*e}], v[{H+2*e}:{H+1+2*e}], v[{SD+2*e}:{SD+1+2*e}]')
    rnd(H,4)
    for e in range(4): A(f'v_pk_mul_f32 v[{H+2*e}:{H+1+2*e}], v[{H+2*e}:{H+1+2*e}], v[26:27] op_sel_hi:[1,0]')
    rnd(H,4)
    for e in range(4): A(f'v_pk_add_f32 v[{H+2*e}:{H+1+2*e}], v[{H+2*e}:{H+1+2*e}], s[38:39]')
    for e in range(4): A(f'v_cvt_pk_bf16_f32 v{4+e}, v{H+7-2*e}, v{H+6-2*e}')
    A('ds_write_b128 v25, v[4:7]')
    for e in range(4): unpack(A,H+7-2*e,H+6-2*e,4+e)
    for e in range(8): A(f'v_mul_f32 v{H+e}, s34, v{H+e}')
    A('v_and_b32 v27, 63, v0')
    A('v_lshlrev_b32 v27, 4, v27')
    A('v_lshl_add_u32 v27, v22, 13, v27')
    A('v_lshrrev_b32 v28, 5, v0')
    A('v_lshlrev_b32 v28, 10, v28')
    A('v_bfe_u32 v29, v0, 1, 4')
    A('v_lshl_add_u32 v28, v29, 4, v28')
    A('v_and_b32 v29, 1, v0')
    A('v_lshl_add_u32 v28, v29, 9, v28')
    A('s_waitcnt lgkmcnt(0)')
    A('s_barrier')
    stamp(A,3)
    Y=32; V=64; G=96
    for res in range(2):
        for n in range(8):
            A(f'ds_read_b128 v[{V+4*n}:{V+3+4*n}], v23 offset:{(7-n)*512+res*64}')
            A(f'ds_read_b128 v[{G+4*n}:{G+3+4*n}], v{30+res} offset:{CV_E+n*4096}')
        if res==0:
            for e in range(4): A(f'v_cvt_pk_bf16_f32 v{8+e}, v{H+2*e}, v{H+1+2*e}')
        done=set()
        for lev in range(8):
            A(f's_waitcnt lgkmcnt({2*(7-lev)})')
            if res==1 and lev==7: A('s_barrier')
            for q in range(lev+1):
                for n1 in range(lev+1):
                    if max(q,n1)!=lev or q+n1>7: continue
                    n=q+n1
                    c = f'v[{Y+4*n}:{Y+3+4*n}]' if (res or n in done) else '0'
                    done.add(n)
                    A(f'v_mfma_f32_16x16x32_bf16 v[{Y+4*n}:{Y+3+4*n}], v[{G+4*q}:{G+3+4*q}], v[{V+4*n1}:{V+3+4*n1}], {c}')
    stamp(A,4)
    for n in range(8):
        A(f'ds_write_b128 v27, v[{Y+4*n}:{Y+3+4*n}] offset:{CV_P+n*1024}')
    A('v_lshrrev_b32 v2, 3, v0')
    A('v_mul_u32_u24 v2, 73728, v2')
    A('v_and_b32 v3, 7, v0')
    A('v_lshl_add_u32 v2, v3, 4, v2')
    A('s_lshl_b32 s44, s23, 7')
    A('s_mov_b32 s38, s37')
    A('s_mov_b32 s39, s37')
    A('s_waitcnt lgkmcnt(0)')
    A('s_barrier')
    stamp(A,5)
    S=64; X=40
    for w in range(4):
        A(f'ds_read_b128 v[{S+8*w}:{S+3+8*w}], v28 offset:{CV_P+w*8192}')
        A(f'ds_read_b128 v[{S+4+8*w}:{S+7+8*w}], v28 offset:{CV_P+w*8192+256}')
    for e in range(4): unpack(A,H+2*e,H+1+2*e,8+e)
    for e in range(4): unpack(A,X+2*e,X+1+2*e,12+e)
    A('s_waitcnt lgkmcnt(0)')
    for e in range(0,8,2):
        A(f'v_pk_add_f32 v[{S+e}:{S+1+e}], v[{S+e}:{S+1+e}], v[{S+8+e}:{S+9+e}]')
        A(f'v_pk_add_f32 v[{S+16+e}:{S+17+e}], v[{S+16+e}:{S+17+e}], v[{S+24+e}:{S+25+e}]')
    for e in range(0,8,2):
        A(f'v_pk_add_f32 v[{S+e}:{S+1+e}], v[{S+e}:{S+1+e}], v[{S+16+e}:{S+17+e}]')
    rnd(S,4)
    for e in range(0,8,2): A(f'v_pk_add_f32 v[{S+e}:{S+1+e}], v[{S+e}:{S+1+e}], v[{H+e}:{H+1+e}]')
    rnd(S,4)
    for e in range(0,8,2): A(f'v_pk_mul_f32 v[{S+e}:{S+1+e}], v[{S+e}:{S+1+e}], s[38:39]')
    rnd(S,4)
    for e in range(0,8,2): A(f'v_pk_add_f32 v[{S+e}:{S+1+e}], v[{S+e}:{S+1+e}], v[{X+e}:{X+1+e}]')
    for e in range(4): A(f'v_cvt_pk_bf16_f32 v{4+e}, v{S+2*e}, v{S+1+2*e}')
    A(f'buffer_store_dwordx4 v[4:7], v2, s[40:43], s44 offen {POL["X1"]}')
    stamp(A,6)
    if STAMP: A('s_waitcnt vmcnt(0)')
    stamp(A,7)
    stamp_out(A,10,1)
    A('s_endpgm')

    A('K2_W1:')
    if 'K2_W1' in SKIP: A('s_endpgm')
    A('s_and_b32 s24, s3, 7')
    A('s_mul_i32 s24, s24, 18')
    A('s_lshr_b32 s3, s3, 3')
    A('s_add_u32 s3, s3, s24')
    A(f's_load_dwordx2 s[6:7], s[0:1], {KA["w1"]}')
    A('s_lshl_b32 s23, s3, 6')
    A('v_lshrrev_b32 v2, 2, v0')
    A('v_and_b32 v3, 3, v0')
    A('v_mul_u32_u24 v4, 9216, v2')
    A('v_lshl_add_u32 v4, v3, 4, v4')
    A('v_add_u32 v4, s23, v4')
    A('v_lshlrev_b32 v1, 2, v0')
    A('s_waitcnt lgkmcnt(0)')
    srd(A,8,6,SZ_W)
    for c in range(9):
        A(f's_mov_b32 s22, {c*64*9216}')
        A(f'buffer_load_dwordx4 v[{8+4*c}:{11+4*c}], v4, s[8:11], s22 offen nt')
    srd(A,16,4,3456*4,WS['MOD'])
    for c in range(3):
        A(f's_mov_b32 s22, {(3*576+256*c)*4}')
        A(f'buffer_load_dword v{100+c}, v1, s[16:19], s22 offen')
        A(f's_mov_b32 s22, {(4*576+256*c)*4}')
        A(f'buffer_load_dword v{104+c}, v1, s[16:19], s22 offen')
    srd(A,12,4,SZ_W,WS['W1F'])
    srd(A,36,4,4608*4,WS['CS'])
    srd(A,40,4,4608*4,WS['BIAS'])
    A(f'v_mul_u32_u24 v5, {W1S}, v2')
    A('v_lshl_add_u32 v5, v3, 4, v5')
    A('v_and_b32 v116, 63, v0')
    A('v_bfe_u32 v117, v0, 6, 1')
    A('v_lshrrev_b32 v111, 7, v0')
    A('v_lshrrev_b32 v118, 2, v116')
    A(f'v_mul_u32_u24 v6, {W1S}, v118')
    A('v_and_b32 v118, 3, v116')
    A('v_lshl_add_u32 v6, v118, 3, v6')
    A('v_lshl_add_u32 v6, v117, 5, v6')
    A(f'v_mul_u32_u24 v118, {288*W1S}, v111')
    A('v_add_u32 v6, v6, v118')
    A('v_lshrrev_b32 v119, 4, v116')
    A('v_mul_u32_u24 v118, 1152, v111')
    A('v_lshl_add_u32 v7, v119, 4, v118')
    A('v_lshrrev_b32 v108, 1, v7')
    A('s_lshl_b32 s24, s3, 1')
    A('v_readfirstlane_b32 s26, v117')
    A('v_readfirstlane_b32 s28, v111')
    A('s_add_u32 s26, s26, s24')
    A('s_mul_i32 s27, s26, 171')
    A('s_lshr_b32 s27, s27, 9')
    A('s_mul_i32 s29, s27, 3')
    A('s_sub_u32 s26, s26, s29')
    A('s_lshl_b32 s29, s26, 10')
    A('s_mul_i32 s27, s27, 55296')
    A('s_add_u32 s29, s29, s27')
    A('s_mul_i32 s28, s28, 27648')
    A('s_add_u32 s29, s29, s28')
    A('s_mov_b32 s30, 3072')
    A('v_lshlrev_b32 v109, 4, v116')
    A('v_lshlrev_b32 v110, 1, v0')
    A('v_mov_b32 v112, 0x3f803f80\nv_mov_b32 v113, 0x3f803f80\nv_mov_b32 v114, 0x3f803f80\nv_mov_b32 v115, 0x3f803f80')
    for c in range(9):
        A(f's_waitcnt vmcnt({14-c})')
        A(f'ds_write_b128 v5, v[{8+4*c}:{11+4*c}] offset:{c*64*W1S}')
    A('s_waitcnt vmcnt(0)')
    for c in range(3):
        A(f'v_add_f32 v{104+c}, 1.0, v{104+c}')
        A(f'v_cvt_pk_bf16_f32 v{104+c}, v{104+c}, v{104+c}')
        A(f'v_lshlrev_b32 v{104+c}, 16, v{104+c}')
        if c==2:
            A('v_cmp_gt_u32 vcc, 64, v0')
            A('s_and_saveexec_b64 s[46:47], vcc')
        A(f'ds_write_b32 v1, v{104+c} offset:{W1_TAB+1024*c}')
        A(f'ds_write_b16_d16_hi v110, v{100+c} offset:{W1_TAB+2304+512*c}')
    A('s_mov_b64 exec, s[46:47]')
    A('s_waitcnt lgkmcnt(0)')
    A('s_barrier')
    def rd(kk,F):
        A(f'ds_read_b64_tr_b16 v[{F}:{F+1}], v6 offset:{kk*32*W1S}')
        A(f'ds_read_b64_tr_b16 v[{F+2}:{F+3}], v6 offset:{kk*32*W1S+16*W1S}')
        A(f'ds_read_b128 v[{F+4}:{F+7}], v7 offset:{W1_TAB+kk*128}')
        A(f'ds_read_b128 v[{F+8}:{F+11}], v7 offset:{W1_TAB+kk*128+64}')
        A(f'ds_read_b64 v[{F+12}:{F+13}], v108 offset:{W1_TAB+2304+kk*64}')
        A(f'ds_read_b64 v[{F+14}:{F+15}], v108 offset:{W1_TAB+2304+kk*64+32}')
    rd(0,48)
    for kk in range(9):
        F=48+16*(kk&1)
        if kk<8:
            rd(kk+1,48+16*((kk+1)&1))
            A('s_waitcnt lgkmcnt(6)')
        else: A('s_waitcnt lgkmcnt(0)')
        A(f'v_mfma_f32_16x16x32_bf16 v[124:127], v[{F}:{F+3}], v[{F+12}:{F+15}], {"v[124:127]" if kk else "0"}')
        O=8+4*kk
        for e in range(4): unpack(A,80+2*e,81+2*e,F+e)
        for e in range(4): A(f'v_pk_mul_f32 v[{80+2*e}:{81+2*e}], v[{80+2*e}:{81+2*e}], v[{F+4+2*e}:{F+5+2*e}]')
        for e in range(4): A(f'v_cvt_pk_bf16_f32 v{O+e}, v{80+2*e}, v{81+2*e}')
        A(f'v_mfma_f32_16x16x32_bf16 v[120:123], v[{O}:{O+3}], v[112:115], {"v[120:123]" if kk else "0"}')
        A(f'buffer_store_dwordx4 v[{O}:{O+3}], v109, s[12:15], s29 offen {POL["W1F"]}')
        A('s_add_u32 s29, s29, s30')
    A('s_barrier')
    A('v_and_b32 v1, 127, v0')
    A('v_lshlrev_b32 v1, 5, v1')
    A('v_readfirstlane_b32 s45, v111')
    A('s_cmp_eq_u32 s45, 0')
    A('s_cbranch_scc1 K2_W1_A')
    A('ds_write_b128 v1, v[120:123]')
    A('ds_write_b128 v1, v[124:127] offset:16')
    A('s_waitcnt lgkmcnt(0)')
    A('s_barrier')
    A('s_endpgm')
    A('K2_W1_A:')
    A('s_barrier')
    A('ds_read_b128 v[48:51], v1')
    A('ds_read_b128 v[52:55], v1 offset:16')
    A('v_and_b32 v2, 15, v0')
    A('v_cmp_eq_u32 vcc, 0, v2')
    A('s_lshl_b32 s24, s3, 7')
    A('s_waitcnt lgkmcnt(0)')
    for e in range(0,8,2): A(f'v_pk_add_f32 v[{120+e}:{121+e}], v[{120+e}:{121+e}], v[{48+e}:{49+e}]')
    for e in range(4): A(f'v_mul_f32 v{124+e}, 0xbfb8aa3b, v{124+e}')
    A('s_and_saveexec_b64 s[46:47], vcc')
    A('buffer_store_dwordx4 v[120:123], v0, s[36:39], s24 offen')
    A('buffer_store_dwordx4 v[124:127], v0, s[40:43], s24 offen')
    A('s_endpgm')
    if not W2K1: gen_w2(A,1)
    return A.text(), kd('k2_kernel',128)

NOSTAT=bool(os.environ.get('NOSTAT'))
def interleave(A, mf, fill, per=None):
    n=len(mf); m=len(fill); k=0
    for i,x in enumerate(mf):
        A(x)
        tgt=(i+1)*m//n
        while k<tgt:
            A(fill[k]); k+=1
    while k<m:
        A(fill[k]); k+=1

K3_GRID=256
K3_A0=81920; K3_A1=49152; K3_CSL=155648; K3_LDS=156800
class VM:
    def __init__(s): s.q=[]
    def add(s,tag,n=1): s.q+= [tag]*n
    def after(s,tag):
        idx=max(i for i,t in enumerate(s.q) if t==tag)
        return min(63,len(s.q)-1-idx)

def wave_sum(A,r,t):
    A(f'v_add_f32_dpp v{r}, v{r}, v{r} quad_perm:[1,0,3,2] row_mask:0xf bank_mask:0xf')
    A(f'v_add_f32_dpp v{r}, v{r}, v{r} quad_perm:[2,3,0,1] row_mask:0xf bank_mask:0xf')
    A(f'v_add_f32_dpp v{r}, v{r}, v{r} row_half_mirror row_mask:0xf bank_mask:0xf')
    A(f'v_add_f32_dpp v{r}, v{r}, v{r} row_mirror row_mask:0xf bank_mask:0xf')
    A(f'v_mov_b32 v{t}, v{r}')
    A(f'v_permlane16_swap_b32 v{r}, v{t}')
    A(f'v_add_f32 v{r}, v{r}, v{t}')
    A(f'v_mov_b32 v{t}, v{r}')
    A(f'v_permlane32_swap_b32 v{r}, v{t}')
    A(f'v_add_f32 v{r}, v{r}, v{t}')

def row_stat(A,X,r):
    for c in range(9): A(f'v_lshlrev_b32 v{X+c}, 16, v{X+c}')
    A(f'v_add_f32 v{r}, v{X}, v{X+1}')
    for c in range(2,9): A(f'v_add_f32 v{r}, v{r}, v{X+c}')
    wave_sum(A,r,r+1)
    A(f'v_mul_f32 v{r}, 0x3ae38e39, v{r}')
    for c in range(9): A(f'v_sub_f32 v{X+c}, v{X+c}, v{r}')
    A(f'v_mul_f32 v{r+2}, v{X}, v{X}')
    for c in range(1,9): A(f'v_fmac_f32 v{r+2}, v{X+c}, v{X+c}')
    wave_sum(A,r+2,r+1)
    q=r+2
    A(f'v_mul_f32 v{q}, 0x3ae38e39, v{q}')
    A(f'v_cvt_pk_bf16_f32 v{q}, v{q}, v{q}')
    A(f'v_lshlrev_b32 v{q}, 16, v{q}')
    A(f'v_add_f32 v{q}, 0x3727c5ac, v{q}')
    A(f'v_cvt_pk_bf16_f32 v{q}, v{q}, v{q}')
    A(f'v_lshlrev_b32 v{q}, 16, v{q}')
    A(f'v_sqrt_f32 v{q}, v{q}')
    A(f'v_cvt_pk_bf16_f32 v{r}, v{r}, v{q}')

KF_XB=0; KF_HB=73728; KF_ST=147456; KF_CS=147968; KF_DUM=152576; KF_LDS=152576+8192
SZ_P=8*2048*576*2
KF_LDS=KF_CS+4608+1536+64
KF_FL=KF_CS+4608+1536
KF_SP=KF_CS+4608
def gen_kf():
    A=Asm(); vm=VM()
    P=int(os.environ.get('KFP','5'))
    A('k3_kernel:')
    A('s_cmp_ge_u32 s2, 256')
    A('s_cbranch_scc1 KF_END')
    stamp(A,0)
    A(f's_load_dwordx2 s[4:5], s[0:1], {KA["ws"]}')
    NF=int(os.environ.get('KFNF','2'))
    lg={1:0,2:1,4:2,8:3}[NF]
    A('s_and_b32 s23, s2, 7')
    A('s_lshr_b32 s24, s2, 3')
    A(f's_and_b32 s20, s23, {8//NF-1}')
    A(f's_lshl_b32 s20, s20, {lg}')
    A(f's_and_b32 s25, s24, {NF-1}')
    A('s_add_u32 s20, s20, s25')
    A(f's_lshr_b32 s21, s23, {3-lg}')
    A(f's_lshl_b32 s21, s21, {5-lg}')
    A(f's_lshr_b32 s25, s24, {lg}')
    A('s_add_u32 s21, s21, s25')
    BFR=24; ACC=56; RING=104
    t0,t1,t2,t3,G,I=56,57,58,59,60,61
    A('v_and_b32 v1, 63, v0')
    A('v_lshrrev_b32 v2, 6, v0')
    A('v_readfirstlane_b32 s22, v2')
    A('v_lshlrev_b32 v3, 4, v1')
    A(f'v_lshrrev_b32 v{G}, 4, v1')
    A(f'v_and_b32 v{I}, 15, v1')
    A('v_lshrrev_b32 v8, 3, v1')
    A('v_lshlrev_b32 v8, 7, v8')
    A(f'v_and_b32 v{t0}, 7, v1')
    A(f'v_lshlrev_b32 v{t1}, 1, v{G}')
    A(f'v_xor_b32 v{t0}, v{t0}, v{t1}')
    A(f'v_lshl_add_u32 v8, v{t0}, 4, v8')
    A('s_mul_i32 s23, s21, 73728')
    A('s_mul_i32 s33, s22, 6144')
    A('s_add_u32 s23, s23, s33')
    A('s_mul_i32 s24, s20, 12')
    A('s_add_u32 s24, s24, s22')
    A('s_mul_i32 s25, s24, 55296')
    A(f's_add_u32 s26, s25, {WS["W2F"]-WS["W1F"]}')
    A('v_lshlrev_b32 v23, 4, v0')
    A('s_waitcnt lgkmcnt(0)')
    srd(A,12,4,SZ_XT,WS['X1T'])
    A('s_mov_b32 m0, s33')
    for i in range(6):
        if i==4:
            A('s_add_u32 m0, s33, 4096')
            A('s_add_u32 s23, s23, 4096')
        A(f'buffer_load_dwordx4 v8, s[12:15], s23 offen offset:{(i&3)*1024} lds'); vm.add('x')
    srd(A,44,4,0x10000+4608*4,WS['CS'])
    A('v_cmp_le_u32 vcc, 144, v0')
    A(f'v_mov_b32 v{t0}, {0x10000-2304}')
    A(f'v_cndmask_b32 v{t0}, 0, v{t0}, vcc')
    A(f'v_add_u32 v{t0}, v{t0}, v23')
    A('s_mul_i32 s30, s20, 2304')
    A(f'buffer_load_dwordx4 v[64:67], v{t0}, s[44:47], s30 offen'); vm.add('x')
    srd(A,8,4,WS['W2F']-WS['W1F']+SZ_W,WS['W1F'])
    if os.environ.get('KFBAR','1')=='1': A('s_barrier')
    def wload(n):
        r=RING+12*(n%P); sreg=25 if n<18 else 26; vm.add(f'w{n}',3)
        return [f'buffer_load_dwordx4 v[{r+4*j}:{r+4*j+3}], v3, s[8:11], s{sreg} offen offset:{j*1024}' for j in range(3)]+[f's_add_u32 s{sreg}, s{sreg}, 3072']
    P0=int(os.environ.get('KFP0','1'))
    for n in range(P0):
        for x in wload(n): A(x)
    A(f'v_lshrrev_b32 v{t0}, 1, v{G}')
    A(f'v_lshlrev_b32 v{t0}, 10, v{t0}')
    A(f'v_and_b32 v{t1}, 1, v{G}')
    A(f'v_lshrrev_b32 v{t2}, 2, v{I}')
    A(f'v_lshl_add_u32 v{t2}, v{t1}, 2, v{t2}')
    A(f'v_lshl_add_u32 v{t0}, v{t2}, 7, v{t0}')
    A(f'v_and_b32 v{t3}, 3, v{I}')
    A(f'v_lshl_add_u32 v{t0}, v{t3}, 3, v{t0}')
    A(f'v_lshrrev_b32 v{t2}, 1, v{t2}')
    A(f'v_lshlrev_b32 v{t2}, 5, v{t2}')
    for tt in range(4):
        A(f'v_xor_b32 v{10+tt}, {32*tt}, v{t2}')
        A(f'v_add_u32 v{10+tt}, v{t0}, v{10+tt}')
    A('s_and_b32 s30, s22, 3')
    A('s_lshl_b32 s31, s30, 5')
    A(f'v_xor_b32 v18, s31, v{t2}')
    A(f'v_add_u32 v18, v{t0}, v18')
    A('s_lshr_b32 s31, s22, 2')
    A('s_mul_i32 s34, s31, 24576')
    A('v_add_u32 v18, s34, v18')
    A(f'v_lshlrev_b32 v6, 3, v{I}')
    A(f'v_add_u32 v6, {KF_SP}, v6')
    A('s_lshl_b32 s31, s31, 9')
    A('s_lshl_b32 s30, s30, 7')
    A('s_add_u32 s30, s30, s31')
    A('v_add_u32 v7, s30, v6')
    A(f'v_add_u32 v4, {KF_HB}, v3')
    for j in range(3):
        A('s_mul_i32 s30, s22, 3')
        A(f's_add_u32 s30, s30, {j}')
        A('s_lshr_b32 s31, s30, 1')
        A('s_lshl_b32 s31, s31, 12')
        A('s_and_b32 s30, s30, 1')
        A('s_lshl_b32 s30, s30, 3')
        A('s_add_u32 s30, s30, s31')
        A(f'v_add_u32 v{19+j}, s30, v4')
    A('s_mul_i32 s30, s22, 192')
    A(f's_add_u32 s30, s30, {KF_CS}')
    A(f'v_lshl_add_u32 v22, v{G}, 4, s30')
    A(f'v_add_u32 v23, {KF_CS}, v23')
    A('v_and_b32 v9, 3, v1')
    A('v_cmp_eq_u32 s[50:51], 1, v9')
    A('v_cmp_eq_u32 s[52:53], 2, v9')
    A('v_cmp_eq_u32 s[54:55], 3, v9')
    A(f'v_lshrrev_b32 v9, 2, v{I}')
    A(f'v_cmp_eq_u32 s[56:57], v9, v{G}')
    ONE=68; SS=72; SQ=76; SB=80
    for r in range(4): A(f'v_mov_b32 v{ONE+r}, 0x3f803f80')
    srd(A,16,4,SZ_P,WS['HF'])
    A('s_lshl_b32 s34, s20, 5')
    A('s_add_u32 s34, s34, s21')
    A('s_mul_i32 s34, s34, 73728')
    A('s_add_u32 s34, s34, s33')
    A('s_add_u32 s35, s34, 4096')
    stamp(A,1)
    A(f's_waitcnt vmcnt({vm.after("x")})')
    A('v_cmp_gt_u32 vcc, 288, v0')
    A('s_and_saveexec_b64 s[58:59], vcc')
    A('ds_write_b128 v23, v[64:67]')
    A('s_mov_b64 exec, s[58:59]')
    A('s_lshl_b32 s30, s22, 2')
    A(f's_add_u32 s30, s30, {KF_FL}')
    A('v_mov_b32 v5, s30')
    A('v_mov_b32 v9, 0')
    A('ds_write_b32 v5, v9')
    A('s_waitcnt lgkmcnt(0)')
    A('s_barrier')
    stamp(A,2)
    for k in range(6):
        A(f'ds_read_b64_tr_b16 v[{SB+4*k}:{SB+4*k+1}], v18 offset:{k*4096}')
        A(f'ds_read_b64_tr_b16 v[{SB+4*k+2}:{SB+4*k+3}], v18 offset:{k*4096+2048}')
    def rdX(k):
        L=[]
        for tt in range(4):
            b=BFR+16*(k&1)+4*tt; o=(k%9)*4096
            L.append(f'ds_read_b64_tr_b16 v[{b}:{b+1}], v{10+tt} offset:{o}')
            L.append(f'ds_read_b64_tr_b16 v[{b+2}:{b+3}], v{10+tt} offset:{o+2048}')
        return L
    def rdH(k):
        return [f'ds_read_b128 v[{BFR+16*(k&1)+4*tt}:{BFR+16*(k&1)+4*tt+3}], v4 offset:{(k%9)*4096+tt*1024}' for tt in range(4)]
    for n in range(P0,P):
        for x in wload(n): A(x)
    for k in range(6):
        A(f's_waitcnt lgkmcnt({2*(5-k)})')
        A(f'v_mfma_f32_16x16x32_bf16 v[{SS}:{SS+3}], v[{ONE}:{ONE+3}], v[{SB+4*k}:{SB+4*k+3}], {"0" if k==0 else f"v[{SS}:{SS+3}]"}')
        A(f'v_mfma_f32_16x16x32_bf16 v[{SQ}:{SQ+3}], v[{SB+4*k}:{SB+4*k+3}], v[{SB+4*k}:{SB+4*k+3}], {"0" if k==0 else f"v[{SQ}:{SQ+3}]"}')
    for x in rdX(0): A(x)
    A(f'v_cndmask_b32 v{SQ}, v{SQ}, v{SQ+1}, s[50:51]')
    A(f'v_cndmask_b32 v{SQ}, v{SQ}, v{SQ+2}, s[52:53]')
    A(f'v_cndmask_b32 v{SS+1}, v{SQ}, v{SQ+3}, s[54:55]')
    A('s_mov_b64 exec, s[56:57]')
    A(f'ds_write_b64 v7, v[{SS}:{SS+1}]')
    A('s_mov_b64 exec, -1')
    A('s_waitcnt lgkmcnt(0)')
    A('s_barrier')
    stamp(A,3)
    if os.environ.get('KFPRIO','0')=='2': A('s_setprio 2')
    def mm(n):
        k=n%18; L=[]
        for j in range(3):
            for tt in range(4):
                d=ACC+16*j+4*tt; a=RING+12*(n%P)+4*j; b=BFR+16*(k&1)+4*tt
                L.append(f'v_mfma_f32_16x16x32_bf16 v[{d}:{d+3}], v[{a}:{a+3}], v[{b}:{b+3}], {f"v[{d}:{d+3}]" if k else "0"}')
        return L
    def steps(n0,rd,adv,wf=None):
        for k in range(18):
            n=n0+k
            A(f's_waitcnt vmcnt({vm.after(f"w{n}")}) lgkmcnt(0)')
            if k==8:
                for x in adv: A(x)
            if wf and k<17 and (k+1)%3==0: wf((k+1)//3)
            R=rd(k+1) if k<17 else []
            M=mm(n)
            W=wload(n+P) if n+P<36 else None
            idx=0
            for j in range(3):
                for t,x in enumerate(M[4*j:4*j+4]):
                    A(x)
                    for _ in range(2):
                        if idx<len(R): A(R[idx]); idx+=1
                if W: A(W[j])
            if W: A(W[3])
    steps(0,rdX,[f'v_add_u32 v{10+tt}, 0x9000, v{10+tt}' for tt in range(4)])
    stamp(A,4)
    if os.environ.get('KFPRIO','0')=='1': A('s_setprio 3')
    if os.environ.get('KFPRIO','0')=='2': A('s_setprio 0')
    SPR=BFR
    for p in range(3):
        for tt in range(4): A(f'ds_read_b64 v[{SPR+8*p+2*tt}:{SPR+8*p+2*tt+1}], v6 offset:{p*512+tt*128}')
    A('s_waitcnt lgkmcnt(0)')
    NR=10
    for tt in range(4):
        a0=SPR+2*tt
        A(f'v_pk_add_f32 v[{a0}:{a0+1}], v[{a0}:{a0+1}], v[{a0+8}:{a0+9}]')
        A(f'v_pk_add_f32 v[{a0}:{a0+1}], v[{a0}:{a0+1}], v[{a0+16}:{a0+17}]')
        m=NR+2*tt; q=m+1
        for x in [f'v_mul_f32 v{m}, 0x3ae38e39, v{a0}', f'v_mul_f32 v{q}, 0x3ae38e39, v{a0+1}', f'v_fma_f32 v{q}, -v{m}, v{m}, v{q}', f'v_max_f32 v{q}, 0, v{q}',
              f'v_cvt_pk_bf16_f32 v{m}, v{m}, v{q}', f'v_and_b32 v{q}, 0xffff0000, v{m}', f'v_lshlrev_b32 v{m}, 16, v{m}',
              f'v_sub_f32 v{m}, 0, v{m}', f'v_add_f32 v{q}, 0x3727c5ac, v{q}', f'v_cvt_pk_bf16_f32 v{q}, v{q}, v{q}',
              f'v_lshlrev_b32 v{q}, 16, v{q}', f'v_sqrt_f32 v{q}, v{q}', f'v_cvt_pk_bf16_f32 v{q}, v{q}, v{q}',
              f'v_lshlrev_b32 v{q}, 16, v{q}', f'v_rcp_f32 v{q}, v{q}', f'v_mul_f32 v{q}, 0xbfb8aa3b, v{q}']: A(x)
    CB=BFR; T=BFR+24
    for j in range(3):
        A(f'ds_read_b128 v[{CB+8*j}:{CB+8*j+3}], v22 offset:{j*64}')
        A(f'ds_read_b128 v[{CB+8*j+4}:{CB+8*j+7}], v22 offset:{j*64+2304}')
    A('s_waitcnt lgkmcnt(0)')
    for j in range(3):
        c=CB+8*j
        for hh in range(2):
            d0=ACC+16*j+8*hh
            for t in range(2):
                for r in range(4): A(f'v_fmac_f32 v{d0+4*t+r}, v{c+r}, v{NR+2*(2*hh+t)}')
            for t in range(2):
                for r in range(4): A(f'v_fma_f32 v{d0+4*t+r}, v{d0+4*t+r}, v{NR+1+2*(2*hh+t)}, v{c+4+r}')
            for r in range(8): A(f'v_exp_f32 v{T+r}, v{d0+r}')
            for r in range(8): A(f'v_add_f32 v{T+r}, 1.0, v{T+r}')
            for r in range(8): A(f'v_rcp_f32 v{T+r}, v{T+r}')
            for r in range(8): A(f'v_mul_f32 v{d0+r}, v{d0+r}, v{T+r}')
            for t in range(2):
                d=d0+4*t
                A(f'v_cvt_pk_bf16_f32 v{d}, v{d}, v{d+1}')
                A(f'v_cvt_pk_bf16_f32 v{d+1}, v{d+2}, v{d+3}')
            for t in range(2):
                A(f'ds_write_b64 v{19+j}, v[{d0+4*t}:{d0+4*t+1}] offset:{(2*hh+t)*1024}')
    A('s_waitcnt lgkmcnt(0)')
    A('v_mov_b32 v9, 1')
    A('ds_write_b32 v5, v9')
    A(f'v_mov_b32 v5, {KF_FL}')
    stamp(A,5)
    def waitflags(g):
        A(f'KF_W{g}:')
        A(f'ds_read_b64 v[18:19], v5 offset:{g*8}')
        A('s_waitcnt lgkmcnt(0)')
        A('v_and_b32 v18, v18, v19')
        A('v_readfirstlane_b32 s30, v18')
        A('s_cmp_eq_u32 s30, 1')
        A(f's_cbranch_scc1 KF_G{g}')
        A('s_sleep 2')
        A(f's_branch KF_W{g}')
        A(f'KF_G{g}:')
    waitflags(0)
    stamp(A,6)
    for x in rdH(0): A(x)
    steps(18,rdH,['v_add_u32 v4, 0x9000, v4'],waitflags)
    for j in range(3):
        for tp in range(2):
            d=ACC+16*j+8*tp
            for e in range(4): A(f'v_cvt_pk_bf16_f32 v{d+e}, v{d+2*e}, v{d+2*e+1}')
            o=j*2048+tp*1024
            A(f'buffer_store_dwordx4 v[{d}:{d+3}], v3, s[16:19], s{34 if o<4096 else 35} offen offset:{o&4095} {POL["H"]}')
    stamp(A,7)
    if STAMP: A('s_waitcnt vmcnt(0)')
    stamp(A,8)
    if STAMP:
        A('s_and_b32 s30, s22, 3')
        A('s_cmp_lg_u32 s30, 0')
        A('s_cbranch_scc1 KF_END')
        A('s_lshr_b32 s30, s22, 2')
        A('s_lshl_b32 s30, s30, 6')
        A('v_mov_b32 v0, s30')
    stamp_out(A,9,2)
    A('KF_END:')
    A('s_endpgm')
    return A.text(), kd('k3_kernel',RING+12*P)

def gen_k5():
    A=Asm()
    A('k4_kernel:')
    A('s_cmp_ge_u32 s2, 576')
    A('s_cbranch_scc1 K5_END')
    stamp(A,0)
    A(f's_load_dwordx2 s[4:5], s[0:1], {KA["ws"]}')
    A(f's_load_dwordx2 s[6:7], s[0:1], {KA["out"]}')
    A('v_and_b32 v1, 63, v0')
    A('v_lshrrev_b32 v2, 6, v0')
    A('v_readfirstlane_b32 s22, v2')
    A('v_lshlrev_b32 v3, 4, v1')
    A('s_lshl_b32 s20, s2, 2')
    A('s_add_u32 s20, s20, s22')
    A('s_and_b32 s21, s20, 1')
    A('s_lshr_b32 s23, s20, 1')
    A('s_mul_i32 s24, s23, 1821')
    A('s_lshr_b32 s24, s24, 16')
    A('s_mul_i32 s25, s24, 36')
    A('s_sub_u32 s25, s23, s25')
    A('s_lshl_b32 s26, s20, 10')
    A('v_and_b32 v4, 15, v1')
    A('v_lshrrev_b32 v5, 4, v1')
    A('v_lshlrev_b32 v6, 9, v5')
    A('v_lshl_add_u32 v6, v4, 1, v6')
    A('s_mul_i32 s27, s24, 73728')
    A('s_lshl_b32 s28, s25, 11')
    A('s_add_u32 s27, s27, s28')
    A('s_lshl_b32 s28, s21, 6')
    A('s_add_u32 s27, s27, s28')
    A('v_lshlrev_b32 v7, 4, v5')
    A('s_lshl_b32 s29, s25, 6')
    A('s_add_u32 s29, s29, 11520')
    A('s_waitcnt lgkmcnt(0)')
    srd(A,8,4,SZ_P,WS['HF'])
    for f in range(8):
        A(f's_add_u32 s30, s26, {f*2359296}')
        A(f'buffer_load_dwordx4 v[{16+4*f}:{19+4*f}], v3, s[8:11], s30 offen')
    srd(A,16,4,SZ_XT,WS['X1T'])
    for t in range(2):
        for r in range(4):
            A(f'buffer_load_ushort v{8+4*t+r}, v6, s[16:19], s27 offen offset:{r*128+t*32}')
    srd(A,52,4,3456*4,WS['MOD'])
    A('buffer_load_dwordx4 v[48:51], v7, s[52:55], s29 offen')
    srd(A,56,6,SZ_XT)
    A('s_lshl_b32 s27, s24, 6')
    A('s_lshl_b32 s28, s21, 5')
    A('s_add_u32 s27, s27, s28')
    A('v_add_u32 v52, s27, v4')
    A('v_mul_u32_u24 v52, 1152, v52')
    A('v_lshl_add_u32 v52, v5, 3, v52')
    A('s_lshl_b32 s28, s25, 5')
    A('s_add_u32 s31, s28, 18432')
    S=56
    for f in range(8):
        A(f's_waitcnt vmcnt({16-f})')
        for e in range(4):
            if f==0: unpack(A,S+2*e,S+2*e+1,16+e)
            else:
                unpack(A,64+2*e,65+2*e,16+4*f+e)
                A(f'v_pk_add_f32 v[{S+2*e}:{S+2*e+1}], v[{S+2*e}:{S+2*e+1}], v[{64+2*e}:{65+2*e}]')
    for r in range(8): A(f'v_mul_f32 v{S+r}, 0xbf317218, v{S+r}')
    for e in range(4): A(f'v_cvt_pk_bf16_f32 v{16+e}, v{S+2*e}, v{S+2*e+1}')
    for e in range(4): unpack(A,S+2*e,S+2*e+1,16+e)
    A('s_waitcnt vmcnt(0)')
    for e in range(4): A(f'v_pk_mul_f32 v[{S+2*e}:{S+2*e+1}], v[{S+2*e}:{S+2*e+1}], v[{48+2*(e&1)}:{49+2*(e&1)}]')
    for e in range(4): A(f'v_cvt_pk_bf16_f32 v{16+e}, v{S+2*e}, v{S+2*e+1}')
    for e in range(4): unpack(A,S+2*e,S+2*e+1,16+e)
    for r in range(8): A(f'v_lshlrev_b32 v{8+r}, 16, v{8+r}')
    for e in range(4): A(f'v_pk_add_f32 v[{S+2*e}:{S+2*e+1}], v[{S+2*e}:{S+2*e+1}], v[{8+2*e}:{9+2*e}]')
    for e in range(4): A(f'v_cvt_pk_bf16_f32 v{16+e}, v{S+2*e}, v{S+2*e+1}')
    A('buffer_store_dwordx2 v[16:17], v52, s[56:59], s28 offen')
    A('buffer_store_dwordx2 v[18:19], v52, s[56:59], s31 offen')
    stamp(A,1)
    if STAMP: A('s_waitcnt vmcnt(0)')
    stamp(A,2)
    stamp_out(A,3,3)
    A('K5_END:')
    A('s_endpgm')
    return A.text(), kd('k4_kernel',72)

def assemble(kernels, fn):
    hdr=open('cdna_kernels/'+NAME+'.s.ref').read().split('\n')
    out=[l for l in hdr if l.startswith(';') and '@launch' not in l and 'Override launch' not in l and 'grid=ceil' not in l]
    for k in kernels:
        out.append(f'; @launch kernel={k[0]} grid=({k[1]},1,1) block=({k[2]},1,1) lds={k[3]}')
    out.append('.amdgcn_target "amdgcn-amd-amdhsa--gfx950"')
    out.append('.text')
    seen=set()
    for k in kernels:
        if k[0] in seen: continue
        seen.add(k[0])
        out.append(f'.globl {k[0]}\n.p2align 8\n.type {k[0]},@function')
        out.append(k[4])
    seen=set()
    for k in kernels:
        if k[0] in seen: continue
        seen.add(k[0])
        out.append(k[5])
    open(fn,'w').write('\n'.join(out))

if __name__=='__main__':
    t1,d1=gen_k1(); t2,d2=gen_k2(); t3,d3=gen_kf(); t4,d4=gen_k5()
    ks=[('k1_kernel',K1_GRID,256,K1_LDS,t1,d1),('k2_kernel',K2_GRID,256,K2_LDS,t2,d2),
        ('k3_kernel',256,768,KF_LDS,t3,d3),('k4_kernel',576,256,0,t4,d4)]
    nk=int(os.environ.get('NK','4'))
    assemble(ks[:nk], sys.argv[1] if len(sys.argv)>1 else 'k.s')
```

```python
import sys,os
from asmlib import Asm

NAME='adaLN_cond__ssm_conv_s4d__dense_activation_silu__prompt'
KA=dict(x=0,lar=8,aim=16,cr=24,ci=32,logdt=40,dskip=48,w1=64,w2=72,c=80,wmod=88,out=96,dbg=104,ws=112)
WS=dict(MOD=0x0, CS=0x10000, BIAS=0x20000, STAT=0x30000, STAT2=0x38000, X1S=0x400000, XT=0x100000, XNT=0x400000, KF=0x700000, X1T=0xC00000,
        W1F=0x1000000, W2F=0x1800000, HF=0x2000000)
SZ_XT=576*2048*2
KFC=4160
SZ_KF=576*KFC
SZ_W=576*4608*2
SZ_H=2048*4608*2
LOG2E=0x3fb8aa3b
INV2PI=0x3e22f983

def srd(A, d, base, size, off=0):
    if off:
        A(f's_add_u32 s{d}, s{base}, {off:#x}')
        A(f's_addc_u32 s{d+1}, s{base+1}, 0')
    else:
        A(f's_mov_b32 s{d}, s{base}')
        A(f's_mov_b32 s{d+1}, s{base+1}')
    A(f's_mov_b32 s{d+2}, {size:#x}')
    A(f's_mov_b32 s{d+3}, 0x00020000')

def kd(name, vgpr, sgpr=102, agpr=0):
    acc=(vgpr+3)//4*4
    return f'''.section .rodata,"a"
.p2align 6
.amdhsa_kernel {name}
  .amdhsa_next_free_vgpr {acc+agpr if agpr else vgpr}
  .amdhsa_next_free_sgpr {sgpr}
  .amdhsa_accum_offset {acc}
  .amdhsa_group_segment_fixed_size 0
  .amdhsa_kernarg_size 120
  .amdhsa_user_sgpr_count 2
  .amdhsa_user_sgpr_kernarg_segment_ptr 1
  .amdhsa_system_sgpr_workgroup_id_x 1
.end_amdhsa_kernel
'''

STAMP=bool(os.environ.get('STAMP'))
POL=dict(XT='',KF='',W2F='sc1',X1='',W1F='sc1',H='sc1')
for kv in os.environ.get('POL','').split(','):
    if '=' in kv:
        k,v=kv.split('='); POL[k]=v.replace('+',' ')
def stamp(A,i):
    if STAMP:
        A(f's_mem{"real" if os.environ.get("STAMP")=="2" else ""}time s[{60+2*i}:{61+2*i}]')
def stamp_out(A,n,slot):
    if not STAMP: return
    A('s_waitcnt lgkmcnt(0)')
    srd(A,92,4,1<<22,0x8000000+slot*(1<<22))
    A('v_readfirstlane_b32 s96, v0')
    A('s_lshr_b32 s96, s96, 6')
    A('s_lshl_b32 s97, s2, 2')
    A('s_add_u32 s96, s96, s97')
    A('s_lshl_b32 s96, s96, 6')
    A('v_mov_b32 v1, 0')
    for i in range(n):
        A(f'v_mov_b32 v2, s{60+2*i}')
        A(f'buffer_store_dword v2, v1, s[92:95], s96 offen offset:{4*i}')

def unpack(A, dlo, dhi, src):
    A(f'v_lshlrev_b32 v{dlo}, 16, v{src}')
    A(f'v_and_b32 v{dhi}, 0xffff0000, v{src}')

K1_LN=64; K1_MOD=54; K1_W2=144; K1_KG=576
K1_PAD=2
K1_GRID=K1_LN+K1_MOD+K1_KG+((K1_W2+K1_PAD) if os.environ.get('W2K1','1')=='1' else 0)
RS=1184
K1_LDS=32*RS

import os
SKIP=os.environ.get('SKIP','').split(',')
W2K1=os.environ.get('W2K1','1')=='1'
def gen_w2(A,slot):
    A('K1_W2:')
    if 'K1_W2' in SKIP: A('s_endpgm')
    A('s_and_b32 s24, s3, 7')
    A('s_mul_i32 s24, s24, 18')
    A('s_lshr_b32 s3, s3, 3')
    A('s_add_u32 s3, s3, s24')
    stamp(A,0)
    A(f's_load_dwordx2 s[6:7], s[0:1], {KA["w2"]}')
    A('s_mov_b32 s23, s3')
    A('s_lshl_b32 s20, s23, 5')
    A('s_waitcnt lgkmcnt(0)')
    srd(A,8,6,SZ_W)
    srd(A,12,4,SZ_W,WS['W2F'])
    load_tile_g(A,False)
    A('v_and_b32 v116, 63, v0')
    A('v_lshrrev_b32 v117, 6, v0')
    A('v_lshrrev_b32 v120, 2, v116')
    A(f'v_mul_u32_u24 v5, {RS}, v120')
    A('v_and_b32 v120, 3, v116')
    A('v_lshl_add_u32 v5, v120, 3, v5')
    A('v_mul_u32_u24 v120, 288, v117')
    A('v_add_u32 v5, v5, v120')
    A('s_mul_i32 s24, s23, 57')
    A('s_lshr_b32 s24, s24, 10')
    A('s_mul_i32 s25, s24, 18')
    A('s_sub_u32 s25, s23, s25')
    A('s_mul_i32 s24, s24, 663552')
    A('s_mul_i32 s25, s25, 3072')
    A('s_add_u32 s24, s24, s25')
    A('v_mul_u32_u24 v6, 165888, v117')
    A('v_lshl_add_u32 v6, v116, 4, v6')
    A('v_add_u32 v6, s24, v6')
    A('s_waitcnt vmcnt(0)')
    stamp(A,1)
    write_tile_g(A,8)
    A('s_waitcnt lgkmcnt(0)')
    A('s_barrier')
    tr_tile_g(A,16)
    A('s_waitcnt lgkmcnt(0)')
    for q in range(9):
        A(f's_mov_b32 s22, {(q//3)*55296+(q%3)*1024}')
        A(f'buffer_store_dwordx4 v[{8+4*q}:{11+4*q}], v6, s[12:15], s22 offen {POL["W2F"]}')
    stamp(A,2)
    if STAMP: A('s_waitcnt vmcnt(0)')
    stamp(A,3)
    stamp_out(A,4,slot)
    A('s_endpgm')


def gen_k1():
    A=Asm()
    A('k1_kernel:')
    A(f's_load_dwordx2 s[4:5], s[0:1], {KA["ws"]}')
    A('s_mov_b32 s3, s2')
    order=os.environ.get('K1ORD','KG,LN,MOD,PAD,W2').split(',')
    cnt=dict(KG=K1_KG,LN=K1_LN,MOD=K1_MOD,PAD=K1_PAD,W2=K1_W2)
    for r in order:
        if r=='PAD':
            A(f's_cmp_lt_u32 s3, {cnt[r]}')
            A('s_cbranch_scc1 K1_EXIT')
        else:
            A(f's_cmp_lt_u32 s3, {cnt[r]}')
            A(f's_cbranch_scc1 K1_{r}')
        A(f's_sub_u32 s3, s3, {cnt[r]}')
    A('K1_EXIT:')
    A('s_endpgm')

    def load_tile(delta=False):
        A('v_lshrrev_b32 v1, 3, v0')
        A('v_and_b32 v2, 7, v0')
        A('v_add_u32 v3, s20, v1')
        if delta:
            A('v_lshrrev_b32 v4, 4, v1')
            A('v_mul_u32_u24 v4, s21, v4')
            A('v_add_u32 v3, v3, v4')
        A('v_mul_u32_u24 v3, 1152, v3')
        A('v_lshl_add_u32 v3, v2, 4, v3')
        for c in range(9):
            A(f'buffer_load_dwordx4 v[{8+4*c}:{11+4*c}], v3, s[8:11], 0 offen offset:{c*128} nt')
        A(f'v_mul_u32_u24 v4, {RS}, v1')
        A('v_lshl_add_u32 v4, v2, 4, v4')
    def write_tile(base):
        for c in range(9):
            A(f'ds_write_b128 v4, v[{base+4*c}:{base+3+4*c}] offset:{c*128}')

    A('K1_LN:')
    if 'K1_LN' in SKIP: A('s_endpgm')
    stamp(A,0)
    A(f's_load_dwordx2 s[6:7], s[0:1], {KA["x"]}')
    A('s_lshl_b32 s20, s3, 5')
    A('s_waitcnt lgkmcnt(0)')
    srd(A,8,6,SZ_XT)
    load_tile()
    srd(A,12,4,SZ_XT,WS['XT'])
    srd(A,16,4,0x8000+8192,WS['STAT'])
    A('v_and_b32 v116, 63, v0')
    A('v_lshrrev_b32 v117, 6, v0')
    A('v_lshrrev_b32 v118, 4, v116')
    A('v_and_b32 v119, 15, v116')
    A('v_lshrrev_b32 v120, 2, v119')
    A('v_lshl_add_u32 v120, v118, 3, v120')
    A(f'v_mul_u32_u24 v5, {RS}, v120')
    A('v_and_b32 v120, 3, v119')
    A('v_lshl_add_u32 v5, v120, 3, v5')
    A('v_mul_u32_u24 v120, 288, v117')
    A('v_add_u32 v5, v5, v120')
    A('v_mul_u32_u24 v6, 144, v117')
    A('v_add_u32 v6, v6, v119')
    A('v_lshlrev_b32 v6, 12, v6')
    A('v_lshl_add_u32 v6, v118, 4, v6')
    A('s_lshl_b32 s21, s20, 1')
    A('v_add_u32 v6, s21, v6')
    A('s_waitcnt vmcnt(0)')
    stamp(A,1)
    write_tile(8)
    U=44
    for i in range(36): unpack(A,U+2*i,U+2*i+1,8+i)
    A('s_waitcnt lgkmcnt(0)')
    A('s_barrier')
    def tr_tile(rows_h):
        for q in range(9):
            A(f'ds_read_b64_tr_b16 v[{8+4*q}:{9+4*q}], v5 offset:{q*32}')
            A(f'ds_read_b64_tr_b16 v[{10+4*q}:{11+4*q}], v5 offset:{q*32+rows_h*RS}')
    tr_tile(4)
    A(f'v_pk_add_f32 v[116:117], v[{U}:{U+1}], v[{U+2}:{U+3}]')
    A(f'v_pk_add_f32 v[118:119], v[{U+4}:{U+5}], v[{U+6}:{U+7}]')
    for i in range(4,36,2):
        A(f'v_pk_add_f32 v[116:117], v[116:117], v[{U+2*i}:{U+2*i+1}]')
        A(f'v_pk_add_f32 v[118:119], v[118:119], v[{U+2*i+2}:{U+2*i+3}]')
    A('v_pk_add_f32 v[116:117], v[116:117], v[118:119]')
    A('v_add_f32 v116, v116, v117')
    A('s_waitcnt lgkmcnt(0)')
    for q in range(9):
        A(f's_mov_b32 s22, {q*65536}')
        A(f'buffer_store_dwordx4 v[{8+4*q}:{11+4*q}], v6, s[12:15], s22 offen {POL["XT"]}')
    def red8(r):
        A(f'v_add_f32_dpp v{r}, v{r}, v{r} quad_perm:[1,0,3,2] row_mask:0xf bank_mask:0xf')
        A(f'v_add_f32_dpp v{r}, v{r}, v{r} quad_perm:[2,3,0,1] row_mask:0xf bank_mask:0xf')
        A(f'v_add_f32_dpp v{r}, v{r}, v{r} row_half_mirror row_mask:0xf bank_mask:0xf')
    red8(116)
    A('v_mul_f32 v116, 0x3ae38e39, v116')
    A('v_sub_f32 v118, 0, v116')
    for i in range(0,36,2):
        A(f'v_pk_add_f32 v[124:125], v[{U+2*i}:{U+2*i+1}], v[118:119] op_sel_hi:[1,0]')
        A(f'v_pk_add_f32 v[126:127], v[{U+2*i+2}:{U+2*i+3}], v[118:119] op_sel_hi:[1,0]')
        if i==0:
            A('v_pk_mul_f32 v[120:121], v[124:125], v[124:125]')
            A('v_pk_mul_f32 v[122:123], v[126:127], v[126:127]')
        else:
            A('v_pk_fma_f32 v[120:121], v[124:125], v[124:125], v[120:121]')
            A('v_pk_fma_f32 v[122:123], v[126:127], v[126:127], v[122:123]')
    A('v_pk_add_f32 v[120:121], v[120:121], v[122:123]')
    A('v_add_f32 v120, v120, v121')
    red8(120)
    A('v_mul_f32 v120, 0x3ae38e39, v120')
    A('v_cvt_pk_bf16_f32 v120, v120, v120')
    A('v_lshlrev_b32 v120, 16, v120')
    A('v_add_f32 v120, 0x3727c5ac, v120')
    A('v_cvt_pk_bf16_f32 v120, v120, v120')
    A('v_lshlrev_b32 v120, 16, v120')
    A('v_sqrt_f32 v120, v120')
    A('v_cvt_pk_bf16_f32 v120, v116, v120')
    A('v_lshlrev_b32 v121, 2, v1')
    A('v_cmp_eq_u32 vcc, 0, v2')
    A('s_lshl_b32 s21, s20, 2')
    A('s_and_saveexec_b64 s[26:27], vcc')
    A('buffer_store_dword v120, v121, s[16:19], s21 offen')
    if STAMP: A('s_mov_b64 exec, -1')
    stamp(A,2)
    if STAMP: A('s_waitcnt vmcnt(0)')
    stamp(A,3)
    stamp_out(A,4,0)
    A('s_endpgm')

    A('K1_MOD:')
    if 'K1_MOD' in SKIP: A('s_endpgm')
    stamp(A,0)
    A(f's_load_dwordx2 s[6:7], s[0:1], {KA["wmod"]}')
    A(f's_load_dwordx2 s[24:25], s[0:1], {KA["c"]}')
    A('s_mov_b32 s23, s3')
    A('s_lshl_b32 s23, s23, 7')
    A('s_waitcnt lgkmcnt(0)')
    srd(A,8,6,576*3456*2)
    srd(A,12,24,1152)
    srd(A,16,4,3456*4,WS['MOD'])
    A('v_lshrrev_b32 v1, 3, v0')
    A('v_and_b32 v2, 7, v0')
    A('v_lshlrev_b32 v3, 1, v1')
    for c in range(18):
        A(f'buffer_load_ushort v{80+c}, v3, s[12:15], 0 offen offset:{c*64}')
    A('v_mul_u32_u24 v4, 6912, v1')
    A('v_lshl_add_u32 v4, v2, 4, v4')
    A('v_add_u32 v4, s23, v4')
    for c in range(18):
        A(f's_mov_b32 s22, {c*32*6912}')
        A(f'buffer_load_dwordx4 v[{8+4*c}:{11+4*c}], v4, s[8:11], s22 offen nt')
    A('s_waitcnt vmcnt(18)')
    for c in range(18):
        r=80+c
        A(f'v_lshlrev_b32 v{r}, 16, v{r}')
        A(f'v_mul_f32 v100, 0xbfb8aa3b, v{r}')
        A('v_exp_f32 v100, v100')
        A('v_add_f32 v100, 1.0, v100')
        A('v_rcp_f32 v100, v100')
        A(f'v_mul_f32 v{r}, v{r}, v100')
        A(f'v_cvt_pk_bf16_f32 v{r}, v{r}, v{r}')
        A(f'v_lshlrev_b32 v{r}, 16, v{r}')
    for e in range(8): A(f'v_mov_b32 v{104+e}, 0')
    for c in range(18):
        A(f's_waitcnt vmcnt({17-c})')
        for e in range(4):
            unpack(A,100,101,8+4*c+e)
            A(f'v_fmac_f32 v{104+2*e}, v{80+c}, v100')
            A(f'v_fmac_f32 v{105+2*e}, v{80+c}, v101')
    stamp(A,1)
    A('v_lshlrev_b32 v5, 8, v1')
    A('v_lshl_add_u32 v5, v2, 5, v5')
    A('ds_write_b128 v5, v[104:107]')
    A('ds_write_b128 v5, v[108:111] offset:16')
    A('s_waitcnt lgkmcnt(0)')
    A('s_barrier')
    A('v_cmp_gt_u32 vcc, 64, v0')
    A('s_and_saveexec_b64 s[26:27], vcc')
    A('s_cbranch_execz K1_MOD_END')
    A('v_lshlrev_b32 v5, 2, v0')
    for r in range(32):
        A(f'ds_read_b32 v{8+r}, v5 offset:{r*256}')
    A('s_waitcnt lgkmcnt(0)')
    for r in range(16): A(f'v_add_f32 v{8+r}, v{8+r}, v{24+r}')
    for r in range(8): A(f'v_add_f32 v{8+r}, v{8+r}, v{16+r}')
    for r in range(4): A(f'v_add_f32 v{8+r}, v{8+r}, v{12+r}')
    for r in range(2): A(f'v_add_f32 v{8+r}, v{8+r}, v{10+r}')
    A('v_add_f32 v8, v8, v9')
    A('v_cvt_pk_bf16_f32 v8, v8, v8')
    A('v_lshlrev_b32 v8, 16, v8')
    A('s_lshl_b32 s23, s23, 1')
    A('buffer_store_dword v8, v5, s[16:19], s23 offen')
    A('K1_MOD_END:')
    if STAMP:
        A('s_mov_b64 exec, -1')
        stamp(A,2)
        A('s_waitcnt vmcnt(0)')
        stamp(A,3)
        stamp_out(A,4,0)
    A('s_endpgm')

    A('K1_KG:')
    if 'K1_KG' in SKIP: A('s_endpgm')
    stamp(A,0)
    A(f's_load_dwordx4 s[24:27], s[0:1], {KA["lar"]}')
    A(f's_load_dwordx4 s[28:31], s[0:1], {KA["cr"]}')
    A(f's_load_dwordx2 s[32:33], s[0:1], {KA["logdt"]}')
    A('s_mov_b32 s23, s3')
    A('s_lshl_b32 s22, s23, 1')
    A('s_and_b32 s22, s22, 0xfffffffc')
    A('v_and_b32 v1, 63, v0')
    A('v_lshrrev_b32 v2, 4, v0')
    A('v_lshlrev_b32 v3, 4, v2')
    A('s_lshl_b32 s44, s23, 8')
    A('s_waitcnt lgkmcnt(0)')
    A('s_load_dword s34, s[32:33], s22')
    srd(A,8,24,576*128*2)
    A('buffer_load_dwordx4 v[8:11], v3, s[8:11], s44 offen nt')
    srd(A,12,26,576*128*2)
    A('buffer_load_dwordx4 v[12:15], v3, s[12:15], s44 offen nt')
    srd(A,16,28,576*128*2)
    A('buffer_load_dwordx4 v[16:19], v3, s[16:19], s44 offen nt')
    srd(A,36,30,576*128*2)
    A('buffer_load_dwordx4 v[20:23], v3, s[36:39], s44 offen nt')
    srd(A,40,4,SZ_KF,WS['KF'])
    A('v_and_b32 v4, 15, v0')
    def p_row(tile, vi, vd, t):
        if tile==0:
            A(f'v_lshrrev_b32 v{t}, 3, v{vi}')
            A(f'v_and_b32 v{vd}, 7, v{vi}')
            A(f'v_lshl_add_u32 v{vd}, v{t}, 7, v{vd}')
        elif tile==1:
            A(f'v_lshrrev_b32 v{t}, 2, v{vi}')
            A(f'v_and_b32 v{vd}, 3, v{vi}')
            A(f'v_lshlrev_b32 v{vd}, 1, v{vd}')
            A(f'v_lshl_add_u32 v{vd}, v{t}, 7, v{vd}')
            A(f'v_add_u32 v{vd}, 256, v{vd}')
            A(f'v_lshrrev_b32 v{t}, 1, v{vi}')
            A(f'v_lshlrev_b32 v{t}, 7, v{t}')
            A(f'v_and_b32 v{t+1}, 1, v{vi}')
            A(f'v_lshl_add_u32 v{t}, v{t+1}, 2, v{t}')
            A(f'v_cmp_gt_u32 vcc, 8, v{vi}')
            A(f'v_cndmask_b32 v{vd}, v{t}, v{vd}, vcc')
        else:
            A(f'v_lshlrev_b32 v{vd}, 7, v{vi}')
            A(f'v_add_u32 v{vd}, 1024, v{vd}')
    for t in range(3):
        p_row(t,4,24+2*t,112)
        A(f'v_cvt_f32_u32 v{24+2*t}, v{24+2*t}')
    A('v_lshlrev_b32 v30, 3, v4')
    A('v_cvt_f32_u32 v30, v30')
    A('v_mov_b32 v110, 0x41600000')
    A('v_mov_b32 v111, 0')
    A('v_lshlrev_b32 v5, 3, v0')
    for e in range(8):
        A(f'v_add_u32 v{114+e}, {e}, v5')
        A(f'v_cvt_f32_u32 v{114+e}, v{114+e}')
    for e in range(0,8,2):
        A(f'v_cvt_pk_bf16_f32 v{114+e}, v{114+e}, v{115+e}')
        A(f'v_and_b32 v{115+e}, 0xffff0000, v{114+e}')
        A(f'v_lshlrev_b32 v{114+e}, 16, v{114+e}')
    for e in range(8):
        A(f'v_cvt_u32_f32 v{114+e}, v{114+e}')
        A(f'v_lshlrev_b32 v{114+e}, 1, v{114+e}')
    A('s_waitcnt lgkmcnt(0)')
    A('s_and_b32 s22, s23, 1')
    A('s_lshl_b32 s22, s22, 4')
    A('s_lshr_b32 s34, s34, s22')
    A('s_lshl_b32 s34, s34, 16')
    A(f'v_mov_b32 v112, {LOG2E:#x}')
    A('v_mul_f32 v113, s34, v112')
    A('v_exp_f32 v113, v113')
    A('v_cvt_pk_bf16_f32 v113, v113, v113')
    A('v_lshlrev_b32 v113, 16, v113')
    A('v_mul_f32 v108, 0xbfb8aa3b, v113')
    A(f'v_mul_f32 v109, {INV2PI:#x}, v113')
    stamp(A,1)
    A('s_waitcnt vmcnt(0)')
    stamp(A,2)
    for e in range(4):
        unpack(A,32+4*e,34+4*e,8+e)
        unpack(A,33+4*e,35+4*e,12+e)
        unpack(A,48+4*e,50+4*e,16+e)
        unpack(A,49+4*e,51+4*e,20+e)
    for n in range(8):
        A(f'v_mul_f32 v{32+2*n}, v112, v{32+2*n}')
        A(f'v_exp_f32 v{32+2*n}, v{32+2*n}')
    A('v_max3_f32 v6, |v48|, |v49|, |v50|')
    for n in range(51,63,2): A(f'v_max3_f32 v6, |v{n}|, |v{n+1}|, v6')
    A('v_max_f32 v6, |v63|, v6')
    for n in range(0,8,2):
        A(f'v_cvt_pk_bf16_f32 v{32+2*n}, v{32+2*n}, v{34+2*n}')
        A(f'v_and_b32 v{34+2*n}, 0xffff0000, v{32+2*n}')
        A(f'v_lshlrev_b32 v{32+2*n}, 16, v{32+2*n}')
    for q in range(4): A(f'v_readlane_b32 s{48+q}, v6, {16*q}')
    for n in range(8):
        A(f'v_pk_mul_f32 v[{32+2*n}:{33+2*n}], v[{32+2*n}:{33+2*n}], v[108:109]')
    A('s_max_u32 s48, s48, s49')
    A('s_max_u32 s50, s50, s51')
    A('s_max_u32 s48, s48, s50')
    A('s_lshr_b32 s48, s48, 23')
    A('s_max_u32 s48, s48, 13')
    A('s_min_u32 s48, s48, 254')
    A('s_sub_u32 s50, 267, s48')
    A('s_lshl_b32 s50, s50, 23')
    A('s_mov_b32 s51, s50')
    A('s_sub_u32 s49, s48, 153')
    for n in range(8):
        A(f'v_pk_mul_f32 v[{48+2*n}:{49+2*n}], v[{48+2*n}:{49+2*n}], s[50:51]')
    A('v_ldexp_f32 v113, v113, s49')
    for s in range(8):
        Z=32+2*s; C=48+2*s; r=s&3
        for k in range(3):
            A(f'v_pk_fma_f32 v[{64+2*k}:{65+2*k}], v[{Z}:{Z+1}], v[{24+2*k}:{25+2*k}], v[110:111] op_sel_hi:[1,0,1]')
        A(f'v_pk_mul_f32 v[70:71], v[{Z}:{Z+1}], v[30:31] op_sel_hi:[1,0]')
        for k in range(4): A(f'v_fract_f32 v{65+2*k}, v{65+2*k}')
        for k in range(4):
            A(f'v_exp_f32 v{64+2*k}, v{64+2*k}')
            A(f'v_cos_f32 v{72+2*k}, v{65+2*k}')
            A(f'v_sin_f32 v{73+2*k}, v{65+2*k}')
        for k in range(4):
            A(f'v_pk_mul_f32 v[{72+2*k}:{73+2*k}], v[{72+2*k}:{73+2*k}], v[{64+2*k}:{65+2*k}] op_sel_hi:[1,0]')
        for k in range(3):
            A(f'v_cvt_pk_f16_f32 v{80+4*k+r}, v{72+2*k}, v{73+2*k}')
        A(f'v_pk_mul_f32 v[64:65], v[78:79], v[{C}:{C+1}] op_sel_hi:[1,0] neg_hi:[1,0]')
        A(f'v_pk_fma_f32 v[64:65], v[78:79], v[{C}:{C+1}], v[64:65] op_sel:[1,1,0] op_sel_hi:[0,1,1] neg_lo:[1,0,0] neg_hi:[1,0,0]')
        A(f'v_cvt_pk_f16_f32 v{92+r}, v64, v65')
        if r==3:
            for k in range(3):
                c = '0' if s==3 else f'v[{96+4*k}:{99+4*k}]'
                A(f'v_mfma_f32_16x16x32_f16 v[{96+4*k}:{99+4*k}], v[{80+4*k}:{83+4*k}], v[92:95], {c}')
    stamp(A,3)
    A('v_lshrrev_b32 v5, 6, v0')
    A('v_mul_u32_u24 v5, 3072, v5')
    A('v_lshl_add_u32 v5, v1, 4, v5')
    A('v_readfirstlane_b32 s45, v0')
    A('s_lshr_b32 s45, s45, 6')
    A('v_lshrrev_b32 v6, 4, v1')
    A('v_lshlrev_b32 v6, 2, v6')
    for r in range(1,4): A(f'v_add_u32 v{32+r}, {r}, v6')
    A('v_mov_b32 v32, v6')
    for k in range(6):
        A(f'v_pk_mul_f32 v[{96+2*k}:{97+2*k}], v[{96+2*k}:{97+2*k}], v[112:113] op_sel:[0,1] op_sel_hi:[1,1]')
    for k in range(3):
        A(f'ds_write_b128 v5, v[{96+4*k}:{99+4*k}] offset:{k*1024}')
    for t in range(3):
        A(f's_cmp_lg_u32 s45, {t}')
        A(f's_cbranch_scc1 K1_KG_T{t}')
        for r in range(4): p_row(t,32+r,36+r,40)
        A(f'K1_KG_T{t}:')
    A('s_waitcnt lgkmcnt(0)')
    A('s_barrier')
    A('s_cmp_ge_u32 s45, 3')
    A('s_cbranch_scc1 K1_KG_SKIP')
    A('v_lshlrev_b32 v5, 4, v0')
    for w in range(4):
        A(f'ds_read_b128 v[{8+4*w}:{11+4*w}], v5 offset:{w*3072}')
    for r in range(4):
        A(f'v_lshl_add_u32 v{36+r}, v4, 3, v{36+r}')
        A(f'v_lshlrev_b32 v{36+r}, 1, v{36+r}')
    A('s_waitcnt lgkmcnt(0)')
    A('v_pk_add_f32 v[8:9], v[8:9], v[12:13]')
    A('v_pk_add_f32 v[10:11], v[10:11], v[14:15]')
    A('v_pk_add_f32 v[16:17], v[16:17], v[20:21]')
    A('v_pk_add_f32 v[18:19], v[18:19], v[22:23]')
    A('v_pk_add_f32 v[8:9], v[8:9], v[16:17]')
    A('v_pk_add_f32 v[10:11], v[10:11], v[18:19]')
    A('v_cvt_pk_bf16_f32 v8, v8, v9')
    A('v_cvt_pk_bf16_f32 v10, v10, v11')
    A('ds_write_b16 v36, v8 offset:12288')
    A('ds_write_b16_d16_hi v37, v8 offset:12288')
    A('ds_write_b16 v38, v10 offset:12288')
    A('ds_write_b16_d16_hi v39, v10 offset:12288')
    A('K1_KG_SKIP:')
    A('s_waitcnt lgkmcnt(0)')
    A('s_barrier')
    stamp(A,4)
    for e in range(8):
        A(f'ds_read_u16 v{24+e}, v{114+e} offset:12288')
    A('v_lshlrev_b32 v5, 4, v0')
    A(f's_mul_i32 s44, s23, {KFC}')
    A('v_mov_b32 v40, 0\nv_mov_b32 v41, 0\nv_mov_b32 v42, 0\nv_mov_b32 v43, 0')
    A('s_waitcnt lgkmcnt(0)')
    for e in range(4):
        A(f'v_lshl_or_b32 v{16+e}, v{25+2*e}, 16, v{24+2*e}')
    A(f'buffer_store_dwordx4 v[16:19], v5, s[40:43], s44 offen offset:32 {POL["KF"]}')
    A('v_cmp_gt_u32 vcc, 2, v0')
    A('s_and_saveexec_b64 s[56:57], vcc')
    A('s_cbranch_execz K1_KG_END')
    A('buffer_store_dwordx4 v[40:43], v5, s[40:43], s44 offen')
    A('K1_KG_END:')
    if STAMP:
        A('s_mov_b64 exec, -1')
        stamp(A,5)
        stamp_out(A,6,0)
    A('s_endpgm')
    if W2K1: gen_w2(A,0)
    return A.text(), kd('k1_kernel',128)

K2_W1=144; K2_CV=576
K2_GRID=K2_W1+K2_CV+(0 if os.environ.get('W2K1','1')=='1' else K1_W2)
CV_U=0
CV_P=4608
CV_E=4608
W1S=64
W1_TAB=576*W1S
K2_LDS=max(CV_E+33024, 32*RS, W1_TAB+3456)

def load_tile_g(A,delta=False):
    A('v_lshrrev_b32 v1, 3, v0')
    A('v_and_b32 v2, 7, v0')
    A('v_add_u32 v3, s20, v1')
    if delta:
        A('v_lshrrev_b32 v4, 4, v1')
        A('v_mul_u32_u24 v4, s21, v4')
        A('v_add_u32 v3, v3, v4')
    A('v_mul_u32_u24 v3, 1152, v3')
    A('v_lshl_add_u32 v3, v2, 4, v3')
    for c in range(9):
        A(f'buffer_load_dwordx4 v[{8+4*c}:{11+4*c}], v3, s[8:11], 0 offen offset:{c*128} nt')
    A(f'v_mul_u32_u24 v4, {RS}, v1')
    A('v_lshl_add_u32 v4, v2, 4, v4')
def write_tile_g(A,base):
    for c in range(9):
        A(f'ds_write_b128 v4, v[{base+4*c}:{base+3+4*c}] offset:{c*128}')
def tr_tile_g(A,rows_h):
    for q in range(9):
        A(f'ds_read_b64_tr_b16 v[{8+4*q}:{9+4*q}], v5 offset:{q*32}')
        A(f'ds_read_b64_tr_b16 v[{10+4*q}:{11+4*q}], v5 offset:{q*32+rows_h*RS}')

def gen_k2():
    A=Asm()
    A('k2_kernel:')
    A(f's_load_dwordx2 s[4:5], s[0:1], {KA["ws"]}')
    A('s_mov_b32 s3, s2')
    A(f's_cmp_lt_u32 s3, {K2_CV}')
    A('s_cbranch_scc1 K2_CV')
    A(f's_sub_u32 s3, s3, {K2_CV}')
    A(f's_cmp_lt_u32 s3, {K2_W1}')
    A('s_cbranch_scc1 K2_W1')
    if not W2K1:
        A(f's_sub_u32 s3, s3, {K2_W1}')
        A(f's_cmp_lt_u32 s3, {K1_W2}')
        A('s_cbranch_scc1 K1_W2')
    A('s_endpgm')
    A('K2_CV:')
    if 'K2_CV' in SKIP: A('s_endpgm')
    stamp(A,0)
    A(f's_load_dwordx2 s[6:7], s[0:1], {KA["dskip"]}')
    A('s_mov_b32 s23, s3')
    A('s_lshl_b32 s22, s23, 1')
    A('s_and_b32 s22, s22, 0xfffffffc')
    A('s_lshl_b32 s24, s23, 2')
    A('s_add_u32 s25, s24, 2304')
    A('s_add_u32 s26, s24, 4608')
    A('s_add_u32 s27, s24, 9216')
    A('s_lshl_b32 s44, s23, 12')
    A(f's_mul_i32 s45, s23, {KFC}')
    A('v_lshlrev_b32 v1, 4, v0')
    A('v_lshlrev_b32 v2, 5, v0')
    A('v_and_b32 v20, 15, v0')
    A('v_bfe_u32 v21, v0, 4, 2')
    A('v_lshrrev_b32 v22, 6, v0')
    A('s_waitcnt lgkmcnt(0)')
    stamp(A,8)
    A('s_load_dword s34, s[6:7], s22')
    A('s_load_dword s35, s[4:5], s24')
    A('s_load_dword s36, s[4:5], s25')
    A('s_load_dword s37, s[4:5], s26')
    A('s_load_dword s33, s[4:5], s27')
    srd(A,16,4,SZ_KF,WS['KF'])
    WA=72; WB=80; OA=88; OB=96
    A(f'buffer_load_dwordx4 v[{WA}:{WA+3}], v1, s[16:19], s45 offen offset:16')
    A(f'buffer_load_dwordx4 v[{WA+4}:{WA+7}], v1, s[16:19], s45 offen offset:32')
    A(f'buffer_load_dwordx4 v[{WB}:{WB+3}], v1, s[16:19], s45 offen offset:20')
    A(f'buffer_load_dwordx4 v[{WB+4}:{WB+7}], v1, s[16:19], s45 offen offset:36')
    srd(A,8,4,SZ_XT,WS['XT'])
    A('buffer_load_dwordx4 v[12:15], v1, s[8:11], s44 offen')
    srd(A,12,4,8192,WS['STAT'])
    A('buffer_load_dwordx4 v[40:43], v2, s[12:15], 0 offen')
    A('buffer_load_dwordx4 v[44:47], v2, s[12:15], 0 offen offset:16')
    srd(A,40,4,SZ_XT,WS['X1T'])
    stamp(A,9)
    A('v_mov_b32 v16, 0\nv_mov_b32 v17, 0\nv_mov_b32 v18, 0\nv_mov_b32 v19, 0')
    A(f'v_add_u32 v3, {CV_U+4096}, v1')
    A(f'v_add_u32 v23, {CV_E-512}, v1')
    A('v_cmp_gt_u32 vcc, 32, v0')
    A('v_cndmask_b32 v3, v23, v3, vcc')
    A('v_cmp_gt_u32 vcc, 40, v0')
    A('s_and_saveexec_b64 s[46:47], vcc')
    A('ds_write_b128 v3, v[16:19]')
    A('s_mov_b64 exec, s[46:47]')
    A('v_lshlrev_b32 v23, 7, v22')
    A('v_lshl_add_u32 v23, v21, 4, v23')
    A('v_lshlrev_b32 v25, 5, v20')
    A('v_sub_u32 v23, v23, v25')
    A(f'v_add_u32 v23, {CV_U+480}, v23')
    A(f'v_sub_u32 v25, {CV_U+4080}, v1')
    A('v_lshl_add_u32 v24, v21, 3, v20')
    A('v_lshl_add_u32 v24, v22, 6, v24')
    A('v_add_u32 v24, 1, v24')
    for res in range(2):
        if res: A('v_add_u32 v24, 32, v24')
        A('v_bfe_u32 v30, v24, 3, 3')
        A(f'v_xor_b32 v{30+res}, v24, v30')
        A(f'v_lshlrev_b32 v{30+res}, 4, v{30+res}')
        if res==0: A('v_mov_b32 v29, v30')
    A('v_mov_b32 v30, v29')
    A('v_add_u32 v26, 1, v0')
    A('v_and_b32 v27, 7, v26')
    A('v_lshlrev_b32 v27, 4, v27')
    A('v_lshlrev_b32 v26, 7, v26')
    for sft in range(8):
        A(f'v_xor_b32 v{104+sft}, {sft*16}, v27')
        A(f'v_add_u32 v{104+sft}, v26, v{104+sft}')
    stamp(A,1)
    A('s_waitcnt vmcnt(3)')
    stamp(A,2)
    for j in range(6):
        A(f'v_alignbit_b32 v{OA+j}, v{WA+j+1}, v{WA+j}, 16')
        A(f'v_alignbit_b32 v{OB+j}, v{WB+j+1}, v{WB+j}, 16')
    for sft,r in enumerate([WA,OA,WB,OB,WA+2,OA+2,WB+2,OB+2]):
        A(f'ds_write_b128 v{104+sft}, v[{r}:{r+3}] offset:{CV_E}')
    A('v_cmp_eq_u32 vcc, 255, v0')
    A('v_mov_b32 v3, 0')
    A('s_and_saveexec_b64 s[46:47], vcc')
    A(f'ds_write_b128 v3, v[{WA+4}:{WA+7}] offset:{CV_E+257*128+16}')
    A('s_mov_b64 exec, s[46:47]')
    A('s_waitcnt lgkmcnt(0)')
    A('s_and_b32 s22, s23, 1')
    A('s_lshl_b32 s22, s22, 4')
    A('s_lshr_b32 s34, s34, s22')
    A('s_lshl_b32 s34, s34, 16')
    A('s_mov_b32 s38, s35')
    A('s_mov_b32 s39, s35')
    A('v_add_f32 v26, 1.0, s36')
    A('v_cvt_pk_bf16_f32 v26, v26, v26')
    A('v_lshlrev_b32 v26, 16, v26')
    A('s_waitcnt vmcnt(0)')
    H=32; X=48; M=56; SD=64
    for e in range(4): unpack(A,X+2*e,X+1+2*e,12+e)
    for e in range(8): unpack(A,M+e,SD+e,40+e)
    for e in range(8): A(f'v_rcp_f32 v{SD+e}, v{SD+e}')
    for e in range(4): A(f'v_pk_add_f32 v[{H+2*e}:{H+1+2*e}], v[{X+2*e}:{X+1+2*e}], v[{M+2*e}:{M+1+2*e}] neg_lo:[0,1] neg_hi:[0,1]')
    def rnd(base,tmp):
        for e in range(4): A(f'v_cvt_pk_bf16_f32 v{tmp+e}, v{base+2*e}, v{base+2*e+1}')
        for e in range(4): unpack(A,base+2*e,base+2*e+1,tmp+e)
    rnd(H,4)
    for e in range(4): A(f'v_pk_mul_f32 v[{H+2*e}:{H+1+2*e}], v[{H+2*e}:{H+1+2*e}], v[{SD+2*e}:{SD+1+2*e}]')
    rnd(H,4)
    for e in range(4): A(f'v_pk_mul_f32 v[{H+2*e}:{H+1+2*e}], v[{H+2*e}:{H+1+2*e}], v[26:27] op_sel_hi:[1,0]')
    rnd(H,4)
    for e in range(4): A(f'v_pk_add_f32 v[{H+2*e}:{H+1+2*e}], v[{H+2*e}:{H+1+2*e}], s[38:39]')
    for e in range(4): A(f'v_cvt_pk_bf16_f32 v{4+e}, v{H+7-2*e}, v{H+6-2*e}')
    A('ds_write_b128 v25, v[4:7]')
    for e in range(4): unpack(A,H+7-2*e,H+6-2*e,4+e)
    for e in range(8): A(f'v_mul_f32 v{H+e}, s34, v{H+e}')
    A('v_and_b32 v27, 63, v0')
    A('v_lshlrev_b32 v27, 4, v27')
    A('v_lshl_add_u32 v27, v22, 13, v27')
    A('v_lshrrev_b32 v28, 5, v0')
    A('v_lshlrev_b32 v28, 10, v28')
    A('v_bfe_u32 v29, v0, 1, 4')
    A('v_lshl_add_u32 v28, v29, 4, v28')
    A('v_and_b32 v29, 1, v0')
    A('v_lshl_add_u32 v28, v29, 9, v28')
    A('s_waitcnt lgkmcnt(0)')
    A('s_barrier')
    stamp(A,3)
    Y=32; V=64; G=96
    for res in range(2):
        for n in range(8):
            A(f'ds_read_b128 v[{V+4*n}:{V+3+4*n}], v23 offset:{(7-n)*512+res*64}')
            A(f'ds_read_b128 v[{G+4*n}:{G+3+4*n}], v{30+res} offset:{CV_E+n*4096}')
        if res==0:
            for e in range(4): A(f'v_cvt_pk_bf16_f32 v{8+e}, v{H+2*e}, v{H+1+2*e}')
        done=set()
        for lev in range(8):
            A(f's_waitcnt lgkmcnt({2*(7-lev)})')
            if res==1 and lev==7: A('s_barrier')
            for q in range(lev+1):
                for n1 in range(lev+1):
                    if max(q,n1)!=lev or q+n1>7: continue
                    n=q+n1
                    c = f'v[{Y+4*n}:{Y+3+4*n}]' if (res or n in done) else '0'
                    done.add(n)
                    A(f'v_mfma_f32_16x16x32_bf16 v[{Y+4*n}:{Y+3+4*n}], v[{G+4*q}:{G+3+4*q}], v[{V+4*n1}:{V+3+4*n1}], {c}')
    stamp(A,4)
    for n in range(8):
        A(f'ds_write_b128 v27, v[{Y+4*n}:{Y+3+4*n}] offset:{CV_P+n*1024}')
    A('v_lshrrev_b32 v2, 3, v0')
    A('v_mul_u32_u24 v2, 73728, v2')
    A('v_and_b32 v3, 7, v0')
    A('v_lshl_add_u32 v2, v3, 4, v2')
    A('s_lshl_b32 s44, s23, 7')
    A('s_mov_b32 s38, s37')
    A('s_mov_b32 s39, s37')
    A('s_waitcnt lgkmcnt(0)')
    A('s_barrier')
    stamp(A,5)
    S=64; X=40
    for w in range(4):
        A(f'ds_read_b128 v[{S+8*w}:{S+3+8*w}], v28 offset:{CV_P+w*8192}')
        A(f'ds_read_b128 v[{S+4+8*w}:{S+7+8*w}], v28 offset:{CV_P+w*8192+256}')
    for e in range(4): unpack(A,H+2*e,H+1+2*e,8+e)
    for e in range(4): unpack(A,X+2*e,X+1+2*e,12+e)
    A('s_waitcnt lgkmcnt(0)')
    for e in range(0,8,2):
        A(f'v_pk_add_f32 v[{S+e}:{S+1+e}], v[{S+e}:{S+1+e}], v[{S+8+e}:{S+9+e}]')
        A(f'v_pk_add_f32 v[{S+16+e}:{S+17+e}], v[{S+16+e}:{S+17+e}], v[{S+24+e}:{S+25+e}]')
    for e in range(0,8,2):
        A(f'v_pk_add_f32 v[{S+e}:{S+1+e}], v[{S+e}:{S+1+e}], v[{S+16+e}:{S+17+e}]')
    rnd(S,4)
    for e in range(0,8,2): A(f'v_pk_add_f32 v[{S+e}:{S+1+e}], v[{S+e}:{S+1+e}], v[{H+e}:{H+1+e}]')
    rnd(S,4)
    for e in range(0,8,2): A(f'v_pk_mul_f32 v[{S+e}:{S+1+e}], v[{S+e}:{S+1+e}], s[38:39]')
    rnd(S,4)
    for e in range(0,8,2): A(f'v_pk_add_f32 v[{S+e}:{S+1+e}], v[{S+e}:{S+1+e}], v[{X+e}:{X+1+e}]')
    for e in range(4): A(f'v_cvt_pk_bf16_f32 v{4+e}, v{S+2*e}, v{S+1+2*e}')
    A(f'buffer_store_dwordx4 v[4:7], v2, s[40:43], s44 offen {POL["X1"]}')
    stamp(A,6)
    if STAMP: A('s_waitcnt vmcnt(0)')
    stamp(A,7)
    stamp_out(A,10,1)
    A('s_endpgm')

    A('K2_W1:')
    if 'K2_W1' in SKIP: A('s_endpgm')
    A('s_and_b32 s24, s3, 7')
    A('s_mul_i32 s24, s24, 18')
    A('s_lshr_b32 s3, s3, 3')
    A('s_add_u32 s3, s3, s24')
    A(f's_load_dwordx2 s[6:7], s[0:1], {KA["w1"]}')
    A('s_lshl_b32 s23, s3, 6')
    A('v_lshrrev_b32 v2, 2, v0')
    A('v_and_b32 v3, 3, v0')
    A('v_mul_u32_u24 v4, 9216, v2')
    A('v_lshl_add_u32 v4, v3, 4, v4')
    A('v_add_u32 v4, s23, v4')
    A('v_lshlrev_b32 v1, 2, v0')
    A('s_waitcnt lgkmcnt(0)')
    srd(A,8,6,SZ_W)
    for c in range(9):
        A(f's_mov_b32 s22, {c*64*9216}')
        A(f'buffer_load_dwordx4 v[{8+4*c}:{11+4*c}], v4, s[8:11], s22 offen nt')
    srd(A,16,4,3456*4,WS['MOD'])
    for c in range(3):
        A(f's_mov_b32 s22, {(3*576+256*c)*4}')
        A(f'buffer_load_dword v{100+c}, v1, s[16:19], s22 offen')
        A(f's_mov_b32 s22, {(4*576+256*c)*4}')
        A(f'buffer_load_dword v{104+c}, v1, s[16:19], s22 offen')
    srd(A,12,4,SZ_W,WS['W1F'])
    srd(A,36,4,4608*4,WS['CS'])
    srd(A,40,4,4608*4,WS['BIAS'])
    A(f'v_mul_u32_u24 v5, {W1S}, v2')
    A('v_lshl_add_u32 v5, v3, 4, v5')
    A('v_and_b32 v116, 63, v0')
    A('v_bfe_u32 v117, v0, 6, 1')
    A('v_lshrrev_b32 v111, 7, v0')
    A('v_lshrrev_b32 v118, 2, v116')
    A(f'v_mul_u32_u24 v6, {W1S}, v118')
    A('v_and_b32 v118, 3, v116')
    A('v_lshl_add_u32 v6, v118, 3, v6')
    A('v_lshl_add_u32 v6, v117, 5, v6')
    A(f'v_mul_u32_u24 v118, {288*W1S}, v111')
    A('v_add_u32 v6, v6, v118')
    A('v_lshrrev_b32 v119, 4, v116')
    A('v_mul_u32_u24 v118, 1152, v111')
    A('v_lshl_add_u32 v7, v119, 4, v118')
    A('v_lshrrev_b32 v108, 1, v7')
    A('s_lshl_b32 s24, s3, 1')
    A('v_readfirstlane_b32 s26, v117')
    A('v_readfirstlane_b32 s28, v111')
    A('s_add_u32 s26, s26, s24')
    A('s_mul_i32 s27, s26, 171')
    A('s_lshr_b32 s27, s27, 9')
    A('s_mul_i32 s29, s27, 3')
    A('s_sub_u32 s26, s26, s29')
    A('s_lshl_b32 s29, s26, 10')
    A('s_mul_i32 s27, s27, 55296')
    A('s_add_u32 s29, s29, s27')
    A('s_mul_i32 s28, s28, 27648')
    A('s_add_u32 s29, s29, s28')
    A('s_mov_b32 s30, 3072')
    A('v_lshlrev_b32 v109, 4, v116')
    A('v_lshlrev_b32 v110, 1, v0')
    A('v_mov_b32 v112, 0x3f803f80\nv_mov_b32 v113, 0x3f803f80\nv_mov_b32 v114, 0x3f803f80\nv_mov_b32 v115, 0x3f803f80')
    for c in range(9):
        A(f's_waitcnt vmcnt({14-c})')
        A(f'ds_write_b128 v5, v[{8+4*c}:{11+4*c}] offset:{c*64*W1S}')
    A('s_waitcnt vmcnt(0)')
    for c in range(3):
        A(f'v_add_f32 v{104+c}, 1.0, v{104+c}')
        A(f'v_cvt_pk_bf16_f32 v{104+c}, v{104+c}, v{104+c}')
        A(f'v_lshlrev_b32 v{104+c}, 16, v{104+c}')
        if c==2:
            A('v_cmp_gt_u32 vcc, 64, v0')
            A('s_and_saveexec_b64 s[46:47], vcc')
        A(f'ds_write_b32 v1, v{104+c} offset:{W1_TAB+1024*c}')
        A(f'ds_write_b16_d16_hi v110, v{100+c} offset:{W1_TAB+2304+512*c}')
    A('s_mov_b64 exec, s[46:47]')
    A('s_waitcnt lgkmcnt(0)')
    A('s_barrier')
    def rd(kk,F):
        A(f'ds_read_b64_tr_b16 v[{F}:{F+1}], v6 offset:{kk*32*W1S}')
        A(f'ds_read_b64_tr_b16 v[{F+2}:{F+3}], v6 offset:{kk*32*W1S+16*W1S}')
        A(f'ds_read_b128 v[{F+4}:{F+7}], v7 offset:{W1_TAB+kk*128}')
        A(f'ds_read_b128 v[{F+8}:{F+11}], v7 offset:{W1_TAB+kk*128+64}')
        A(f'ds_read_b64 v[{F+12}:{F+13}], v108 offset:{W1_TAB+2304+kk*64}')
        A(f'ds_read_b64 v[{F+14}:{F+15}], v108 offset:{W1_TAB+2304+kk*64+32}')
    rd(0,48)
    for kk in range(9):
        F=48+16*(kk&1)
        if kk<8:
            rd(kk+1,48+16*((kk+1)&1))
            A('s_waitcnt lgkmcnt(6)')
        else: A('s_waitcnt lgkmcnt(0)')
        A(f'v_mfma_f32_16x16x32_bf16 v[124:127], v[{F}:{F+3}], v[{F+12}:{F+15}], {"v[124:127]" if kk else "0"}')
        O=8+4*kk
        for e in range(4): unpack(A,80+2*e,81+2*e,F+e)
        for e in range(4): A(f'v_pk_mul_f32 v[{80+2*e}:{81+2*e}], v[{80+2*e}:{81+2*e}], v[{F+4+2*e}:{F+5+2*e}]')
        for e in range(4): A(f'v_cvt_pk_bf16_f32 v{O+e}, v{80+2*e}, v{81+2*e}')
        A(f'v_mfma_f32_16x16x32_bf16 v[120:123], v[{O}:{O+3}], v[112:115], {"v[120:123]" if kk else "0"}')
        A(f'buffer_store_dwordx4 v[{O}:{O+3}], v109, s[12:15], s29 offen {POL["W1F"]}')
        A('s_add_u32 s29, s29, s30')
    A('s_barrier')
    A('v_and_b32 v1, 127, v0')
    A('v_lshlrev_b32 v1, 5, v1')
    A('v_readfirstlane_b32 s45, v111')
    A('s_cmp_eq_u32 s45, 0')
    A('s_cbranch_scc1 K2_W1_A')
    A('ds_write_b128 v1, v[120:123]')
    A('ds_write_b128 v1, v[124:127] offset:16')
    A('s_waitcnt lgkmcnt(0)')
    A('s_barrier')
    A('s_endpgm')
    A('K2_W1_A:')
    A('s_barrier')
    A('ds_read_b128 v[48:51], v1')
    A('ds_read_b128 v[52:55], v1 offset:16')
    A('v_and_b32 v2, 15, v0')
    A('v_cmp_eq_u32 vcc, 0, v2')
    A('s_lshl_b32 s24, s3, 7')
    A('s_waitcnt lgkmcnt(0)')
    for e in range(0,8,2): A(f'v_pk_add_f32 v[{120+e}:{121+e}], v[{120+e}:{121+e}], v[{48+e}:{49+e}]')
    for e in range(4): A(f'v_mul_f32 v{124+e}, 0xbfb8aa3b, v{124+e}')
    A('s_and_saveexec_b64 s[46:47], vcc')
    A('buffer_store_dwordx4 v[120:123], v0, s[36:39], s24 offen')
    A('buffer_store_dwordx4 v[124:127], v0, s[40:43], s24 offen')
    A('s_endpgm')
    if not W2K1: gen_w2(A,1)
    return A.text(), kd('k2_kernel',128)

NOSTAT=bool(os.environ.get('NOSTAT'))
def interleave(A, mf, fill, per=None):
    n=len(mf); m=len(fill); k=0
    for i,x in enumerate(mf):
        A(x)
        tgt=(i+1)*m//n
        while k<tgt:
            A(fill[k]); k+=1
    while k<m:
        A(fill[k]); k+=1

K3_GRID=256
K3_A0=81920; K3_A1=49152; K3_CSL=155648; K3_LDS=156800
class VM:
    def __init__(s): s.q=[]
    def add(s,tag,n=1): s.q+= [tag]*n
    def after(s,tag):
        idx=max(i for i,t in enumerate(s.q) if t==tag)
        return min(63,len(s.q)-1-idx)

def wave_sum(A,r,t):
    A(f'v_add_f32_dpp v{r}, v{r}, v{r} quad_perm:[1,0,3,2] row_mask:0xf bank_mask:0xf')
    A(f'v_add_f32_dpp v{r}, v{r}, v{r} quad_perm:[2,3,0,1] row_mask:0xf bank_mask:0xf')
    A(f'v_add_f32_dpp v{r}, v{r}, v{r} row_half_mirror row_mask:0xf bank_mask:0xf')
    A(f'v_add_f32_dpp v{r}, v{r}, v{r} row_mirror row_mask:0xf bank_mask:0xf')
    A(f'v_mov_b32 v{t}, v{r}')
    A(f'v_permlane16_swap_b32 v{r}, v{t}')
    A(f'v_add_f32 v{r}, v{r}, v{t}')
    A(f'v_mov_b32 v{t}, v{r}')
    A(f'v_permlane32_swap_b32 v{r}, v{t}')
    A(f'v_add_f32 v{r}, v{r}, v{t}')

def row_stat(A,X,r):
    for c in range(9): A(f'v_lshlrev_b32 v{X+c}, 16, v{X+c}')
    A(f'v_add_f32 v{r}, v{X}, v{X+1}')
    for c in range(2,9): A(f'v_add_f32 v{r}, v{r}, v{X+c}')
    wave_sum(A,r,r+1)
    A(f'v_mul_f32 v{r}, 0x3ae38e39, v{r}')
    for c in range(9): A(f'v_sub_f32 v{X+c}, v{X+c}, v{r}')
    A(f'v_mul_f32 v{r+2}, v{X}, v{X}')
    for c in range(1,9): A(f'v_fmac_f32 v{r+2}, v{X+c}, v{X+c}')
    wave_sum(A,r+2,r+1)
    q=r+2
    A(f'v_mul_f32 v{q}, 0x3ae38e39, v{q}')
    A(f'v_cvt_pk_bf16_f32 v{q}, v{q}, v{q}')
    A(f'v_lshlrev_b32 v{q}, 16, v{q}')
    A(f'v_add_f32 v{q}, 0x3727c5ac, v{q}')
    A(f'v_cvt_pk_bf16_f32 v{q}, v{q}, v{q}')
    A(f'v_lshlrev_b32 v{q}, 16, v{q}')
    A(f'v_sqrt_f32 v{q}, v{q}')
    A(f'v_cvt_pk_bf16_f32 v{r}, v{r}, v{q}')

KF_XB=0; KF_HB=73728; KF_ST=147456; KF_CS=147968; KF_DUM=152576; KF_LDS=152576+8192
SZ_P=8*2048*576*2
KF_LDS=KF_CS+4608+1536+128
KF_FL=KF_CS+4608+1536
KF_SP=KF_CS+4608
def gen_kf():
    A=Asm(); vm=VM()
    P=int(os.environ.get('KFP','5'))
    A('k3_kernel:')
    A('s_cmp_ge_u32 s2, 256')
    A('s_cbranch_scc1 KF_END')
    stamp(A,0)
    A(f's_load_dwordx2 s[4:5], s[0:1], {KA["ws"]}')
    NF=int(os.environ.get('KFNF','2'))
    lg={1:0,2:1,4:2,8:3}[NF]
    A('s_and_b32 s23, s2, 7')
    A('s_lshr_b32 s24, s2, 3')
    A(f's_and_b32 s20, s23, {8//NF-1}')
    A(f's_lshl_b32 s20, s20, {lg}')
    A(f's_and_b32 s25, s24, {NF-1}')
    A('s_add_u32 s20, s20, s25')
    A(f's_lshr_b32 s21, s23, {3-lg}')
    A(f's_lshl_b32 s21, s21, {5-lg}')
    A(f's_lshr_b32 s25, s24, {lg}')
    A('s_add_u32 s21, s21, s25')
    BFR=24; ACC=56; RING=104
    t0,t1,t2,t3,G,I=56,57,58,59,60,61
    A('v_and_b32 v1, 63, v0')
    A('v_lshrrev_b32 v2, 6, v0')
    A('v_readfirstlane_b32 s22, v2')
    A('v_lshlrev_b32 v3, 4, v1')
    A(f'v_lshrrev_b32 v{G}, 4, v1')
    A(f'v_and_b32 v{I}, 15, v1')
    A('v_lshrrev_b32 v8, 3, v1')
    A('v_lshlrev_b32 v8, 7, v8')
    A(f'v_and_b32 v{t0}, 7, v1')
    A(f'v_lshlrev_b32 v{t1}, 1, v{G}')
    A(f'v_xor_b32 v{t0}, v{t0}, v{t1}')
    A(f'v_lshl_add_u32 v8, v{t0}, 4, v8')
    A('s_mul_i32 s23, s21, 73728')
    A('s_mul_i32 s33, s22, 6144')
    A('s_add_u32 s23, s23, s33')
    A('s_mul_i32 s24, s20, 12')
    A('s_add_u32 s24, s24, s22')
    A('s_mul_i32 s25, s24, 55296')
    A(f's_add_u32 s26, s25, {WS["W2F"]-WS["W1F"]}')
    A('v_lshlrev_b32 v23, 4, v0')
    A('s_waitcnt lgkmcnt(0)')
    srd(A,12,4,SZ_XT,WS['X1T'])
    A('s_mov_b32 m0, s33')
    for i in range(6):
        if i==4:
            A('s_add_u32 m0, s33, 4096')
            A('s_add_u32 s23, s23, 4096')
        A(f'buffer_load_dwordx4 v8, s[12:15], s23 offen offset:{(i&3)*1024} lds'); vm.add('x')
    srd(A,44,4,0x10000+4608*4,WS['CS'])
    A('v_cmp_le_u32 vcc, 144, v0')
    A(f'v_mov_b32 v{t0}, {0x10000-2304}')
    A(f'v_cndmask_b32 v{t0}, 0, v{t0}, vcc')
    A(f'v_add_u32 v{t0}, v{t0}, v23')
    A('s_mul_i32 s30, s20, 2304')
    A(f'buffer_load_dwordx4 v[64:67], v{t0}, s[44:47], s30 offen'); vm.add('x')
    srd(A,8,4,WS['W2F']-WS['W1F']+SZ_W,WS['W1F'])
    if os.environ.get('KFBAR','1')=='1': A('s_barrier')
    def wload(n):
        r=RING+12*(n%P); sreg=25 if n<18 else 26; vm.add(f'w{n}',3)
        return [f'buffer_load_dwordx4 v[{r+4*j}:{r+4*j+3}], v3, s[8:11], s{sreg} offen offset:{j*1024}' for j in range(3)]+[f's_add_u32 s{sreg}, s{sreg}, 3072']
    P0=int(os.environ.get('KFP0','1'))
    for n in range(P0):
        for x in wload(n): A(x)
    A(f'v_lshrrev_b32 v{t0}, 1, v{G}')
    A(f'v_lshlrev_b32 v{t0}, 10, v{t0}')
    A(f'v_and_b32 v{t1}, 1, v{G}')
    A(f'v_lshrrev_b32 v{t2}, 2, v{I}')
    A(f'v_lshl_add_u32 v{t2}, v{t1}, 2, v{t2}')
    A(f'v_lshl_add_u32 v{t0}, v{t2}, 7, v{t0}')
    A(f'v_and_b32 v{t3}, 3, v{I}')
    A(f'v_lshl_add_u32 v{t0}, v{t3}, 3, v{t0}')
    A(f'v_lshrrev_b32 v{t2}, 1, v{t2}')
    A(f'v_lshlrev_b32 v{t2}, 5, v{t2}')
    for tt in range(4):
        A(f'v_xor_b32 v{10+tt}, {32*tt}, v{t2}')
        A(f'v_add_u32 v{10+tt}, v{t0}, v{10+tt}')
    A('s_and_b32 s30, s22, 3')
    A('s_lshl_b32 s31, s30, 5')
    A(f'v_xor_b32 v18, s31, v{t2}')
    A(f'v_add_u32 v18, v{t0}, v18')
    A('s_lshr_b32 s31, s22, 2')
    A('s_mul_i32 s34, s31, 24576')
    A('v_add_u32 v18, s34, v18')
    A(f'v_lshlrev_b32 v6, 3, v{I}')
    A(f'v_add_u32 v6, {KF_SP}, v6')
    A('s_lshl_b32 s31, s31, 9')
    A('s_lshl_b32 s30, s30, 7')
    A('s_add_u32 s30, s30, s31')
    A('v_add_u32 v7, s30, v6')
    A(f'v_add_u32 v4, {KF_HB}, v3')
    for j in range(3):
        A('s_mul_i32 s30, s22, 3')
        A(f's_add_u32 s30, s30, {j}')
        A('s_lshr_b32 s31, s30, 1')
        A('s_lshl_b32 s31, s31, 12')
        A('s_and_b32 s30, s30, 1')
        A('s_lshl_b32 s30, s30, 3')
        A('s_add_u32 s30, s30, s31')
        A(f'v_add_u32 v{19+j}, s30, v4')
    A('s_mul_i32 s30, s22, 192')
    A(f's_add_u32 s30, s30, {KF_CS}')
    A(f'v_lshl_add_u32 v22, v{G}, 4, s30')
    A(f'v_add_u32 v23, {KF_CS}, v23')
    A('v_and_b32 v9, 3, v1')
    A('v_cmp_eq_u32 s[50:51], 1, v9')
    A('v_cmp_eq_u32 s[52:53], 2, v9')
    A('v_cmp_eq_u32 s[54:55], 3, v9')
    A(f'v_lshrrev_b32 v9, 2, v{I}')
    A(f'v_cmp_eq_u32 s[56:57], v9, v{G}')
    ONE=68; SS=72; SQ=76; SB=80
    for r in range(4): A(f'v_mov_b32 v{ONE+r}, 0x3f803f80')
    srd(A,16,4,SZ_P,WS['HF'])
    A('s_lshl_b32 s34, s20, 5')
    A('s_add_u32 s34, s34, s21')
    A('s_mul_i32 s34, s34, 73728')
    A('s_add_u32 s34, s34, s33')
    A('s_add_u32 s35, s34, 4096')
    stamp(A,1)
    A(f's_waitcnt vmcnt({vm.after("x")})')
    A('v_cmp_gt_u32 vcc, 288, v0')
    A('s_and_saveexec_b64 s[58:59], vcc')
    A('ds_write_b128 v23, v[64:67]')
    A('s_mov_b64 exec, s[58:59]')
    A('s_lshl_b32 s30, s22, 2')
    A(f's_add_u32 s30, s30, {KF_FL}')
    A('v_mov_b32 v5, s30')
    A('v_mov_b32 v9, 0')
    A('ds_write_b32 v5, v9')
    A('ds_write_b32 v5, v9 offset:64')
    A('s_waitcnt lgkmcnt(0)')
    A('s_barrier')
    stamp(A,2)
    for k in range(6):
        A(f'ds_read_b64_tr_b16 v[{SB+4*k}:{SB+4*k+1}], v18 offset:{k*4096}')
        A(f'ds_read_b64_tr_b16 v[{SB+4*k+2}:{SB+4*k+3}], v18 offset:{k*4096+2048}')
    def rdX(k):
        L=[]
        for tt in range(4):
            b=BFR+16*(k&1)+4*tt; o=(k%9)*4096
            L.append(f'ds_read_b64_tr_b16 v[{b}:{b+1}], v{10+tt} offset:{o}')
            L.append(f'ds_read_b64_tr_b16 v[{b+2}:{b+3}], v{10+tt} offset:{o+2048}')
        return L
    def rdH(k):
        return [f'ds_read_b128 v[{BFR+16*(k&1)+4*tt}:{BFR+16*(k&1)+4*tt+3}], v4 offset:{(k%9)*4096+tt*1024}' for tt in range(4)]
    for k in range(6):
        A(f's_waitcnt lgkmcnt({2*(5-k)})')
        A(f'v_mfma_f32_16x16x32_bf16 v[{SS}:{SS+3}], v[{ONE}:{ONE+3}], v[{SB+4*k}:{SB+4*k+3}], {"0" if k==0 else f"v[{SS}:{SS+3}]"}')
        A(f'v_mfma_f32_16x16x32_bf16 v[{SQ}:{SQ+3}], v[{SB+4*k}:{SB+4*k+3}], v[{SB+4*k}:{SB+4*k+3}], {"0" if k==0 else f"v[{SQ}:{SQ+3}]"}')
    for x in rdX(0): A(x)
    A(f'v_cndmask_b32 v{SQ}, v{SQ}, v{SQ+1}, s[50:51]')
    A(f'v_cndmask_b32 v{SQ}, v{SQ}, v{SQ+2}, s[52:53]')
    A(f'v_cndmask_b32 v{SS+1}, v{SQ}, v{SQ+3}, s[54:55]')
    A('s_mov_b64 exec, s[56:57]')
    A(f'ds_write_b64 v7, v[{SS}:{SS+1}]')
    A('s_mov_b64 exec, -1')
    A('v_mov_b32 v9, 1')
    A('s_waitcnt lgkmcnt(0)')
    A('ds_write_b32 v5, v9 offset:64')
    for n in range(P0,P):
        for x in wload(n): A(x)
    stamp(A,3)
    if os.environ.get('KFPRIO','0')=='2': A('s_setprio 2')
    def mm(n):
        k=n%18; L=[]
        for j in range(3):
            for tt in range(4):
                d=ACC+16*j+4*tt; a=RING+12*(n%P)+4*j; b=BFR+16*(k&1)+4*tt
                L.append(f'v_mfma_f32_16x16x32_bf16 v[{d}:{d+3}], v[{a}:{a+3}], v[{b}:{b+3}], {f"v[{d}:{d+3}]" if k else "0"}')
        return L
    def steps(n0,rd,adv,wf=None):
        for k in range(18):
            n=n0+k
            A(f's_waitcnt vmcnt({vm.after(f"w{n}")}) lgkmcnt(0)')
            if k==8:
                for x in adv: A(x)
            if wf and k<17 and (k+1)%3==0: wf((k+1)//3)
            R=rd(k+1) if k<17 else []
            M=mm(n)
            W=wload(n+P) if n+P<36 else None
            idx=0
            for j in range(3):
                for t,x in enumerate(M[4*j:4*j+4]):
                    A(x)
                    for _ in range(2):
                        if idx<len(R): A(R[idx]); idx+=1
                if W: A(W[j])
            if W: A(W[3])
    steps(0,rdX,[f'v_add_u32 v{10+tt}, 0x9000, v{10+tt}' for tt in range(4)])
    stamp(A,4)
    if os.environ.get('KFPRIO','0')=='1': A('s_setprio 3')
    if os.environ.get('KFPRIO','0')=='2': A('s_setprio 0')
    A(f'v_mov_b32 v18, {KF_FL+64}')
    A('KF_SW:')
    A(f'ds_read_b128 v[{BFR}:{BFR+3}], v18')
    A(f'ds_read_b128 v[{BFR+4}:{BFR+7}], v18 offset:16')
    A(f'ds_read_b128 v[{BFR+8}:{BFR+11}], v18 offset:32')
    A('s_waitcnt lgkmcnt(0)')
    for r in range(1,12): A(f'v_and_b32 v{BFR}, v{BFR}, v{BFR+r}')
    A(f'v_readfirstlane_b32 s30, v{BFR}')
    A('s_cmp_eq_u32 s30, 1')
    A('s_cbranch_scc0 KF_SW')
    SPR=BFR
    for p in range(3):
        for tt in range(4): A(f'ds_read_b64 v[{SPR+8*p+2*tt}:{SPR+8*p+2*tt+1}], v6 offset:{p*512+tt*128}')
    A('s_waitcnt lgkmcnt(0)')
    NR=10
    for tt in range(4):
        a0=SPR+2*tt
        A(f'v_pk_add_f32 v[{a0}:{a0+1}], v[{a0}:{a0+1}], v[{a0+8}:{a0+9}]')
        A(f'v_pk_add_f32 v[{a0}:{a0+1}], v[{a0}:{a0+1}], v[{a0+16}:{a0+17}]')
        m=NR+2*tt; q=m+1
        for x in [f'v_mul_f32 v{m}, 0x3ae38e39, v{a0}', f'v_mul_f32 v{q}, 0x3ae38e39, v{a0+1}', f'v_fma_f32 v{q}, -v{m}, v{m}, v{q}', f'v_max_f32 v{q}, 0, v{q}',
              f'v_cvt_pk_bf16_f32 v{m}, v{m}, v{q}', f'v_and_b32 v{q}, 0xffff0000, v{m}', f'v_lshlrev_b32 v{m}, 16, v{m}',
              f'v_sub_f32 v{m}, 0, v{m}', f'v_add_f32 v{q}, 0x3727c5ac, v{q}', f'v_cvt_pk_bf16_f32 v{q}, v{q}, v{q}',
              f'v_lshlrev_b32 v{q}, 16, v{q}', f'v_sqrt_f32 v{q}, v{q}', f'v_cvt_pk_bf16_f32 v{q}, v{q}, v{q}',
              f'v_lshlrev_b32 v{q}, 16, v{q}', f'v_rcp_f32 v{q}, v{q}', f'v_mul_f32 v{q}, 0xbfb8aa3b, v{q}']: A(x)
    CB=BFR; T=BFR+24
    for j in range(3):
        A(f'ds_read_b128 v[{CB+8*j}:{CB+8*j+3}], v22 offset:{j*64}')
        A(f'ds_read_b128 v[{CB+8*j+4}:{CB+8*j+7}], v22 offset:{j*64+2304}')
    A('s_waitcnt lgkmcnt(0)')
    for j in range(3):
        c=CB+8*j
        for hh in range(2):
            d0=ACC+16*j+8*hh
            for t in range(2):
                for r in range(4): A(f'v_fmac_f32 v{d0+4*t+r}, v{c+r}, v{NR+2*(2*hh+t)}')
            for t in range(2):
                for r in range(4): A(f'v_fma_f32 v{d0+4*t+r}, v{d0+4*t+r}, v{NR+1+2*(2*hh+t)}, v{c+4+r}')
            for r in range(8): A(f'v_exp_f32 v{T+r}, v{d0+r}')
            for r in range(8): A(f'v_add_f32 v{T+r}, 1.0, v{T+r}')
            for r in range(8): A(f'v_rcp_f32 v{T+r}, v{T+r}')
            for r in range(8): A(f'v_mul_f32 v{d0+r}, v{d0+r}, v{T+r}')
            for t in range(2):
                d=d0+4*t
                A(f'v_cvt_pk_bf16_f32 v{d}, v{d}, v{d+1}')
                A(f'v_cvt_pk_bf16_f32 v{d+1}, v{d+2}, v{d+3}')
            for t in range(2):
                A(f'ds_write_b64 v{19+j}, v[{d0+4*t}:{d0+4*t+1}] offset:{(2*hh+t)*1024}')
    A('s_waitcnt lgkmcnt(0)')
    A('v_mov_b32 v9, 1')
    A('ds_write_b32 v5, v9')
    A(f'v_mov_b32 v5, {KF_FL}')
    stamp(A,5)
    def waitflags(g):
        A(f'KF_W{g}:')
        A(f'ds_read_b64 v[18:19], v5 offset:{g*8}')
        A('s_waitcnt lgkmcnt(0)')
        A('v_and_b32 v18, v18, v19')
        A('v_readfirstlane_b32 s30, v18')
        A('s_cmp_eq_u32 s30, 1')
        A(f's_cbranch_scc1 KF_G{g}')
        if os.environ.get('KFSL','0')=='1': A('s_sleep 2')
        A(f's_branch KF_W{g}')
        A(f'KF_G{g}:')
    FL=os.environ.get('KFFL','1')=='1'
    if FL: waitflags(0)
    else: A('s_barrier')
    stamp(A,6)
    for x in rdH(0): A(x)
    steps(18,rdH,['v_add_u32 v4, 0x9000, v4'],waitflags if FL else None)
    for j in range(3):
        for tp in range(2):
            d=ACC+16*j+8*tp
            for e in range(4): A(f'v_cvt_pk_bf16_f32 v{d+e}, v{d+2*e}, v{d+2*e+1}')
            o=j*2048+tp*1024
            A(f'buffer_store_dwordx4 v[{d}:{d+3}], v3, s[16:19], s{34 if o<4096 else 35} offen offset:{o&4095} {POL["H"]}')
    stamp(A,7)
    if STAMP: A('s_waitcnt vmcnt(0)')
    stamp(A,8)
    if STAMP:
        A('s_and_b32 s30, s22, 3')
        A('s_cmp_lg_u32 s30, 0')
        A('s_cbranch_scc1 KF_END')
        A('s_lshr_b32 s30, s22, 2')
        A('s_lshl_b32 s30, s30, 6')
        A('v_mov_b32 v0, s30')
    stamp_out(A,9,2)
    A('KF_END:')
    A('s_endpgm')
    return A.text(), kd('k3_kernel',RING+12*P)

def gen_k5():
    A=Asm()
    A('k4_kernel:')
    A('s_cmp_ge_u32 s2, 576')
    A('s_cbranch_scc1 K5_END')
    stamp(A,0)
    A(f's_load_dwordx2 s[4:5], s[0:1], {KA["ws"]}')
    A(f's_load_dwordx2 s[6:7], s[0:1], {KA["out"]}')
    A('v_and_b32 v1, 63, v0')
    A('v_lshrrev_b32 v2, 6, v0')
    A('v_readfirstlane_b32 s22, v2')
    A('v_lshlrev_b32 v3, 4, v1')
    A('s_lshl_b32 s20, s2, 2')
    A('s_add_u32 s20, s20, s22')
    A('s_and_b32 s21, s20, 1')
    A('s_lshr_b32 s23, s20, 1')
    A('s_mul_i32 s24, s23, 1821')
    A('s_lshr_b32 s24, s24, 16')
    A('s_mul_i32 s25, s24, 36')
    A('s_sub_u32 s25, s23, s25')
    A('s_lshl_b32 s26, s20, 10')
    A('v_and_b32 v4, 15, v1')
    A('v_lshrrev_b32 v5, 4, v1')
    A('v_lshlrev_b32 v6, 9, v5')
    A('v_lshl_add_u32 v6, v4, 1, v6')
    A('s_mul_i32 s27, s24, 73728')
    A('s_lshl_b32 s28, s25, 11')
    A('s_add_u32 s27, s27, s28')
    A('s_lshl_b32 s28, s21, 6')
    A('s_add_u32 s27, s27, s28')
    A('v_lshlrev_b32 v7, 4, v5')
    A('s_lshl_b32 s29, s25, 6')
    A('s_add_u32 s29, s29, 11520')
    A('s_waitcnt lgkmcnt(0)')
    srd(A,8,4,SZ_P,WS['HF'])
    for f in range(8):
        A(f's_add_u32 s30, s26, {f*2359296}')
        A(f'buffer_load_dwordx4 v[{16+4*f}:{19+4*f}], v3, s[8:11], s30 offen')
    srd(A,16,4,SZ_XT,WS['X1T'])
    for t in range(2):
        for r in range(4):
            A(f'buffer_load_ushort v{8+4*t+r}, v6, s[16:19], s27 offen offset:{r*128+t*32}')
    srd(A,52,4,3456*4,WS['MOD'])
    A('buffer_load_dwordx4 v[48:51], v7, s[52:55], s29 offen')
    srd(A,56,6,SZ_XT)
    A('s_lshl_b32 s27, s24, 6')
    A('s_lshl_b32 s28, s21, 5')
    A('s_add_u32 s27, s27, s28')
    A('v_add_u32 v52, s27, v4')
    A('v_mul_u32_u24 v52, 1152, v52')
    A('v_lshl_add_u32 v52, v5, 3, v52')
    A('s_lshl_b32 s28, s25, 5')
    A('s_add_u32 s31, s28, 18432')
    S=56
    for f in range(8):
        A(f's_waitcnt vmcnt({16-f})')
        for e in range(4):
            if f==0: unpack(A,S+2*e,S+2*e+1,16+e)
            else:
                unpack(A,64+2*e,65+2*e,16+4*f+e)
                A(f'v_pk_add_f32 v[{S+2*e}:{S+2*e+1}], v[{S+2*e}:{S+2*e+1}], v[{64+2*e}:{65+2*e}]')
    for r in range(8): A(f'v_mul_f32 v{S+r}, 0xbf317218, v{S+r}')
    for e in range(4): A(f'v_cvt_pk_bf16_f32 v{16+e}, v{S+2*e}, v{S+2*e+1}')
    for e in range(4): unpack(A,S+2*e,S+2*e+1,16+e)
    A('s_waitcnt vmcnt(0)')
    for e in range(4): A(f'v_pk_mul_f32 v[{S+2*e}:{S+2*e+1}], v[{S+2*e}:{S+2*e+1}], v[{48+2*(e&1)}:{49+2*(e&1)}]')
    for e in range(4): A(f'v_cvt_pk_bf16_f32 v{16+e}, v{S+2*e}, v{S+2*e+1}')
    for e in range(4): unpack(A,S+2*e,S+2*e+1,16+e)
    for r in range(8): A(f'v_lshlrev_b32 v{8+r}, 16, v{8+r}')
    for e in range(4): A(f'v_pk_add_f32 v[{S+2*e}:{S+2*e+1}], v[{S+2*e}:{S+2*e+1}], v[{8+2*e}:{9+2*e}]')
    for e in range(4): A(f'v_cvt_pk_bf16_f32 v{16+e}, v{S+2*e}, v{S+2*e+1}')
    A('buffer_store_dwordx2 v[16:17], v52, s[56:59], s28 offen')
    A('buffer_store_dwordx2 v[18:19], v52, s[56:59], s31 offen')
    stamp(A,1)
    if STAMP: A('s_waitcnt vmcnt(0)')
    stamp(A,2)
    stamp_out(A,3,3)
    A('K5_END:')
    A('s_endpgm')
    return A.text(), kd('k4_kernel',72)

def assemble(kernels, fn):
    hdr=open('cdna_kernels/'+NAME+'.s.ref').read().split('\n')
    out=[l for l in hdr if l.startswith(';') and '@launch' not in l and 'Override launch' not in l and 'grid=ceil' not in l]
    for k in kernels:
        out.append(f'; @launch kernel={k[0]} grid=({k[1]},1,1) block=({k[2]},1,1) lds={k[3]}')
    out.append('.amdgcn_target "amdgcn-amd-amdhsa--gfx950"')
    out.append('.text')
    seen=set()
    for k in kernels:
        if k[0] in seen: continue
        seen.add(k[0])
        out.append(f'.globl {k[0]}\n.p2align 8\n.type {k[0]},@function')
        out.append(k[4])
    seen=set()
    for k in kernels:
        if k[0] in seen: continue
        seen.add(k[0])
        out.append(k[5])
    open(fn,'w').write('\n'.join(out))

if __name__=='__main__':
    t1,d1=gen_k1(); t2,d2=gen_k2(); t3,d3=gen_kf(); t4,d4=gen_k5()
    ks=[('k1_kernel',K1_GRID,256,K1_LDS,t1,d1),('k2_kernel',K2_GRID,256,K2_LDS,t2,d2),
        ('k3_kernel',256,768,KF_LDS,t3,d3),('k4_kernel',576,256,0,t4,d4)]
    nk=int(os.environ.get('NK','4'))
    assemble(ks[:nk], sys.argv[1] if len(sys.argv)>1 else 'k.s')
```

```python
import sys,os
from asmlib import Asm

NAME='adaLN_cond__ssm_conv_s4d__dense_activation_silu__prompt'
KA=dict(x=0,lar=8,aim=16,cr=24,ci=32,logdt=40,dskip=48,w1=64,w2=72,c=80,wmod=88,out=96,dbg=104,ws=112)
WS=dict(MOD=0x0, CS=0x10000, BIAS=0x20000, STAT=0x30000, STAT2=0x38000, X1S=0x400000, XT=0x100000, XNT=0x400000, KF=0x700000, X1T=0xC00000,
        W1F=0x1000000, W2F=0x1800000, HF=0x2000000)
SZ_XT=576*2048*2
KFC=4160
SZ_KF=576*KFC
SZ_W=576*4608*2
SZ_H=2048*4608*2
LOG2E=0x3fb8aa3b
INV2PI=0x3e22f983

def srd(A, d, base, size, off=0):
    if off:
        A(f's_add_u32 s{d}, s{base}, {off:#x}')
        A(f's_addc_u32 s{d+1}, s{base+1}, 0')
    else:
        A(f's_mov_b32 s{d}, s{base}')
        A(f's_mov_b32 s{d+1}, s{base+1}')
    A(f's_mov_b32 s{d+2}, {size:#x}')
    A(f's_mov_b32 s{d+3}, 0x00020000')

def kd(name, vgpr, sgpr=102, agpr=0):
    acc=(vgpr+3)//4*4
    return f'''.section .rodata,"a"
.p2align 6
.amdhsa_kernel {name}
  .amdhsa_next_free_vgpr {acc+agpr if agpr else vgpr}
  .amdhsa_next_free_sgpr {sgpr}
  .amdhsa_accum_offset {acc}
  .amdhsa_group_segment_fixed_size 0
  .amdhsa_kernarg_size 120
  .amdhsa_user_sgpr_count 2
  .amdhsa_user_sgpr_kernarg_segment_ptr 1
  .amdhsa_system_sgpr_workgroup_id_x 1
.end_amdhsa_kernel
'''

STAMP=bool(os.environ.get('STAMP'))
POL=dict(XT='',KF='',W2F='sc1',X1='',W1F='sc1',H='sc1')
for kv in os.environ.get('POL','').split(','):
    if '=' in kv:
        k,v=kv.split('='); POL[k]=v.replace('+',' ')
def stamp(A,i):
    if STAMP:
        A(f's_mem{"real" if os.environ.get("STAMP")=="2" else ""}time s[{60+2*i}:{61+2*i}]')
def stamp_out(A,n,slot):
    if not STAMP: return
    A('s_waitcnt lgkmcnt(0)')
    srd(A,92,4,1<<22,0x8000000+slot*(1<<22))
    A('v_readfirstlane_b32 s96, v0')
    A('s_lshr_b32 s96, s96, 6')
    A('s_lshl_b32 s97, s2, 2')
    A('s_add_u32 s96, s96, s97')
    A('s_lshl_b32 s96, s96, 6')
    A('v_mov_b32 v1, 0')
    for i in range(n):
        A(f'v_mov_b32 v2, s{60+2*i}')
        A(f'buffer_store_dword v2, v1, s[92:95], s96 offen offset:{4*i}')

def unpack(A, dlo, dhi, src):
    A(f'v_lshlrev_b32 v{dlo}, 16, v{src}')
    A(f'v_and_b32 v{dhi}, 0xffff0000, v{src}')

K1_LN=64; K1_MOD=54; K1_W2=144; K1_KG=576
K1_PAD=2
K1_GRID=K1_LN+K1_MOD+K1_KG+((K1_W2+K1_PAD) if os.environ.get('W2K1','1')=='1' else 0)
RS=1184
K1_LDS=32*RS

import os
SKIP=os.environ.get('SKIP','').split(',')
W2K1=os.environ.get('W2K1','1')=='1'
def gen_w2(A,slot):
    A('K1_W2:')
    if 'K1_W2' in SKIP: A('s_endpgm')
    A('s_and_b32 s24, s3, 7')
    A('s_mul_i32 s24, s24, 18')
    A('s_lshr_b32 s3, s3, 3')
    A('s_add_u32 s3, s3, s24')
    stamp(A,0)
    A(f's_load_dwordx2 s[6:7], s[0:1], {KA["w2"]}')
    A('s_mov_b32 s23, s3')
    A('s_lshl_b32 s20, s23, 5')
    A('s_waitcnt lgkmcnt(0)')
    srd(A,8,6,SZ_W)
    srd(A,12,4,SZ_W,WS['W2F'])
    load_tile_g(A,False)
    A('v_and_b32 v116, 63, v0')
    A('v_lshrrev_b32 v117, 6, v0')
    A('v_lshrrev_b32 v120, 2, v116')
    A(f'v_mul_u32_u24 v5, {RS}, v120')
    A('v_and_b32 v120, 3, v116')
    A('v_lshl_add_u32 v5, v120, 3, v5')
    A('v_mul_u32_u24 v120, 288, v117')
    A('v_add_u32 v5, v5, v120')
    A('s_mul_i32 s24, s23, 57')
    A('s_lshr_b32 s24, s24, 10')
    A('s_mul_i32 s25, s24, 18')
    A('s_sub_u32 s25, s23, s25')
    A('s_mul_i32 s24, s24, 663552')
    A('s_mul_i32 s25, s25, 3072')
    A('s_add_u32 s24, s24, s25')
    A('v_mul_u32_u24 v6, 165888, v117')
    A('v_lshl_add_u32 v6, v116, 4, v6')
    A('v_add_u32 v6, s24, v6')
    A('s_waitcnt vmcnt(0)')
    stamp(A,1)
    write_tile_g(A,8)
    A('s_waitcnt lgkmcnt(0)')
    A('s_barrier')
    tr_tile_g(A,16)
    A('s_waitcnt lgkmcnt(0)')
    for q in range(9):
        A(f's_mov_b32 s22, {(q//3)*55296+(q%3)*1024}')
        A(f'buffer_store_dwordx4 v[{8+4*q}:{11+4*q}], v6, s[12:15], s22 offen {POL["W2F"]}')
    stamp(A,2)
    if STAMP: A('s_waitcnt vmcnt(0)')
    stamp(A,3)
    stamp_out(A,4,slot)
    A('s_endpgm')


def gen_k1():
    A=Asm()
    A('k1_kernel:')
    A(f's_load_dwordx2 s[4:5], s[0:1], {KA["ws"]}')
    A('s_mov_b32 s3, s2')
    order=os.environ.get('K1ORD','KG,LN,MOD,PAD,W2').split(',')
    cnt=dict(KG=K1_KG,LN=K1_LN,MOD=K1_MOD,PAD=K1_PAD,W2=K1_W2)
    for r in order:
        if r=='PAD':
            A(f's_cmp_lt_u32 s3, {cnt[r]}')
            A('s_cbranch_scc1 K1_EXIT')
        else:
            A(f's_cmp_lt_u32 s3, {cnt[r]}')
            A(f's_cbranch_scc1 K1_{r}')
        A(f's_sub_u32 s3, s3, {cnt[r]}')
    A('K1_EXIT:')
    A('s_endpgm')

    def load_tile(delta=False):
        A('v_lshrrev_b32 v1, 3, v0')
        A('v_and_b32 v2, 7, v0')
        A('v_add_u32 v3, s20, v1')
        if delta:
            A('v_lshrrev_b32 v4, 4, v1')
            A('v_mul_u32_u24 v4, s21, v4')
            A('v_add_u32 v3, v3, v4')
        A('v_mul_u32_u24 v3, 1152, v3')
        A('v_lshl_add_u32 v3, v2, 4, v3')
        for c in range(9):
            A(f'buffer_load_dwordx4 v[{8+4*c}:{11+4*c}], v3, s[8:11], 0 offen offset:{c*128} nt')
        A(f'v_mul_u32_u24 v4, {RS}, v1')
        A('v_lshl_add_u32 v4, v2, 4, v4')
    def write_tile(base):
        for c in range(9):
            A(f'ds_write_b128 v4, v[{base+4*c}:{base+3+4*c}] offset:{c*128}')

    A('K1_LN:')
    if 'K1_LN' in SKIP: A('s_endpgm')
    stamp(A,0)
    if os.environ.get('CPF','0')=='1':
        A('s_getpc_b64 s[30:31]')
        A('K1_PC:')
        A('s_add_u32 s30, s30, k2_kernel-K1_PC')
        A('s_addc_u32 s31, s31, 0')
        A('v_lshlrev_b32 v126, 7, v0')
        A('v_cmp_gt_u32 vcc, (CODE_END-k2_kernel+127)/128, v0')
        A('s_and_saveexec_b64 s[32:33], vcc')
        A('global_load_dword v127, v126, s[30:31]')
        A('s_mov_b64 exec, s[32:33]')
    A(f's_load_dwordx2 s[6:7], s[0:1], {KA["x"]}')
    A('s_lshl_b32 s20, s3, 5')
    A('s_waitcnt lgkmcnt(0)')
    srd(A,8,6,SZ_XT)
    load_tile()
    srd(A,12,4,SZ_XT,WS['XT'])
    srd(A,16,4,0x8000+8192,WS['STAT'])
    A('v_and_b32 v116, 63, v0')
    A('v_lshrrev_b32 v117, 6, v0')
    A('v_lshrrev_b32 v118, 4, v116')
    A('v_and_b32 v119, 15, v116')
    A('v_lshrrev_b32 v120, 2, v119')
    A('v_lshl_add_u32 v120, v118, 3, v120')
    A(f'v_mul_u32_u24 v5, {RS}, v120')
    A('v_and_b32 v120, 3, v119')
    A('v_lshl_add_u32 v5, v120, 3, v5')
    A('v_mul_u32_u24 v120, 288, v117')
    A('v_add_u32 v5, v5, v120')
    A('v_mul_u32_u24 v6, 144, v117')
    A('v_add_u32 v6, v6, v119')
    A('v_lshlrev_b32 v6, 12, v6')
    A('v_lshl_add_u32 v6, v118, 4, v6')
    A('s_lshl_b32 s21, s20, 1')
    A('v_add_u32 v6, s21, v6')
    A('s_waitcnt vmcnt(0)')
    stamp(A,1)
    write_tile(8)
    U=44
    for i in range(36): unpack(A,U+2*i,U+2*i+1,8+i)
    A('s_waitcnt lgkmcnt(0)')
    A('s_barrier')
    def tr_tile(rows_h):
        for q in range(9):
            A(f'ds_read_b64_tr_b16 v[{8+4*q}:{9+4*q}], v5 offset:{q*32}')
            A(f'ds_read_b64_tr_b16 v[{10+4*q}:{11+4*q}], v5 offset:{q*32+rows_h*RS}')
    tr_tile(4)
    A(f'v_pk_add_f32 v[116:117], v[{U}:{U+1}], v[{U+2}:{U+3}]')
    A(f'v_pk_add_f32 v[118:119], v[{U+4}:{U+5}], v[{U+6}:{U+7}]')
    for i in range(4,36,2):
        A(f'v_pk_add_f32 v[116:117], v[116:117], v[{U+2*i}:{U+2*i+1}]')
        A(f'v_pk_add_f32 v[118:119], v[118:119], v[{U+2*i+2}:{U+2*i+3}]')
    A('v_pk_add_f32 v[116:117], v[116:117], v[118:119]')
    A('v_add_f32 v116, v116, v117')
    A('s_waitcnt lgkmcnt(0)')
    for q in range(9):
        A(f's_mov_b32 s22, {q*65536}')
        A(f'buffer_store_dwordx4 v[{8+4*q}:{11+4*q}], v6, s[12:15], s22 offen {POL["XT"]}')
    def red8(r):
        A(f'v_add_f32_dpp v{r}, v{r}, v{r} quad_perm:[1,0,3,2] row_mask:0xf bank_mask:0xf')
        A(f'v_add_f32_dpp v{r}, v{r}, v{r} quad_perm:[2,3,0,1] row_mask:0xf bank_mask:0xf')
        A(f'v_add_f32_dpp v{r}, v{r}, v{r} row_half_mirror row_mask:0xf bank_mask:0xf')
    red8(116)
    A('v_mul_f32 v116, 0x3ae38e39, v116')
    A('v_sub_f32 v118, 0, v116')
    for i in range(0,36,2):
        A(f'v_pk_add_f32 v[124:125], v[{U+2*i}:{U+2*i+1}], v[118:119] op_sel_hi:[1,0]')
        A(f'v_pk_add_f32 v[126:127], v[{U+2*i+2}:{U+2*i+3}], v[118:119] op_sel_hi:[1,0]')
        if i==0:
            A('v_pk_mul_f32 v[120:121], v[124:125], v[124:125]')
            A('v_pk_mul_f32 v[122:123], v[126:127], v[126:127]')
        else:
            A('v_pk_fma_f32 v[120:121], v[124:125], v[124:125], v[120:121]')
            A('v_pk_fma_f32 v[122:123], v[126:127], v[126:127], v[122:123]')
    A('v_pk_add_f32 v[120:121], v[120:121], v[122:123]')
    A('v_add_f32 v120, v120, v121')
    red8(120)
    A('v_mul_f32 v120, 0x3ae38e39, v120')
    A('v_cvt_pk_bf16_f32 v120, v120, v120')
    A('v_lshlrev_b32 v120, 16, v120')
    A('v_add_f32 v120, 0x3727c5ac, v120')
    A('v_cvt_pk_bf16_f32 v120, v120, v120')
    A('v_lshlrev_b32 v120, 16, v120')
    A('v_sqrt_f32 v120, v120')
    A('v_cvt_pk_bf16_f32 v120, v116, v120')
    A('v_lshlrev_b32 v121, 2, v1')
    A('v_cmp_eq_u32 vcc, 0, v2')
    A('s_lshl_b32 s21, s20, 2')
    A('s_and_saveexec_b64 s[26:27], vcc')
    A('buffer_store_dword v120, v121, s[16:19], s21 offen')
    if STAMP: A('s_mov_b64 exec, -1')
    stamp(A,2)
    if STAMP: A('s_waitcnt vmcnt(0)')
    stamp(A,3)
    stamp_out(A,4,0)
    A('s_endpgm')

    A('K1_MOD:')
    if 'K1_MOD' in SKIP: A('s_endpgm')
    stamp(A,0)
    A(f's_load_dwordx2 s[6:7], s[0:1], {KA["wmod"]}')
    A(f's_load_dwordx2 s[24:25], s[0:1], {KA["c"]}')
    A('s_mov_b32 s23, s3')
    A('s_lshl_b32 s23, s23, 7')
    A('s_waitcnt lgkmcnt(0)')
    srd(A,8,6,576*3456*2)
    srd(A,12,24,1152)
    srd(A,16,4,3456*4,WS['MOD'])
    A('v_lshrrev_b32 v1, 3, v0')
    A('v_and_b32 v2, 7, v0')
    A('v_lshlrev_b32 v3, 1, v1')
    for c in range(18):
        A(f'buffer_load_ushort v{80+c}, v3, s[12:15], 0 offen offset:{c*64}')
    A('v_mul_u32_u24 v4, 6912, v1')
    A('v_lshl_add_u32 v4, v2, 4, v4')
    A('v_add_u32 v4, s23, v4')
    for c in range(18):
        A(f's_mov_b32 s22, {c*32*6912}')
        A(f'buffer_load_dwordx4 v[{8+4*c}:{11+4*c}], v4, s[8:11], s22 offen nt')
    A('s_waitcnt vmcnt(18)')
    for c in range(18):
        r=80+c
        A(f'v_lshlrev_b32 v{r}, 16, v{r}')
        A(f'v_mul_f32 v100, 0xbfb8aa3b, v{r}')
        A('v_exp_f32 v100, v100')
        A('v_add_f32 v100, 1.0, v100')
        A('v_rcp_f32 v100, v100')
        A(f'v_mul_f32 v{r}, v{r}, v100')
        A(f'v_cvt_pk_bf16_f32 v{r}, v{r}, v{r}')
        A(f'v_lshlrev_b32 v{r}, 16, v{r}')
    for e in range(8): A(f'v_mov_b32 v{104+e}, 0')
    for c in range(18):
        A(f's_waitcnt vmcnt({17-c})')
        for e in range(4):
            unpack(A,100,101,8+4*c+e)
            A(f'v_fmac_f32 v{104+2*e}, v{80+c}, v100')
            A(f'v_fmac_f32 v{105+2*e}, v{80+c}, v101')
    stamp(A,1)
    A('v_lshlrev_b32 v5, 8, v1')
    A('v_lshl_add_u32 v5, v2, 5, v5')
    A('ds_write_b128 v5, v[104:107]')
    A('ds_write_b128 v5, v[108:111] offset:16')
    A('s_waitcnt lgkmcnt(0)')
    A('s_barrier')
    A('v_cmp_gt_u32 vcc, 64, v0')
    A('s_and_saveexec_b64 s[26:27], vcc')
    A('s_cbranch_execz K1_MOD_END')
    A('v_lshlrev_b32 v5, 2, v0')
    for r in range(32):
        A(f'ds_read_b32 v{8+r}, v5 offset:{r*256}')
    A('s_waitcnt lgkmcnt(0)')
    for r in range(16): A(f'v_add_f32 v{8+r}, v{8+r}, v{24+r}')
    for r in range(8): A(f'v_add_f32 v{8+r}, v{8+r}, v{16+r}')
    for r in range(4): A(f'v_add_f32 v{8+r}, v{8+r}, v{12+r}')
    for r in range(2): A(f'v_add_f32 v{8+r}, v{8+r}, v{10+r}')
    A('v_add_f32 v8, v8, v9')
    A('v_cvt_pk_bf16_f32 v8, v8, v8')
    A('v_lshlrev_b32 v8, 16, v8')
    A('s_lshl_b32 s23, s23, 1')
    A('buffer_store_dword v8, v5, s[16:19], s23 offen')
    A('K1_MOD_END:')
    if STAMP:
        A('s_mov_b64 exec, -1')
        stamp(A,2)
        A('s_waitcnt vmcnt(0)')
        stamp(A,3)
        stamp_out(A,4,0)
    A('s_endpgm')

    A('K1_KG:')
    if 'K1_KG' in SKIP: A('s_endpgm')
    stamp(A,0)
    A(f's_load_dwordx4 s[24:27], s[0:1], {KA["lar"]}')
    A(f's_load_dwordx4 s[28:31], s[0:1], {KA["cr"]}')
    A(f's_load_dwordx2 s[32:33], s[0:1], {KA["logdt"]}')
    A('s_mov_b32 s23, s3')
    A('s_lshl_b32 s22, s23, 1')
    A('s_and_b32 s22, s22, 0xfffffffc')
    A('v_and_b32 v1, 63, v0')
    A('v_lshrrev_b32 v2, 4, v0')
    A('v_lshlrev_b32 v3, 4, v2')
    A('s_lshl_b32 s44, s23, 8')
    A('s_waitcnt lgkmcnt(0)')
    A('s_load_dword s34, s[32:33], s22')
    srd(A,8,24,576*128*2)
    A('buffer_load_dwordx4 v[8:11], v3, s[8:11], s44 offen nt')
    srd(A,12,26,576*128*2)
    A('buffer_load_dwordx4 v[12:15], v3, s[12:15], s44 offen nt')
    srd(A,16,28,576*128*2)
    A('buffer_load_dwordx4 v[16:19], v3, s[16:19], s44 offen nt')
    srd(A,36,30,576*128*2)
    A('buffer_load_dwordx4 v[20:23], v3, s[36:39], s44 offen nt')
    srd(A,40,4,SZ_KF,WS['KF'])
    A('v_and_b32 v4, 15, v0')
    def p_row(tile, vi, vd, t):
        if tile==0:
            A(f'v_lshrrev_b32 v{t}, 3, v{vi}')
            A(f'v_and_b32 v{vd}, 7, v{vi}')
            A(f'v_lshl_add_u32 v{vd}, v{t}, 7, v{vd}')
        elif tile==1:
            A(f'v_lshrrev_b32 v{t}, 2, v{vi}')
            A(f'v_and_b32 v{vd}, 3, v{vi}')
            A(f'v_lshlrev_b32 v{vd}, 1, v{vd}')
            A(f'v_lshl_add_u32 v{vd}, v{t}, 7, v{vd}')
            A(f'v_add_u32 v{vd}, 256, v{vd}')
            A(f'v_lshrrev_b32 v{t}, 1, v{vi}')
            A(f'v_lshlrev_b32 v{t}, 7, v{t}')
            A(f'v_and_b32 v{t+1}, 1, v{vi}')
            A(f'v_lshl_add_u32 v{t}, v{t+1}, 2, v{t}')
            A(f'v_cmp_gt_u32 vcc, 8, v{vi}')
            A(f'v_cndmask_b32 v{vd}, v{t}, v{vd}, vcc')
        else:
            A(f'v_lshlrev_b32 v{vd}, 7, v{vi}')
            A(f'v_add_u32 v{vd}, 1024, v{vd}')
    for t in range(3):
        p_row(t,4,24+2*t,112)
        A(f'v_cvt_f32_u32 v{24+2*t}, v{24+2*t}')
    A('v_lshlrev_b32 v30, 3, v4')
    A('v_cvt_f32_u32 v30, v30')
    A('v_mov_b32 v110, 0x41600000')
    A('v_mov_b32 v111, 0')
    A('v_lshlrev_b32 v5, 3, v0')
    for e in range(8):
        A(f'v_add_u32 v{114+e}, {e}, v5')
        A(f'v_cvt_f32_u32 v{114+e}, v{114+e}')
    for e in range(0,8,2):
        A(f'v_cvt_pk_bf16_f32 v{114+e}, v{114+e}, v{115+e}')
        A(f'v_and_b32 v{115+e}, 0xffff0000, v{114+e}')
        A(f'v_lshlrev_b32 v{114+e}, 16, v{114+e}')
    for e in range(8):
        A(f'v_cvt_u32_f32 v{114+e}, v{114+e}')
        A(f'v_lshlrev_b32 v{114+e}, 1, v{114+e}')
    A('s_waitcnt lgkmcnt(0)')
    A('s_and_b32 s22, s23, 1')
    A('s_lshl_b32 s22, s22, 4')
    A('s_lshr_b32 s34, s34, s22')
    A('s_lshl_b32 s34, s34, 16')
    A(f'v_mov_b32 v112, {LOG2E:#x}')
    A('v_mul_f32 v113, s34, v112')
    A('v_exp_f32 v113, v113')
    A('v_cvt_pk_bf16_f32 v113, v113, v113')
    A('v_lshlrev_b32 v113, 16, v113')
    A('v_mul_f32 v108, 0xbfb8aa3b, v113')
    A(f'v_mul_f32 v109, {INV2PI:#x}, v113')
    stamp(A,1)
    A('s_waitcnt vmcnt(0)')
    stamp(A,2)
    for e in range(4):
        unpack(A,32+4*e,34+4*e,8+e)
        unpack(A,33+4*e,35+4*e,12+e)
        unpack(A,48+4*e,50+4*e,16+e)
        unpack(A,49+4*e,51+4*e,20+e)
    for n in range(8):
        A(f'v_mul_f32 v{32+2*n}, v112, v{32+2*n}')
        A(f'v_exp_f32 v{32+2*n}, v{32+2*n}')
    A('v_max3_f32 v6, |v48|, |v49|, |v50|')
    for n in range(51,63,2): A(f'v_max3_f32 v6, |v{n}|, |v{n+1}|, v6')
    A('v_max_f32 v6, |v63|, v6')
    for n in range(0,8,2):
        A(f'v_cvt_pk_bf16_f32 v{32+2*n}, v{32+2*n}, v{34+2*n}')
        A(f'v_and_b32 v{34+2*n}, 0xffff0000, v{32+2*n}')
        A(f'v_lshlrev_b32 v{32+2*n}, 16, v{32+2*n}')
    for q in range(4): A(f'v_readlane_b32 s{48+q}, v6, {16*q}')
    for n in range(8):
        A(f'v_pk_mul_f32 v[{32+2*n}:{33+2*n}], v[{32+2*n}:{33+2*n}], v[108:109]')
    A('s_max_u32 s48, s48, s49')
    A('s_max_u32 s50, s50, s51')
    A('s_max_u32 s48, s48, s50')
    A('s_lshr_b32 s48, s48, 23')
    A('s_max_u32 s48, s48, 13')
    A('s_min_u32 s48, s48, 254')
    A('s_sub_u32 s50, 267, s48')
    A('s_lshl_b32 s50, s50, 23')
    A('s_mov_b32 s51, s50')
    A('s_sub_u32 s49, s48, 153')
    for n in range(8):
        A(f'v_pk_mul_f32 v[{48+2*n}:{49+2*n}], v[{48+2*n}:{49+2*n}], s[50:51]')
    A('v_ldexp_f32 v113, v113, s49')
    for s in range(8):
        Z=32+2*s; C=48+2*s; r=s&3
        for k in range(3):
            A(f'v_pk_fma_f32 v[{64+2*k}:{65+2*k}], v[{Z}:{Z+1}], v[{24+2*k}:{25+2*k}], v[110:111] op_sel_hi:[1,0,1]')
        A(f'v_pk_mul_f32 v[70:71], v[{Z}:{Z+1}], v[30:31] op_sel_hi:[1,0]')
        for k in range(4): A(f'v_fract_f32 v{65+2*k}, v{65+2*k}')
        for k in range(4):
            A(f'v_exp_f32 v{64+2*k}, v{64+2*k}')
            A(f'v_cos_f32 v{72+2*k}, v{65+2*k}')
            A(f'v_sin_f32 v{73+2*k}, v{65+2*k}')
        for k in range(4):
            A(f'v_pk_mul_f32 v[{72+2*k}:{73+2*k}], v[{72+2*k}:{73+2*k}], v[{64+2*k}:{65+2*k}] op_sel_hi:[1,0]')
        for k in range(3):
            A(f'v_cvt_pk_f16_f32 v{80+4*k+r}, v{72+2*k}, v{73+2*k}')
        A(f'v_pk_mul_f32 v[64:65], v[78:79], v[{C}:{C+1}] op_sel_hi:[1,0] neg_hi:[1,0]')
        A(f'v_pk_fma_f32 v[64:65], v[78:79], v[{C}:{C+1}], v[64:65] op_sel:[1,1,0] op_sel_hi:[0,1,1] neg_lo:[1,0,0] neg_hi:[1,0,0]')
        A(f'v_cvt_pk_f16_f32 v{92+r}, v64, v65')
        if r==3:
            for k in range(3):
                c = '0' if s==3 else f'v[{96+4*k}:{99+4*k}]'
                A(f'v_mfma_f32_16x16x32_f16 v[{96+4*k}:{99+4*k}], v[{80+4*k}:{83+4*k}], v[92:95], {c}')
    stamp(A,3)
    A('v_lshrrev_b32 v5, 6, v0')
    A('v_mul_u32_u24 v5, 3072, v5')
    A('v_lshl_add_u32 v5, v1, 4, v5')
    A('v_readfirstlane_b32 s45, v0')
    A('s_lshr_b32 s45, s45, 6')
    A('v_lshrrev_b32 v6, 4, v1')
    A('v_lshlrev_b32 v6, 2, v6')
    for r in range(1,4): A(f'v_add_u32 v{32+r}, {r}, v6')
    A('v_mov_b32 v32, v6')
    for k in range(6):
        A(f'v_pk_mul_f32 v[{96+2*k}:{97+2*k}], v[{96+2*k}:{97+2*k}], v[112:113] op_sel:[0,1] op_sel_hi:[1,1]')
    for k in range(3):
        A(f'ds_write_b128 v5, v[{96+4*k}:{99+4*k}] offset:{k*1024}')
    for t in range(3):
        A(f's_cmp_lg_u32 s45, {t}')
        A(f's_cbranch_scc1 K1_KG_T{t}')
        for r in range(4): p_row(t,32+r,36+r,40)
        A(f'K1_KG_T{t}:')
    A('s_waitcnt lgkmcnt(0)')
    A('s_barrier')
    A('s_cmp_ge_u32 s45, 3')
    A('s_cbranch_scc1 K1_KG_SKIP')
    A('v_lshlrev_b32 v5, 4, v0')
    for w in range(4):
        A(f'ds_read_b128 v[{8+4*w}:{11+4*w}], v5 offset:{w*3072}')
    for r in range(4):
        A(f'v_lshl_add_u32 v{36+r}, v4, 3, v{36+r}')
        A(f'v_lshlrev_b32 v{36+r}, 1, v{36+r}')
    A('s_waitcnt lgkmcnt(0)')
    A('v_pk_add_f32 v[8:9], v[8:9], v[12:13]')
    A('v_pk_add_f32 v[10:11], v[10:11], v[14:15]')
    A('v_pk_add_f32 v[16:17], v[16:17], v[20:21]')
    A('v_pk_add_f32 v[18:19], v[18:19], v[22:23]')
    A('v_pk_add_f32 v[8:9], v[8:9], v[16:17]')
    A('v_pk_add_f32 v[10:11], v[10:11], v[18:19]')
    A('v_cvt_pk_bf16_f32 v8, v8, v9')
    A('v_cvt_pk_bf16_f32 v10, v10, v11')
    A('ds_write_b16 v36, v8 offset:12288')
    A('ds_write_b16_d16_hi v37, v8 offset:12288')
    A('ds_write_b16 v38, v10 offset:12288')
    A('ds_write_b16_d16_hi v39, v10 offset:12288')
    A('K1_KG_SKIP:')
    A('s_waitcnt lgkmcnt(0)')
    A('s_barrier')
    stamp(A,4)
    for e in range(8):
        A(f'ds_read_u16 v{24+e}, v{114+e} offset:12288')
    A('v_lshlrev_b32 v5, 4, v0')
    A(f's_mul_i32 s44, s23, {KFC}')
    A('v_mov_b32 v40, 0\nv_mov_b32 v41, 0\nv_mov_b32 v42, 0\nv_mov_b32 v43, 0')
    A('s_waitcnt lgkmcnt(0)')
    for e in range(4):
        A(f'v_lshl_or_b32 v{16+e}, v{25+2*e}, 16, v{24+2*e}')
    A(f'buffer_store_dwordx4 v[16:19], v5, s[40:43], s44 offen offset:32 {POL["KF"]}')
    A('v_cmp_gt_u32 vcc, 2, v0')
    A('s_and_saveexec_b64 s[56:57], vcc')
    A('s_cbranch_execz K1_KG_END')
    A('buffer_store_dwordx4 v[40:43], v5, s[40:43], s44 offen')
    A('K1_KG_END:')
    if STAMP:
        A('s_mov_b64 exec, -1')
        stamp(A,5)
        stamp_out(A,6,0)
    A('s_endpgm')
    if W2K1: gen_w2(A,0)
    return A.text(), kd('k1_kernel',128)

K2_W1=144; K2_CV=576
K2_GRID=K2_W1+K2_CV+(0 if os.environ.get('W2K1','1')=='1' else K1_W2)
CV_U=0
CV_P=4608
CV_E=4608
W1S=64
W1_TAB=576*W1S
K2_LDS=max(CV_E+33024, 32*RS, W1_TAB+3456)

def load_tile_g(A,delta=False):
    A('v_lshrrev_b32 v1, 3, v0')
    A('v_and_b32 v2, 7, v0')
    A('v_add_u32 v3, s20, v1')
    if delta:
        A('v_lshrrev_b32 v4, 4, v1')
        A('v_mul_u32_u24 v4, s21, v4')
        A('v_add_u32 v3, v3, v4')
    A('v_mul_u32_u24 v3, 1152, v3')
    A('v_lshl_add_u32 v3, v2, 4, v3')
    for c in range(9):
        A(f'buffer_load_dwordx4 v[{8+4*c}:{11+4*c}], v3, s[8:11], 0 offen offset:{c*128} nt')
    A(f'v_mul_u32_u24 v4, {RS}, v1')
    A('v_lshl_add_u32 v4, v2, 4, v4')
def write_tile_g(A,base):
    for c in range(9):
        A(f'ds_write_b128 v4, v[{base+4*c}:{base+3+4*c}] offset:{c*128}')
def tr_tile_g(A,rows_h):
    for q in range(9):
        A(f'ds_read_b64_tr_b16 v[{8+4*q}:{9+4*q}], v5 offset:{q*32}')
        A(f'ds_read_b64_tr_b16 v[{10+4*q}:{11+4*q}], v5 offset:{q*32+rows_h*RS}')

def gen_k2():
    A=Asm()
    A('k2_kernel:')
    A(f's_load_dwordx2 s[4:5], s[0:1], {KA["ws"]}')
    A('s_mov_b32 s3, s2')
    A(f's_cmp_lt_u32 s3, {K2_CV}')
    A('s_cbranch_scc1 K2_CV')
    A(f's_sub_u32 s3, s3, {K2_CV}')
    A(f's_cmp_lt_u32 s3, {K2_W1}')
    A('s_cbranch_scc1 K2_W1')
    if not W2K1:
        A(f's_sub_u32 s3, s3, {K2_W1}')
        A(f's_cmp_lt_u32 s3, {K1_W2}')
        A('s_cbranch_scc1 K1_W2')
    A('s_endpgm')
    A('K2_CV:')
    if 'K2_CV' in SKIP: A('s_endpgm')
    stamp(A,0)
    A(f's_load_dwordx2 s[6:7], s[0:1], {KA["dskip"]}')
    A('s_mov_b32 s23, s3')
    A('s_lshl_b32 s22, s23, 1')
    A('s_and_b32 s22, s22, 0xfffffffc')
    A('s_lshl_b32 s24, s23, 2')
    A('s_add_u32 s25, s24, 2304')
    A('s_add_u32 s26, s24, 4608')
    A('s_add_u32 s27, s24, 9216')
    A('s_lshl_b32 s44, s23, 12')
    A(f's_mul_i32 s45, s23, {KFC}')
    A('v_lshlrev_b32 v1, 4, v0')
    A('v_lshlrev_b32 v2, 5, v0')
    A('v_and_b32 v20, 15, v0')
    A('v_bfe_u32 v21, v0, 4, 2')
    A('v_lshrrev_b32 v22, 6, v0')
    A('s_waitcnt lgkmcnt(0)')
    stamp(A,8)
    A('s_load_dword s34, s[6:7], s22')
    A('s_load_dword s35, s[4:5], s24')
    A('s_load_dword s36, s[4:5], s25')
    A('s_load_dword s37, s[4:5], s26')
    A('s_load_dword s33, s[4:5], s27')
    srd(A,16,4,SZ_KF,WS['KF'])
    WA=72; WB=80; OA=88; OB=96
    A(f'buffer_load_dwordx4 v[{WA}:{WA+3}], v1, s[16:19], s45 offen offset:16')
    A(f'buffer_load_dwordx4 v[{WA+4}:{WA+7}], v1, s[16:19], s45 offen offset:32')
    A(f'buffer_load_dwordx4 v[{WB}:{WB+3}], v1, s[16:19], s45 offen offset:20')
    A(f'buffer_load_dwordx4 v[{WB+4}:{WB+7}], v1, s[16:19], s45 offen offset:36')
    srd(A,8,4,SZ_XT,WS['XT'])
    A('buffer_load_dwordx4 v[12:15], v1, s[8:11], s44 offen')
    srd(A,12,4,8192,WS['STAT'])
    A('buffer_load_dwordx4 v[40:43], v2, s[12:15], 0 offen')
    A('buffer_load_dwordx4 v[44:47], v2, s[12:15], 0 offen offset:16')
    srd(A,40,4,SZ_XT,WS['X1T'])
    stamp(A,9)
    A('v_mov_b32 v16, 0\nv_mov_b32 v17, 0\nv_mov_b32 v18, 0\nv_mov_b32 v19, 0')
    A(f'v_add_u32 v3, {CV_U+4096}, v1')
    A(f'v_add_u32 v23, {CV_E-512}, v1')
    A('v_cmp_gt_u32 vcc, 32, v0')
    A('v_cndmask_b32 v3, v23, v3, vcc')
    A('v_cmp_gt_u32 vcc, 40, v0')
    A('s_and_saveexec_b64 s[46:47], vcc')
    A('ds_write_b128 v3, v[16:19]')
    A('s_mov_b64 exec, s[46:47]')
    A('v_lshlrev_b32 v23, 7, v22')
    A('v_lshl_add_u32 v23, v21, 4, v23')
    A('v_lshlrev_b32 v25, 5, v20')
    A('v_sub_u32 v23, v23, v25')
    A(f'v_add_u32 v23, {CV_U+480}, v23')
    A(f'v_sub_u32 v25, {CV_U+4080}, v1')
    A('v_lshl_add_u32 v24, v21, 3, v20')
    A('v_lshl_add_u32 v24, v22, 6, v24')
    A('v_add_u32 v24, 1, v24')
    for res in range(2):
        if res: A('v_add_u32 v24, 32, v24')
        A('v_bfe_u32 v30, v24, 3, 3')
        A(f'v_xor_b32 v{30+res}, v24, v30')
        A(f'v_lshlrev_b32 v{30+res}, 4, v{30+res}')
        if res==0: A('v_mov_b32 v29, v30')
    A('v_mov_b32 v30, v29')
    A('v_add_u32 v26, 1, v0')
    A('v_and_b32 v27, 7, v26')
    A('v_lshlrev_b32 v27, 4, v27')
    A('v_lshlrev_b32 v26, 7, v26')
    for sft in range(8):
        A(f'v_xor_b32 v{104+sft}, {sft*16}, v27')
        A(f'v_add_u32 v{104+sft}, v26, v{104+sft}')
    stamp(A,1)
    A('s_waitcnt vmcnt(3)')
    stamp(A,2)
    for j in range(6):
        A(f'v_alignbit_b32 v{OA+j}, v{WA+j+1}, v{WA+j}, 16')
        A(f'v_alignbit_b32 v{OB+j}, v{WB+j+1}, v{WB+j}, 16')
    for sft,r in enumerate([WA,OA,WB,OB,WA+2,OA+2,WB+2,OB+2]):
        A(f'ds_write_b128 v{104+sft}, v[{r}:{r+3}] offset:{CV_E}')
    A('v_cmp_eq_u32 vcc, 255, v0')
    A('v_mov_b32 v3, 0')
    A('s_and_saveexec_b64 s[46:47], vcc')
    A(f'ds_write_b128 v3, v[{WA+4}:{WA+7}] offset:{CV_E+257*128+16}')
    A('s_mov_b64 exec, s[46:47]')
    A('s_waitcnt lgkmcnt(0)')
    A('s_and_b32 s22, s23, 1')
    A('s_lshl_b32 s22, s22, 4')
    A('s_lshr_b32 s34, s34, s22')
    A('s_lshl_b32 s34, s34, 16')
    A('s_mov_b32 s38, s35')
    A('s_mov_b32 s39, s35')
    A('v_add_f32 v26, 1.0, s36')
    A('v_cvt_pk_bf16_f32 v26, v26, v26')
    A('v_lshlrev_b32 v26, 16, v26')
    A('s_waitcnt vmcnt(0)')
    H=32; X=48; M=56; SD=64
    for e in range(4): unpack(A,X+2*e,X+1+2*e,12+e)
    for e in range(8): unpack(A,M+e,SD+e,40+e)
    for e in range(8): A(f'v_rcp_f32 v{SD+e}, v{SD+e}')
    for e in range(4): A(f'v_pk_add_f32 v[{H+2*e}:{H+1+2*e}], v[{X+2*e}:{X+1+2*e}], v[{M+2*e}:{M+1+2*e}] neg_lo:[0,1] neg_hi:[0,1]')
    def rnd(base,tmp):
        for e in range(4): A(f'v_cvt_pk_bf16_f32 v{tmp+e}, v{base+2*e}, v{base+2*e+1}')
        for e in range(4): unpack(A,base+2*e,base+2*e+1,tmp+e)
    rnd(H,4)
    for e in range(4): A(f'v_pk_mul_f32 v[{H+2*e}:{H+1+2*e}], v[{H+2*e}:{H+1+2*e}], v[{SD+2*e}:{SD+1+2*e}]')
    rnd(H,4)
    for e in range(4): A(f'v_pk_mul_f32 v[{H+2*e}:{H+1+2*e}], v[{H+2*e}:{H+1+2*e}], v[26:27] op_sel_hi:[1,0]')
    rnd(H,4)
    for e in range(4): A(f'v_pk_add_f32 v[{H+2*e}:{H+1+2*e}], v[{H+2*e}:{H+1+2*e}], s[38:39]')
    for e in range(4): A(f'v_cvt_pk_bf16_f32 v{4+e}, v{H+7-2*e}, v{H+6-2*e}')
    A('ds_write_b128 v25, v[4:7]')
    for e in range(4): unpack(A,H+7-2*e,H+6-2*e,4+e)
    for e in range(8): A(f'v_mul_f32 v{H+e}, s34, v{H+e}')
    A('v_and_b32 v27, 63, v0')
    A('v_lshlrev_b32 v27, 4, v27')
    A('v_lshl_add_u32 v27, v22, 13, v27')
    A('v_lshrrev_b32 v28, 5, v0')
    A('v_lshlrev_b32 v28, 10, v28')
    A('v_bfe_u32 v29, v0, 1, 4')
    A('v_lshl_add_u32 v28, v29, 4, v28')
    A('v_and_b32 v29, 1, v0')
    A('v_lshl_add_u32 v28, v29, 9, v28')
    A('s_waitcnt lgkmcnt(0)')
    A('s_barrier')
    stamp(A,3)
    Y=32; V=64; G=96
    for res in range(2):
        for n in range(8):
            A(f'ds_read_b128 v[{V+4*n}:{V+3+4*n}], v23 offset:{(7-n)*512+res*64}')
            A(f'ds_read_b128 v[{G+4*n}:{G+3+4*n}], v{30+res} offset:{CV_E+n*4096}')
        if res==0:
            for e in range(4): A(f'v_cvt_pk_bf16_f32 v{8+e}, v{H+2*e}, v{H+1+2*e}')
        done=set()
        for lev in range(8):
            A(f's_waitcnt lgkmcnt({2*(7-lev)})')
            if res==1 and lev==7: A('s_barrier')
            for q in range(lev+1):
                for n1 in range(lev+1):
                    if max(q,n1)!=lev or q+n1>7: continue
                    n=q+n1
                    c = f'v[{Y+4*n}:{Y+3+4*n}]' if (res or n in done) else '0'
                    done.add(n)
                    A(f'v_mfma_f32_16x16x32_bf16 v[{Y+4*n}:{Y+3+4*n}], v[{G+4*q}:{G+3+4*q}], v[{V+4*n1}:{V+3+4*n1}], {c}')
    stamp(A,4)
    for n in range(8):
        A(f'ds_write_b128 v27, v[{Y+4*n}:{Y+3+4*n}] offset:{CV_P+n*1024}')
    A('v_lshrrev_b32 v2, 3, v0')
    A('v_mul_u32_u24 v2, 73728, v2')
    A('v_and_b32 v3, 7, v0')
    A('v_lshl_add_u32 v2, v3, 4, v2')
    A('s_lshl_b32 s44, s23, 7')
    A('s_mov_b32 s38, s37')
    A('s_mov_b32 s39, s37')
    A('s_waitcnt lgkmcnt(0)')
    A('s_barrier')
    stamp(A,5)
    S=64; X=40
    for w in range(4):
        A(f'ds_read_b128 v[{S+8*w}:{S+3+8*w}], v28 offset:{CV_P+w*8192}')
        A(f'ds_read_b128 v[{S+4+8*w}:{S+7+8*w}], v28 offset:{CV_P+w*8192+256}')
    for e in range(4): unpack(A,H+2*e,H+1+2*e,8+e)
    for e in range(4): unpack(A,X+2*e,X+1+2*e,12+e)
    A('s_waitcnt lgkmcnt(0)')
    for e in range(0,8,2):
        A(f'v_pk_add_f32 v[{S+e}:{S+1+e}], v[{S+e}:{S+1+e}], v[{S+8+e}:{S+9+e}]')
        A(f'v_pk_add_f32 v[{S+16+e}:{S+17+e}], v[{S+16+e}:{S+17+e}], v[{S+24+e}:{S+25+e}]')
    for e in range(0,8,2):
        A(f'v_pk_add_f32 v[{S+e}:{S+1+e}], v[{S+e}:{S+1+e}], v[{S+16+e}:{S+17+e}]')
    rnd(S,4)
    for e in range(0,8,2): A(f'v_pk_add_f32 v[{S+e}:{S+1+e}], v[{S+e}:{S+1+e}], v[{H+e}:{H+1+e}]')
    rnd(S,4)
    for e in range(0,8,2): A(f'v_pk_mul_f32 v[{S+e}:{S+1+e}], v[{S+e}:{S+1+e}], s[38:39]')
    rnd(S,4)
    for e in range(0,8,2): A(f'v_pk_add_f32 v[{S+e}:{S+1+e}], v[{S+e}:{S+1+e}], v[{X+e}:{X+1+e}]')
    for e in range(4): A(f'v_cvt_pk_bf16_f32 v{4+e}, v{S+2*e}, v{S+1+2*e}')
    A(f'buffer_store_dwordx4 v[4:7], v2, s[40:43], s44 offen {POL["X1"]}')
    stamp(A,6)
    if STAMP: A('s_waitcnt vmcnt(0)')
    stamp(A,7)
    stamp_out(A,10,1)
    A('s_endpgm')

    A('K2_W1:')
    if 'K2_W1' in SKIP: A('s_endpgm')
    A('s_and_b32 s24, s3, 7')
    A('s_mul_i32 s24, s24, 18')
    A('s_lshr_b32 s3, s3, 3')
    A('s_add_u32 s3, s3, s24')
    A(f's_load_dwordx2 s[6:7], s[0:1], {KA["w1"]}')
    A('s_lshl_b32 s23, s3, 6')
    A('v_lshrrev_b32 v2, 2, v0')
    A('v_and_b32 v3, 3, v0')
    A('v_mul_u32_u24 v4, 9216, v2')
    A('v_lshl_add_u32 v4, v3, 4, v4')
    A('v_add_u32 v4, s23, v4')
    A('v_lshlrev_b32 v1, 2, v0')
    A('s_waitcnt lgkmcnt(0)')
    srd(A,8,6,SZ_W)
    for c in range(9):
        A(f's_mov_b32 s22, {c*64*9216}')
        A(f'buffer_load_dwordx4 v[{8+4*c}:{11+4*c}], v4, s[8:11], s22 offen nt')
    srd(A,16,4,3456*4,WS['MOD'])
    for c in range(3):
        A(f's_mov_b32 s22, {(3*576+256*c)*4}')
        A(f'buffer_load_dword v{100+c}, v1, s[16:19], s22 offen')
        A(f's_mov_b32 s22, {(4*576+256*c)*4}')
        A(f'buffer_load_dword v{104+c}, v1, s[16:19], s22 offen')
    srd(A,12,4,SZ_W,WS['W1F'])
    srd(A,36,4,4608*4,WS['CS'])
    srd(A,40,4,4608*4,WS['BIAS'])
    A(f'v_mul_u32_u24 v5, {W1S}, v2')
    A('v_lshl_add_u32 v5, v3, 4, v5')
    A('v_and_b32 v116, 63, v0')
    A('v_bfe_u32 v117, v0, 6, 1')
    A('v_lshrrev_b32 v111, 7, v0')
    A('v_lshrrev_b32 v118, 2, v116')
    A(f'v_mul_u32_u24 v6, {W1S}, v118')
    A('v_and_b32 v118, 3, v116')
    A('v_lshl_add_u32 v6, v118, 3, v6')
    A('v_lshl_add_u32 v6, v117, 5, v6')
    A(f'v_mul_u32_u24 v118, {288*W1S}, v111')
    A('v_add_u32 v6, v6, v118')
    A('v_lshrrev_b32 v119, 4, v116')
    A('v_mul_u32_u24 v118, 1152, v111')
    A('v_lshl_add_u32 v7, v119, 4, v118')
    A('v_lshrrev_b32 v108, 1, v7')
    A('s_lshl_b32 s24, s3, 1')
    A('v_readfirstlane_b32 s26, v117')
    A('v_readfirstlane_b32 s28, v111')
    A('s_add_u32 s26, s26, s24')
    A('s_mul_i32 s27, s26, 171')
    A('s_lshr_b32 s27, s27, 9')
    A('s_mul_i32 s29, s27, 3')
    A('s_sub_u32 s26, s26, s29')
    A('s_lshl_b32 s29, s26, 10')
    A('s_mul_i32 s27, s27, 55296')
    A('s_add_u32 s29, s29, s27')
    A('s_mul_i32 s28, s28, 27648')
    A('s_add_u32 s29, s29, s28')
    A('s_mov_b32 s30, 3072')
    A('v_lshlrev_b32 v109, 4, v116')
    A('v_lshlrev_b32 v110, 1, v0')
    A('v_mov_b32 v112, 0x3f803f80\nv_mov_b32 v113, 0x3f803f80\nv_mov_b32 v114, 0x3f803f80\nv_mov_b32 v115, 0x3f803f80')
    for c in range(9):
        A(f's_waitcnt vmcnt({14-c})')
        A(f'ds_write_b128 v5, v[{8+4*c}:{11+4*c}] offset:{c*64*W1S}')
    A('s_waitcnt vmcnt(0)')
    for c in range(3):
        A(f'v_add_f32 v{104+c}, 1.0, v{104+c}')
        A(f'v_cvt_pk_bf16_f32 v{104+c}, v{104+c}, v{104+c}')
        A(f'v_lshlrev_b32 v{104+c}, 16, v{104+c}')
        if c==2:
            A('v_cmp_gt_u32 vcc, 64, v0')
            A('s_and_saveexec_b64 s[46:47], vcc')
        A(f'ds_write_b32 v1, v{104+c} offset:{W1_TAB+1024*c}')
        A(f'ds_write_b16_d16_hi v110, v{100+c} offset:{W1_TAB+2304+512*c}')
    A('s_mov_b64 exec, s[46:47]')
    A('s_waitcnt lgkmcnt(0)')
    A('s_barrier')
    def rd(kk,F):
        A(f'ds_read_b64_tr_b16 v[{F}:{F+1}], v6 offset:{kk*32*W1S}')
        A(f'ds_read_b64_tr_b16 v[{F+2}:{F+3}], v6 offset:{kk*32*W1S+16*W1S}')
        A(f'ds_read_b128 v[{F+4}:{F+7}], v7 offset:{W1_TAB+kk*128}')
        A(f'ds_read_b128 v[{F+8}:{F+11}], v7 offset:{W1_TAB+kk*128+64}')
        A(f'ds_read_b64 v[{F+12}:{F+13}], v108 offset:{W1_TAB+2304+kk*64}')
        A(f'ds_read_b64 v[{F+14}:{F+15}], v108 offset:{W1_TAB+2304+kk*64+32}')
    rd(0,48)
    for kk in range(9):
        F=48+16*(kk&1)
        if kk<8:
            rd(kk+1,48+16*((kk+1)&1))
            A('s_waitcnt lgkmcnt(6)')
        else: A('s_waitcnt lgkmcnt(0)')
        A(f'v_mfma_f32_16x16x32_bf16 v[124:127], v[{F}:{F+3}], v[{F+12}:{F+15}], {"v[124:127]" if kk else "0"}')
        O=8+4*kk
        for e in range(4): unpack(A,80+2*e,81+2*e,F+e)
        for e in range(4): A(f'v_pk_mul_f32 v[{80+2*e}:{81+2*e}], v[{80+2*e}:{81+2*e}], v[{F+4+2*e}:{F+5+2*e}]')
        for e in range(4): A(f'v_cvt_pk_bf16_f32 v{O+e}, v{80+2*e}, v{81+2*e}')
        A(f'v_mfma_f32_16x16x32_bf16 v[120:123], v[{O}:{O+3}], v[112:115], {"v[120:123]" if kk else "0"}')
        A(f'buffer_store_dwordx4 v[{O}:{O+3}], v109, s[12:15], s29 offen {POL["W1F"]}')
        A('s_add_u32 s29, s29, s30')
    A('s_barrier')
    A('v_and_b32 v1, 127, v0')
    A('v_lshlrev_b32 v1, 5, v1')
    A('v_readfirstlane_b32 s45, v111')
    A('s_cmp_eq_u32 s45, 0')
    A('s_cbranch_scc1 K2_W1_A')
    A('ds_write_b128 v1, v[120:123]')
    A('ds_write_b128 v1, v[124:127] offset:16')
    A('s_waitcnt lgkmcnt(0)')
    A('s_barrier')
    A('s_endpgm')
    A('K2_W1_A:')
    A('s_barrier')
    A('ds_read_b128 v[48:51], v1')
    A('ds_read_b128 v[52:55], v1 offset:16')
    A('v_and_b32 v2, 15, v0')
    A('v_cmp_eq_u32 vcc, 0, v2')
    A('s_lshl_b32 s24, s3, 7')
    A('s_waitcnt lgkmcnt(0)')
    for e in range(0,8,2): A(f'v_pk_add_f32 v[{120+e}:{121+e}], v[{120+e}:{121+e}], v[{48+e}:{49+e}]')
    for e in range(4): A(f'v_mul_f32 v{124+e}, 0xbfb8aa3b, v{124+e}')
    A('s_and_saveexec_b64 s[46:47], vcc')
    A('buffer_store_dwordx4 v[120:123], v0, s[36:39], s24 offen')
    A('buffer_store_dwordx4 v[124:127], v0, s[40:43], s24 offen')
    A('s_endpgm')
    if not W2K1: gen_w2(A,1)
    return A.text(), kd('k2_kernel',128)

NOSTAT=bool(os.environ.get('NOSTAT'))
def interleave(A, mf, fill, per=None):
    n=len(mf); m=len(fill); k=0
    for i,x in enumerate(mf):
        A(x)
        tgt=(i+1)*m//n
        while k<tgt:
            A(fill[k]); k+=1
    while k<m:
        A(fill[k]); k+=1

K3_GRID=256
K3_A0=81920; K3_A1=49152; K3_CSL=155648; K3_LDS=156800
class VM:
    def __init__(s): s.q=[]
    def add(s,tag,n=1): s.q+= [tag]*n
    def after(s,tag):
        idx=max(i for i,t in enumerate(s.q) if t==tag)
        return min(63,len(s.q)-1-idx)

def wave_sum(A,r,t):
    A(f'v_add_f32_dpp v{r}, v{r}, v{r} quad_perm:[1,0,3,2] row_mask:0xf bank_mask:0xf')
    A(f'v_add_f32_dpp v{r}, v{r}, v{r} quad_perm:[2,3,0,1] row_mask:0xf bank_mask:0xf')
    A(f'v_add_f32_dpp v{r}, v{r}, v{r} row_half_mirror row_mask:0xf bank_mask:0xf')
    A(f'v_add_f32_dpp v{r}, v{r}, v{r} row_mirror row_mask:0xf bank_mask:0xf')
    A(f'v_mov_b32 v{t}, v{r}')
    A(f'v_permlane16_swap_b32 v{r}, v{t}')
    A(f'v_add_f32 v{r}, v{r}, v{t}')
    A(f'v_mov_b32 v{t}, v{r}')
    A(f'v_permlane32_swap_b32 v{r}, v{t}')
    A(f'v_add_f32 v{r}, v{r}, v{t}')

def row_stat(A,X,r):
    for c in range(9): A(f'v_lshlrev_b32 v{X+c}, 16, v{X+c}')
    A(f'v_add_f32 v{r}, v{X}, v{X+1}')
    for c in range(2,9): A(f'v_add_f32 v{r}, v{r}, v{X+c}')
    wave_sum(A,r,r+1)
    A(f'v_mul_f32 v{r}, 0x3ae38e39, v{r}')
    for c in range(9): A(f'v_sub_f32 v{X+c}, v{X+c}, v{r}')
    A(f'v_mul_f32 v{r+2}, v{X}, v{X}')
    for c in range(1,9): A(f'v_fmac_f32 v{r+2}, v{X+c}, v{X+c}')
    wave_sum(A,r+2,r+1)
    q=r+2
    A(f'v_mul_f32 v{q}, 0x3ae38e39, v{q}')
    A(f'v_cvt_pk_bf16_f32 v{q}, v{q}, v{q}')
    A(f'v_lshlrev_b32 v{q}, 16, v{q}')
    A(f'v_add_f32 v{q}, 0x3727c5ac, v{q}')
    A(f'v_cvt_pk_bf16_f32 v{q}, v{q}, v{q}')
    A(f'v_lshlrev_b32 v{q}, 16, v{q}')
    A(f'v_sqrt_f32 v{q}, v{q}')
    A(f'v_cvt_pk_bf16_f32 v{r}, v{r}, v{q}')

KF_XB=0; KF_HB=73728; KF_ST=147456; KF_CS=147968; KF_DUM=152576; KF_LDS=152576+8192
SZ_P=8*2048*576*2
KF_LDS=KF_CS+4608+1536+128
KF_FL=KF_CS+4608+1536
KF_SP=KF_CS+4608
def gen_kf():
    A=Asm(); vm=VM()
    P=int(os.environ.get('KFP','5'))
    A('k3_kernel:')
    A('s_cmp_ge_u32 s2, 256')
    A('s_cbranch_scc1 KF_END')
    stamp(A,0)
    A(f's_load_dwordx2 s[4:5], s[0:1], {KA["ws"]}')
    NF=int(os.environ.get('KFNF','2'))
    lg={1:0,2:1,4:2,8:3}[NF]
    A('s_and_b32 s23, s2, 7')
    A('s_lshr_b32 s24, s2, 3')
    A(f's_and_b32 s20, s23, {8//NF-1}')
    A(f's_lshl_b32 s20, s20, {lg}')
    A(f's_and_b32 s25, s24, {NF-1}')
    A('s_add_u32 s20, s20, s25')
    A(f's_lshr_b32 s21, s23, {3-lg}')
    A(f's_lshl_b32 s21, s21, {5-lg}')
    A(f's_lshr_b32 s25, s24, {lg}')
    A('s_add_u32 s21, s21, s25')
    BFR=24; ACC=56; RING=104
    t0,t1,t2,t3,G,I=56,57,58,59,60,61
    A('v_and_b32 v1, 63, v0')
    A('v_lshrrev_b32 v2, 6, v0')
    A('v_readfirstlane_b32 s22, v2')
    A('v_lshlrev_b32 v3, 4, v1')
    A(f'v_lshrrev_b32 v{G}, 4, v1')
    A(f'v_and_b32 v{I}, 15, v1')
    A('v_lshrrev_b32 v8, 3, v1')
    A('v_lshlrev_b32 v8, 7, v8')
    A(f'v_and_b32 v{t0}, 7, v1')
    A(f'v_lshlrev_b32 v{t1}, 1, v{G}')
    A(f'v_xor_b32 v{t0}, v{t0}, v{t1}')
    A(f'v_lshl_add_u32 v8, v{t0}, 4, v8')
    A('s_mul_i32 s23, s21, 73728')
    A('s_mul_i32 s33, s22, 6144')
    A('s_add_u32 s23, s23, s33')
    A('s_mul_i32 s24, s20, 12')
    A('s_add_u32 s24, s24, s22')
    A('s_mul_i32 s25, s24, 55296')
    A(f's_add_u32 s26, s25, {WS["W2F"]-WS["W1F"]}')
    A('v_lshlrev_b32 v23, 4, v0')
    A('s_waitcnt lgkmcnt(0)')
    srd(A,12,4,SZ_XT,WS['X1T'])
    A('s_mov_b32 m0, s33')
    for i in range(6):
        if i==4:
            A('s_add_u32 m0, s33, 4096')
            A('s_add_u32 s23, s23, 4096')
        A(f'buffer_load_dwordx4 v8, s[12:15], s23 offen offset:{(i&3)*1024} lds'); vm.add('x')
    srd(A,44,4,0x10000+4608*4,WS['CS'])
    A('v_cmp_le_u32 vcc, 144, v0')
    A(f'v_mov_b32 v{t0}, {0x10000-2304}')
    A(f'v_cndmask_b32 v{t0}, 0, v{t0}, vcc')
    A(f'v_add_u32 v{t0}, v{t0}, v23')
    A('s_mul_i32 s30, s20, 2304')
    A(f'buffer_load_dwordx4 v[64:67], v{t0}, s[44:47], s30 offen'); vm.add('x')
    srd(A,8,4,WS['W2F']-WS['W1F']+SZ_W,WS['W1F'])
    if os.environ.get('KFBAR','1')=='1': A('s_barrier')
    def wload(n):
        r=RING+12*(n%P); sreg=25 if n<18 else 26; vm.add(f'w{n}',3)
        return [f'buffer_load_dwordx4 v[{r+4*j}:{r+4*j+3}], v3, s[8:11], s{sreg} offen offset:{j*1024}' for j in range(3)]+[f's_add_u32 s{sreg}, s{sreg}, 3072']
    P0=int(os.environ.get('KFP0','1'))
    for n in range(P0):
        for x in wload(n): A(x)
    A(f'v_lshrrev_b32 v{t0}, 1, v{G}')
    A(f'v_lshlrev_b32 v{t0}, 10, v{t0}')
    A(f'v_and_b32 v{t1}, 1, v{G}')
    A(f'v_lshrrev_b32 v{t2}, 2, v{I}')
    A(f'v_lshl_add_u32 v{t2}, v{t1}, 2, v{t2}')
    A(f'v_lshl_add_u32 v{t0}, v{t2}, 7, v{t0}')
    A(f'v_and_b32 v{t3}, 3, v{I}')
    A(f'v_lshl_add_u32 v{t0}, v{t3}, 3, v{t0}')
    A(f'v_lshrrev_b32 v{t2}, 1, v{t2}')
    A(f'v_lshlrev_b32 v{t2}, 5, v{t2}')
    for tt in range(4):
        A(f'v_xor_b32 v{10+tt}, {32*tt}, v{t2}')
        A(f'v_add_u32 v{10+tt}, v{t0}, v{10+tt}')
    A('s_and_b32 s30, s22, 3')
    A('s_lshl_b32 s31, s30, 5')
    A(f'v_xor_b32 v18, s31, v{t2}')
    A(f'v_add_u32 v18, v{t0}, v18')
    A('s_lshr_b32 s31, s22, 2')
    A('s_mul_i32 s34, s31, 24576')
    A('v_add_u32 v18, s34, v18')
    A(f'v_lshlrev_b32 v6, 3, v{I}')
    A(f'v_add_u32 v6, {KF_SP}, v6')
    A('s_lshl_b32 s31, s31, 9')
    A('s_lshl_b32 s30, s30, 7')
    A('s_add_u32 s30, s30, s31')
    A('v_add_u32 v7, s30, v6')
    A(f'v_add_u32 v4, {KF_HB}, v3')
    for j in range(3):
        A('s_mul_i32 s30, s22, 3')
        A(f's_add_u32 s30, s30, {j}')
        A('s_lshr_b32 s31, s30, 1')
        A('s_lshl_b32 s31, s31, 12')
        A('s_and_b32 s30, s30, 1')
        A('s_lshl_b32 s30, s30, 3')
        A('s_add_u32 s30, s30, s31')
        A(f'v_add_u32 v{19+j}, s30, v4')
    A('s_mul_i32 s30, s22, 192')
    A(f's_add_u32 s30, s30, {KF_CS}')
    A(f'v_lshl_add_u32 v22, v{G}, 4, s30')
    A(f'v_add_u32 v23, {KF_CS}, v23')
    A('v_and_b32 v9, 3, v1')
    A('v_cmp_eq_u32 s[50:51], 1, v9')
    A('v_cmp_eq_u32 s[52:53], 2, v9')
    A('v_cmp_eq_u32 s[54:55], 3, v9')
    A(f'v_lshrrev_b32 v9, 2, v{I}')
    A(f'v_cmp_eq_u32 s[56:57], v9, v{G}')
    ONE=68; SS=72; SQ=76; SB=80
    for r in range(4): A(f'v_mov_b32 v{ONE+r}, 0x3f803f80')
    srd(A,16,4,SZ_P,WS['HF'])
    A('s_lshl_b32 s34, s20, 5')
    A('s_add_u32 s34, s34, s21')
    A('s_mul_i32 s34, s34, 73728')
    A('s_add_u32 s34, s34, s33')
    A('s_add_u32 s35, s34, 4096')
    stamp(A,1)
    A(f's_waitcnt vmcnt({vm.after("x")})')
    A('v_cmp_gt_u32 vcc, 288, v0')
    A('s_and_saveexec_b64 s[58:59], vcc')
    A('ds_write_b128 v23, v[64:67]')
    A('s_mov_b64 exec, s[58:59]')
    A('s_lshl_b32 s30, s22, 2')
    A(f's_add_u32 s30, s30, {KF_FL}')
    A('v_mov_b32 v5, s30')
    A('v_mov_b32 v9, 0')
    A('ds_write_b32 v5, v9')
    A('ds_write_b32 v5, v9 offset:64')
    A('s_waitcnt lgkmcnt(0)')
    A('s_barrier')
    stamp(A,2)
    for k in range(6):
        A(f'ds_read_b64_tr_b16 v[{SB+4*k}:{SB+4*k+1}], v18 offset:{k*4096}')
        A(f'ds_read_b64_tr_b16 v[{SB+4*k+2}:{SB+4*k+3}], v18 offset:{k*4096+2048}')
    def rdX(k):
        L=[]
        for tt in range(4):
            b=BFR+16*(k&1)+4*tt; o=(k%9)*4096
            L.append(f'ds_read_b64_tr_b16 v[{b}:{b+1}], v{10+tt} offset:{o}')
            L.append(f'ds_read_b64_tr_b16 v[{b+2}:{b+3}], v{10+tt} offset:{o+2048}')
        return L
    def rdH(k):
        return [f'ds_read_b128 v[{BFR+16*(k&1)+4*tt}:{BFR+16*(k&1)+4*tt+3}], v4 offset:{(k%9)*4096+tt*1024}' for tt in range(4)]
    for k in range(6):
        A(f's_waitcnt lgkmcnt({2*(5-k)})')
        A(f'v_mfma_f32_16x16x32_bf16 v[{SS}:{SS+3}], v[{ONE}:{ONE+3}], v[{SB+4*k}:{SB+4*k+3}], {"0" if k==0 else f"v[{SS}:{SS+3}]"}')
        A(f'v_mfma_f32_16x16x32_bf16 v[{SQ}:{SQ+3}], v[{SB+4*k}:{SB+4*k+3}], v[{SB+4*k}:{SB+4*k+3}], {"0" if k==0 else f"v[{SQ}:{SQ+3}]"}')
    for x in rdX(0): A(x)
    A(f'v_cndmask_b32 v{SQ}, v{SQ}, v{SQ+1}, s[50:51]')
    A(f'v_cndmask_b32 v{SQ}, v{SQ}, v{SQ+2}, s[52:53]')
    A(f'v_cndmask_b32 v{SS+1}, v{SQ}, v{SQ+3}, s[54:55]')
    A('s_mov_b64 exec, s[56:57]')
    A(f'ds_write_b64 v7, v[{SS}:{SS+1}]')
    A('s_mov_b64 exec, -1')
    A('v_mov_b32 v9, 1')
    A('s_waitcnt lgkmcnt(0)')
    A('ds_write_b32 v5, v9 offset:64')
    for n in range(P0,P):
        for x in wload(n): A(x)
    stamp(A,3)
    if os.environ.get('KFPRIO','0')=='2': A('s_setprio 2')
    def mm(n):
        k=n%18; L=[]
        for j in range(3):
            for tt in range(4):
                d=ACC+16*j+4*tt; a=RING+12*(n%P)+4*j; b=BFR+16*(k&1)+4*tt
                L.append(f'v_mfma_f32_16x16x32_bf16 v[{d}:{d+3}], v[{a}:{a+3}], v[{b}:{b+3}], {f"v[{d}:{d+3}]" if k else "0"}')
        return L
    def steps(n0,rd,adv,wf=None):
        for k in range(18):
            n=n0+k
            A(f's_waitcnt vmcnt({vm.after(f"w{n}")}) lgkmcnt(0)')
            if k==8:
                for x in adv: A(x)
            if wf and k<17 and (k+1)%3==0: wf((k+1)//3)
            R=rd(k+1) if k<17 else []
            M=mm(n)
            W=wload(n+P) if n+P<36 else None
            idx=0
            for j in range(3):
                for t,x in enumerate(M[4*j:4*j+4]):
                    A(x)
                    for _ in range(2):
                        if idx<len(R): A(R[idx]); idx+=1
                if W: A(W[j])
            if W: A(W[3])
    steps(0,rdX,[f'v_add_u32 v{10+tt}, 0x9000, v{10+tt}' for tt in range(4)])
    stamp(A,4)
    if os.environ.get('KFPRIO','0')=='1': A('s_setprio 3')
    if os.environ.get('KFPRIO','0')=='2': A('s_setprio 0')
    A(f'v_mov_b32 v18, {KF_FL+64}')
    A('KF_SW:')
    A(f'ds_read_b128 v[{BFR}:{BFR+3}], v18')
    A(f'ds_read_b128 v[{BFR+4}:{BFR+7}], v18 offset:16')
    A(f'ds_read_b128 v[{BFR+8}:{BFR+11}], v18 offset:32')
    A('s_waitcnt lgkmcnt(0)')
    for r in range(1,12): A(f'v_and_b32 v{BFR}, v{BFR}, v{BFR+r}')
    A(f'v_readfirstlane_b32 s30, v{BFR}')
    A('s_cmp_eq_u32 s30, 1')
    A('s_cbranch_scc0 KF_SW')
    SPR=BFR
    for p in range(3):
        for tt in range(4): A(f'ds_read_b64 v[{SPR+8*p+2*tt}:{SPR+8*p+2*tt+1}], v6 offset:{p*512+tt*128}')
    A('s_waitcnt lgkmcnt(0)')
    NR=10
    for tt in range(4):
        a0=SPR+2*tt
        A(f'v_pk_add_f32 v[{a0}:{a0+1}], v[{a0}:{a0+1}], v[{a0+8}:{a0+9}]')
        A(f'v_pk_add_f32 v[{a0}:{a0+1}], v[{a0}:{a0+1}], v[{a0+16}:{a0+17}]')
        m=NR+2*tt; q=m+1
        for x in [f'v_mul_f32 v{m}, 0x3ae38e39, v{a0}', f'v_mul_f32 v{q}, 0x3ae38e39, v{a0+1}', f'v_fma_f32 v{q}, -v{m}, v{m}, v{q}', f'v_max_f32 v{q}, 0, v{q}',
              f'v_cvt_pk_bf16_f32 v{m}, v{m}, v{q}', f'v_and_b32 v{q}, 0xffff0000, v{m}', f'v_lshlrev_b32 v{m}, 16, v{m}',
              f'v_sub_f32 v{m}, 0, v{m}', f'v_add_f32 v{q}, 0x3727c5ac, v{q}', f'v_cvt_pk_bf16_f32 v{q}, v{q}, v{q}',
              f'v_lshlrev_b32 v{q}, 16, v{q}', f'v_sqrt_f32 v{q}, v{q}', f'v_cvt_pk_bf16_f32 v{q}, v{q}, v{q}',
              f'v_lshlrev_b32 v{q}, 16, v{q}', f'v_rcp_f32 v{q}, v{q}', f'v_mul_f32 v{q}, 0xbfb8aa3b, v{q}']: A(x)
    CB=BFR; T=BFR+24
    for j in range(3):
        A(f'ds_read_b128 v[{CB+8*j}:{CB+8*j+3}], v22 offset:{j*64}')
        A(f'ds_read_b128 v[{CB+8*j+4}:{CB+8*j+7}], v22 offset:{j*64+2304}')
    A('s_waitcnt lgkmcnt(0)')
    for j in range(3):
        c=CB+8*j
        for hh in range(2):
            d0=ACC+16*j+8*hh
            for t in range(2):
                for r in range(4): A(f'v_fmac_f32 v{d0+4*t+r}, v{c+r}, v{NR+2*(2*hh+t)}')
            for t in range(2):
                for r in range(4): A(f'v_fma_f32 v{d0+4*t+r}, v{d0+4*t+r}, v{NR+1+2*(2*hh+t)}, v{c+4+r}')
            for r in range(8): A(f'v_exp_f32 v{T+r}, v{d0+r}')
            for r in range(8): A(f'v_add_f32 v{T+r}, 1.0, v{T+r}')
            for r in range(8): A(f'v_rcp_f32 v{T+r}, v{T+r}')
            for r in range(8): A(f'v_mul_f32 v{d0+r}, v{d0+r}, v{T+r}')
            for t in range(2):
                d=d0+4*t
                A(f'v_cvt_pk_bf16_f32 v{d}, v{d}, v{d+1}')
                A(f'v_cvt_pk_bf16_f32 v{d+1}, v{d+2}, v{d+3}')
            for t in range(2):
                A(f'ds_write_b64 v{19+j}, v[{d0+4*t}:{d0+4*t+1}] offset:{(2*hh+t)*1024}')
    A('s_waitcnt lgkmcnt(0)')
    A('v_mov_b32 v9, 1')
    A('ds_write_b32 v5, v9')
    A(f'v_mov_b32 v5, {KF_FL}')
    stamp(A,5)
    def waitflags(g):
        A(f'KF_W{g}:')
        A(f'ds_read_b64 v[18:19], v5 offset:{g*8}')
        A('s_waitcnt lgkmcnt(0)')
        A('v_and_b32 v18, v18, v19')
        A('v_readfirstlane_b32 s30, v18')
        A('s_cmp_eq_u32 s30, 1')
        A(f's_cbranch_scc1 KF_G{g}')
        if os.environ.get('KFSL','0')=='1': A('s_sleep 2')
        A(f's_branch KF_W{g}')
        A(f'KF_G{g}:')
    FL=os.environ.get('KFFL','1')=='1'
    if FL: waitflags(0)
    else: A('s_barrier')
    stamp(A,6)
    for x in rdH(0): A(x)
    steps(18,rdH,['v_add_u32 v4, 0x9000, v4'],waitflags if FL else None)
    for j in range(3):
        for tp in range(2):
            d=ACC+16*j+8*tp
            for e in range(4): A(f'v_cvt_pk_bf16_f32 v{d+e}, v{d+2*e}, v{d+2*e+1}')
            o=j*2048+tp*1024
            A(f'buffer_store_dwordx4 v[{d}:{d+3}], v3, s[16:19], s{34 if o<4096 else 35} offen offset:{o&4095} {POL["H"]}')
    stamp(A,7)
    if STAMP: A('s_waitcnt vmcnt(0)')
    stamp(A,8)
    if STAMP:
        A('s_and_b32 s30, s22, 3')
        A('s_cmp_lg_u32 s30, 0')
        A('s_cbranch_scc1 KF_END')
        A('s_lshr_b32 s30, s22, 2')
        A('s_lshl_b32 s30, s30, 6')
        A('v_mov_b32 v0, s30')
    stamp_out(A,9,2)
    A('KF_END:')
    A('s_endpgm')
    return A.text(), kd('k3_kernel',RING+12*P)

def gen_k5():
    A=Asm()
    A('k4_kernel:')
    A('s_cmp_ge_u32 s2, 576')
    A('s_cbranch_scc1 K5_END')
    stamp(A,0)
    A(f's_load_dwordx2 s[4:5], s[0:1], {KA["ws"]}')
    A(f's_load_dwordx2 s[6:7], s[0:1], {KA["out"]}')
    A('v_and_b32 v1, 63, v0')
    A('v_lshrrev_b32 v2, 6, v0')
    A('v_readfirstlane_b32 s22, v2')
    A('v_lshlrev_b32 v3, 4, v1')
    A('s_lshl_b32 s20, s2, 2')
    A('s_add_u32 s20, s20, s22')
    A('s_and_b32 s21, s20, 1')
    A('s_lshr_b32 s23, s20, 1')
    A('s_mul_i32 s24, s23, 1821')
    A('s_lshr_b32 s24, s24, 16')
    A('s_mul_i32 s25, s24, 36')
    A('s_sub_u32 s25, s23, s25')
    A('s_lshl_b32 s26, s20, 10')
    A('v_and_b32 v4, 15, v1')
    A('v_lshrrev_b32 v5, 4, v1')
    A('v_lshlrev_b32 v6, 9, v5')
    A('v_lshl_add_u32 v6, v4, 1, v6')
    A('s_mul_i32 s27, s24, 73728')
    A('s_lshl_b32 s28, s25, 11')
    A('s_add_u32 s27, s27, s28')
    A('s_lshl_b32 s28, s21, 6')
    A('s_add_u32 s27, s27, s28')
    A('v_lshlrev_b32 v7, 4, v5')
    A('s_lshl_b32 s29, s25, 6')
    A('s_add_u32 s29, s29, 11520')
    A('s_waitcnt lgkmcnt(0)')
    srd(A,8,4,SZ_P,WS['HF'])
    for f in range(8):
        A(f's_add_u32 s30, s26, {f*2359296}')
        A(f'buffer_load_dwordx4 v[{16+4*f}:{19+4*f}], v3, s[8:11], s30 offen')
    srd(A,16,4,SZ_XT,WS['X1T'])
    for t in range(2):
        for r in range(4):
            A(f'buffer_load_ushort v{8+4*t+r}, v6, s[16:19], s27 offen offset:{r*128+t*32}')
    srd(A,52,4,3456*4,WS['MOD'])
    A('buffer_load_dwordx4 v[48:51], v7, s[52:55], s29 offen')
    srd(A,56,6,SZ_XT)
    A('s_lshl_b32 s27, s24, 6')
    A('s_lshl_b32 s28, s21, 5')
    A('s_add_u32 s27, s27, s28')
    A('v_add_u32 v52, s27, v4')
    A('v_mul_u32_u24 v52, 1152, v52')
    A('v_lshl_add_u32 v52, v5, 3, v52')
    A('s_lshl_b32 s28, s25, 5')
    A('s_add_u32 s31, s28, 18432')
    S=56
    for f in range(8):
        A(f's_waitcnt vmcnt({16-f})')
        for e in range(4):
            if f==0: unpack(A,S+2*e,S+2*e+1,16+e)
            else:
                unpack(A,64+2*e,65+2*e,16+4*f+e)
                A(f'v_pk_add_f32 v[{S+2*e}:{S+2*e+1}], v[{S+2*e}:{S+2*e+1}], v[{64+2*e}:{65+2*e}]')
    for r in range(8): A(f'v_mul_f32 v{S+r}, 0xbf317218, v{S+r}')
    for e in range(4): A(f'v_cvt_pk_bf16_f32 v{16+e}, v{S+2*e}, v{S+2*e+1}')
    for e in range(4): unpack(A,S+2*e,S+2*e+1,16+e)
    A('s_waitcnt vmcnt(0)')
    for e in range(4): A(f'v_pk_mul_f32 v[{S+2*e}:{S+2*e+1}], v[{S+2*e}:{S+2*e+1}], v[{48+2*(e&1)}:{49+2*(e&1)}]')
    for e in range(4): A(f'v_cvt_pk_bf16_f32 v{16+e}, v{S+2*e}, v{S+2*e+1}')
    for e in range(4): unpack(A,S+2*e,S+2*e+1,16+e)
    for r in range(8): A(f'v_lshlrev_b32 v{8+r}, 16, v{8+r}')
    for e in range(4): A(f'v_pk_add_f32 v[{S+2*e}:{S+2*e+1}], v[{S+2*e}:{S+2*e+1}], v[{8+2*e}:{9+2*e}]')
    for e in range(4): A(f'v_cvt_pk_bf16_f32 v{16+e}, v{S+2*e}, v{S+2*e+1}')
    A('buffer_store_dwordx2 v[16:17], v52, s[56:59], s28 offen')
    A('buffer_store_dwordx2 v[18:19], v52, s[56:59], s31 offen')
    stamp(A,1)
    if STAMP: A('s_waitcnt vmcnt(0)')
    stamp(A,2)
    stamp_out(A,3,3)
    A('K5_END:')
    A('s_endpgm')
    return A.text(), kd('k4_kernel',72)

def assemble(kernels, fn):
    hdr=open('cdna_kernels/'+NAME+'.s.ref').read().split('\n')
    out=[l for l in hdr if l.startswith(';') and '@launch' not in l and 'Override launch' not in l and 'grid=ceil' not in l]
    for k in kernels:
        out.append(f'; @launch kernel={k[0]} grid=({k[1]},1,1) block=({k[2]},1,1) lds={k[3]}')
    out.append('.amdgcn_target "amdgcn-amd-amdhsa--gfx950"')
    out.append('.text')
    seen=set()
    for k in kernels:
        if k[0] in seen: continue
        seen.add(k[0])
        out.append(f'.globl {k[0]}\n.p2align 8\n.type {k[0]},@function')
        out.append(k[4])
    out.append('CODE_END:')
    seen=set()
    for k in kernels:
        if k[0] in seen: continue
        seen.add(k[0])
        out.append(k[5])
    open(fn,'w').write('\n'.join(out))

if __name__=='__main__':
    t1,d1=gen_k1(); t2,d2=gen_k2(); t3,d3=gen_kf(); t4,d4=gen_k5()
    ks=[('k1_kernel',K1_GRID,256,K1_LDS,t1,d1),('k2_kernel',K2_GRID,256,K2_LDS,t2,d2),
        ('k3_kernel',256,768,KF_LDS,t3,d3),('k4_kernel',576,256,0,t4,d4)]
    nk=int(os.environ.get('NK','4'))
    assemble(ks[:nk], sys.argv[1] if len(sys.argv)>1 else 'k.s')
```

```python
import sys,os
from asmlib import Asm

NAME='adaLN_cond__ssm_conv_s4d__dense_activation_silu__prompt'
KA=dict(x=0,lar=8,aim=16,cr=24,ci=32,logdt=40,dskip=48,w1=64,w2=72,c=80,wmod=88,out=96,dbg=104,ws=112)
WS=dict(MOD=0x0, CS=0x10000, BIAS=0x20000, STAT=0x30000, STAT2=0x38000, X1S=0x400000, XT=0x100000, XNT=0x400000, KF=0x700000, X1T=0xC00000,
        W1F=0x1000000, W2F=0x1800000, HF=0x2000000)
SZ_XT=576*2048*2
KFC=4160
SZ_KF=576*KFC
SZ_W=576*4608*2
SZ_H=2048*4608*2
LOG2E=0x3fb8aa3b
INV2PI=0x3e22f983

def srd(A, d, base, size, off=0):
    if off:
        A(f's_add_u32 s{d}, s{base}, {off:#x}')
        A(f's_addc_u32 s{d+1}, s{base+1}, 0')
    else:
        A(f's_mov_b32 s{d}, s{base}')
        A(f's_mov_b32 s{d+1}, s{base+1}')
    A(f's_mov_b32 s{d+2}, {size:#x}')
    A(f's_mov_b32 s{d+3}, 0x00020000')

def kd(name, vgpr, sgpr=102, agpr=0):
    acc=(vgpr+3)//4*4
    return f'''.section .rodata,"a"
.p2align 6
.amdhsa_kernel {name}
  .amdhsa_next_free_vgpr {acc+agpr if agpr else vgpr}
  .amdhsa_next_free_sgpr {sgpr}
  .amdhsa_accum_offset {acc}
  .amdhsa_group_segment_fixed_size 0
  .amdhsa_kernarg_size 120
  .amdhsa_user_sgpr_count 2
  .amdhsa_user_sgpr_kernarg_segment_ptr 1
  .amdhsa_system_sgpr_workgroup_id_x 1
.end_amdhsa_kernel
'''

STAMP=bool(os.environ.get('STAMP'))
POL=dict(XT='',KF='',W2F='sc1',X1='',W1F='sc1',H='sc1')
for kv in os.environ.get('POL','').split(','):
    if '=' in kv:
        k,v=kv.split('='); POL[k]=v.replace('+',' ')
def stamp(A,i):
    if STAMP:
        A(f's_mem{"real" if os.environ.get("STAMP")=="2" else ""}time s[{60+2*i}:{61+2*i}]')
def stamp_out(A,n,slot):
    if not STAMP: return
    A('s_waitcnt lgkmcnt(0)')
    srd(A,92,4,1<<22,0x8000000+slot*(1<<22))
    A('v_readfirstlane_b32 s96, v0')
    A('s_lshr_b32 s96, s96, 6')
    A('s_lshl_b32 s97, s2, 2')
    A('s_add_u32 s96, s96, s97')
    A('s_lshl_b32 s96, s96, 6')
    A('v_mov_b32 v1, 0')
    for i in range(n):
        A(f'v_mov_b32 v2, s{60+2*i}')
        A(f'buffer_store_dword v2, v1, s[92:95], s96 offen offset:{4*i}')

def unpack(A, dlo, dhi, src):
    A(f'v_lshlrev_b32 v{dlo}, 16, v{src}')
    A(f'v_and_b32 v{dhi}, 0xffff0000, v{src}')

K1_LN=64; K1_MOD=54; K1_W2=144; K1_KG=576
K1_PAD=2
K1_GRID=K1_LN+K1_MOD+K1_KG+((K1_W2+K1_PAD) if os.environ.get('W2K1','1')=='1' else 0)
RS=1184
K1_LDS=32*RS

import os
SKIP=os.environ.get('SKIP','').split(',')
MG=os.environ.get('MG','0')=='1'
CHAIN=os.environ.get('CHAIN','1')=='1'
TOW=40448
W2K1=os.environ.get('W2K1','1')=='1'
def gen_w2(A,slot):
    A('K1_W2:')
    if 'K1_W2' in SKIP: A('s_endpgm')
    A('s_and_b32 s24, s3, 7')
    A('s_mul_i32 s24, s24, 18')
    A('s_lshr_b32 s3, s3, 3')
    A('s_add_u32 s3, s3, s24')
    stamp(A,0)
    A(f's_load_dwordx2 s[6:7], s[0:1], {KA["w2"]}')
    A('s_mov_b32 s23, s3')
    A('s_lshl_b32 s20, s23, 5')
    A('s_waitcnt lgkmcnt(0)')
    srd(A,8,6,SZ_W)
    srd(A,12,4,SZ_W,WS['W2F'])
    load_tile_g(A,False)
    A('v_and_b32 v116, 63, v0')
    A('v_lshrrev_b32 v117, 6, v0')
    A('v_lshrrev_b32 v120, 2, v116')
    A(f'v_mul_u32_u24 v5, {RS}, v120')
    A('v_and_b32 v120, 3, v116')
    A('v_lshl_add_u32 v5, v120, 3, v5')
    A('v_mul_u32_u24 v120, 288, v117')
    A('v_add_u32 v5, v5, v120')
    A('s_mul_i32 s24, s23, 57')
    A('s_lshr_b32 s24, s24, 10')
    A('s_mul_i32 s25, s24, 18')
    A('s_sub_u32 s25, s23, s25')
    A('s_mul_i32 s24, s24, 663552')
    A('s_mul_i32 s25, s25, 3072')
    A('s_add_u32 s24, s24, s25')
    A('v_mul_u32_u24 v6, 165888, v117')
    A('v_lshl_add_u32 v6, v116, 4, v6')
    A('v_add_u32 v6, s24, v6')
    A('s_waitcnt vmcnt(0)')
    stamp(A,1)
    write_tile_g(A,8)
    A('s_waitcnt lgkmcnt(0)')
    A('s_barrier')
    tr_tile_g(A,16)
    A('s_waitcnt lgkmcnt(0)')
    for q in range(9):
        A(f's_mov_b32 s22, {(q//3)*55296+(q%3)*1024}')
        A(f'buffer_store_dwordx4 v[{8+4*q}:{11+4*q}], v6, s[12:15], s22 offen {POL["W2F"]}')
    stamp(A,2)
    if STAMP: A('s_waitcnt vmcnt(0)')
    stamp(A,3)
    stamp_out(A,4,slot)
    if MG and CHAIN:
        A('s_barrier')
        A('s_branch K2_W1B')
    else: A('s_endpgm')


def gen_k1():
    A=Asm()
    A('k1_kernel:')
    A(f's_load_dwordx2 s[4:5], s[0:1], {KA["ws"]}')
    if MG:
        A(f's_load_dwordx2 s[100:101], s[0:1], {KA["dbg"]}')
        A('s_mov_b32 s98, 0')
        A('K12_DISP:')
    A('s_mov_b32 s3, s2')
    order=os.environ.get('K1ORD',('LN,MOD,PAD,KG,W2' if CHAIN else 'LN,MOD,PAD,KG,W2,W1') if MG else 'KG,LN,MOD,PAD,W2').split(',')
    cnt=dict(KG=K1_KG,LN=K1_LN,MOD=K1_MOD,PAD=K1_PAD,W2=K1_W2,W1=144)
    for r in order:
        if r=='PAD':
            A(f's_cmp_lt_u32 s3, {cnt[r]}')
            A('s_cbranch_scc1 K1_EXIT')
        else:
            A(f's_cmp_lt_u32 s3, {cnt[r]}')
            A(f's_cbranch_scc1 {"K2_W1" if r=="W1" else "K1_"+r}')
        A(f's_sub_u32 s3, s3, {cnt[r]}')
    A('K1_EXIT:')
    A('s_endpgm')
    def signal(idx,n,nxt,me):
        A('s_mov_b64 exec, -1')
        A('s_waitcnt vmcnt(0)')
        A('s_barrier')
        A('s_cmp_lg_u32 s98, 0')
        A(f's_cbranch_scc1 {me}_FB')
        A('v_readfirstlane_b32 s22, v0')
        A('s_cmp_lg_u32 s22, 0')
        A('s_cbranch_scc1 K1_EXIT')
        srd(A,8,100,256)
        A('v_mov_b32 v2, 1')
        A('v_mov_b32 v1, 0')
        A('s_mov_b64 exec, 1')
        A(f'buffer_atomic_add v2, v1, s[8:11], 0 offen offset:{idx*4} sc1')
        A('s_endpgm')
        A(f'{me}_FB:')
        A('s_add_u32 s3, s3, 1')
        A(f's_cmp_lt_u32 s3, {n}')
        A(f's_cbranch_scc1 {me}')
        A('s_mov_b32 s3, 0')
        if nxt=='K12_DISP': A('s_mov_b32 s98, 2')
        A(f's_branch {nxt}')
    if MG:
        A('K12_FALLBACK:')
        A('s_mov_b64 exec, -1')
        A('s_waitcnt vmcnt(0) lgkmcnt(0)')
        A('s_barrier')
        A('s_mov_b32 s98, 1')
        A('s_mov_b32 s3, 0')
        A('s_branch K1_LN')

    def load_tile(delta=False):
        A('v_lshrrev_b32 v1, 3, v0')
        A('v_and_b32 v2, 7, v0')
        A('v_add_u32 v3, s20, v1')
        if delta:
            A('v_lshrrev_b32 v4, 4, v1')
            A('v_mul_u32_u24 v4, s21, v4')
            A('v_add_u32 v3, v3, v4')
        A('v_mul_u32_u24 v3, 1152, v3')
        A('v_lshl_add_u32 v3, v2, 4, v3')
        for c in range(9):
            A(f'buffer_load_dwordx4 v[{8+4*c}:{11+4*c}], v3, s[8:11], 0 offen offset:{c*128} nt')
        A(f'v_mul_u32_u24 v4, {RS}, v1')
        A('v_lshl_add_u32 v4, v2, 4, v4')
    def write_tile(base):
        for c in range(9):
            A(f'ds_write_b128 v4, v[{base+4*c}:{base+3+4*c}] offset:{c*128}')

    A('K1_LN:')
    if 'K1_LN' in SKIP: A('s_endpgm')
    if MG and os.environ.get('MGPRIO','1')=='1': A('s_setprio 3')
    stamp(A,0)
    if os.environ.get('CPF','0')=='1':
        A('s_getpc_b64 s[30:31]')
        A('K1_PC:')
        A('s_add_u32 s30, s30, k2_kernel-K1_PC')
        A('s_addc_u32 s31, s31, 0')
        A('v_lshlrev_b32 v126, 7, v0')
        A('v_cmp_gt_u32 vcc, (CODE_END-k2_kernel+127)/128, v0')
        A('s_and_saveexec_b64 s[32:33], vcc')
        A('global_load_dword v127, v126, s[30:31]')
        A('s_mov_b64 exec, s[32:33]')
    A(f's_load_dwordx2 s[6:7], s[0:1], {KA["x"]}')
    A('s_lshl_b32 s20, s3, 5')
    A('s_waitcnt lgkmcnt(0)')
    srd(A,8,6,SZ_XT)
    load_tile()
    srd(A,12,4,SZ_XT,WS['XT'])
    srd(A,16,4,0x8000+8192,WS['STAT'])
    A('v_and_b32 v116, 63, v0')
    A('v_lshrrev_b32 v117, 6, v0')
    A('v_lshrrev_b32 v118, 4, v116')
    A('v_and_b32 v119, 15, v116')
    A('v_lshrrev_b32 v120, 2, v119')
    A('v_lshl_add_u32 v120, v118, 3, v120')
    A(f'v_mul_u32_u24 v5, {RS}, v120')
    A('v_and_b32 v120, 3, v119')
    A('v_lshl_add_u32 v5, v120, 3, v5')
    A('v_mul_u32_u24 v120, 288, v117')
    A('v_add_u32 v5, v5, v120')
    A('v_mul_u32_u24 v6, 144, v117')
    A('v_add_u32 v6, v6, v119')
    A('v_lshlrev_b32 v6, 12, v6')
    A('v_lshl_add_u32 v6, v118, 4, v6')
    A('s_lshl_b32 s21, s20, 1')
    A('v_add_u32 v6, s21, v6')
    A('s_waitcnt vmcnt(0)')
    stamp(A,1)
    write_tile(8)
    U=44
    for i in range(36): unpack(A,U+2*i,U+2*i+1,8+i)
    A('s_waitcnt lgkmcnt(0)')
    A('s_barrier')
    def tr_tile(rows_h):
        for q in range(9):
            A(f'ds_read_b64_tr_b16 v[{8+4*q}:{9+4*q}], v5 offset:{q*32}')
            A(f'ds_read_b64_tr_b16 v[{10+4*q}:{11+4*q}], v5 offset:{q*32+rows_h*RS}')
    tr_tile(4)
    A(f'v_pk_add_f32 v[116:117], v[{U}:{U+1}], v[{U+2}:{U+3}]')
    A(f'v_pk_add_f32 v[118:119], v[{U+4}:{U+5}], v[{U+6}:{U+7}]')
    for i in range(4,36,2):
        A(f'v_pk_add_f32 v[116:117], v[116:117], v[{U+2*i}:{U+2*i+1}]')
        A(f'v_pk_add_f32 v[118:119], v[118:119], v[{U+2*i+2}:{U+2*i+3}]')
    A('v_pk_add_f32 v[116:117], v[116:117], v[118:119]')
    A('v_add_f32 v116, v116, v117')
    A('s_waitcnt lgkmcnt(0)')
    for q in range(9):
        A(f's_mov_b32 s22, {q*65536}')
        A(f'buffer_store_dwordx4 v[{8+4*q}:{11+4*q}], v6, s[12:15], s22 offen {"sc1" if MG else POL["XT"]}')
    def red8(r):
        A(f'v_add_f32_dpp v{r}, v{r}, v{r} quad_perm:[1,0,3,2] row_mask:0xf bank_mask:0xf')
        A(f'v_add_f32_dpp v{r}, v{r}, v{r} quad_perm:[2,3,0,1] row_mask:0xf bank_mask:0xf')
        A(f'v_add_f32_dpp v{r}, v{r}, v{r} row_half_mirror row_mask:0xf bank_mask:0xf')
    red8(116)
    A('v_mul_f32 v116, 0x3ae38e39, v116')
    A('v_sub_f32 v118, 0, v116')
    for i in range(0,36,2):
        A(f'v_pk_add_f32 v[124:125], v[{U+2*i}:{U+2*i+1}], v[118:119] op_sel_hi:[1,0]')
        A(f'v_pk_add_f32 v[126:127], v[{U+2*i+2}:{U+2*i+3}], v[118:119] op_sel_hi:[1,0]')
        if i==0:
            A('v_pk_mul_f32 v[120:121], v[124:125], v[124:125]')
            A('v_pk_mul_f32 v[122:123], v[126:127], v[126:127]')
        else:
            A('v_pk_fma_f32 v[120:121], v[124:125], v[124:125], v[120:121]')
            A('v_pk_fma_f32 v[122:123], v[126:127], v[126:127], v[122:123]')
    A('v_pk_add_f32 v[120:121], v[120:121], v[122:123]')
    A('v_add_f32 v120, v120, v121')
    red8(120)
    A('v_mul_f32 v120, 0x3ae38e39, v120')
    A('v_cvt_pk_bf16_f32 v120, v120, v120')
    A('v_lshlrev_b32 v120, 16, v120')
    A('v_add_f32 v120, 0x3727c5ac, v120')
    A('v_cvt_pk_bf16_f32 v120, v120, v120')
    A('v_lshlrev_b32 v120, 16, v120')
    A('v_sqrt_f32 v120, v120')
    A('v_cvt_pk_bf16_f32 v120, v116, v120')
    A('v_lshlrev_b32 v121, 2, v1')
    A('v_cmp_eq_u32 vcc, 0, v2')
    A('s_lshl_b32 s21, s20, 2')
    A('s_and_saveexec_b64 s[26:27], vcc')
    A(f'buffer_store_dword v120, v121, s[16:19], s21 offen {"sc1" if MG else ""}')
    if STAMP: A('s_mov_b64 exec, -1')
    stamp(A,2)
    if STAMP: A('s_waitcnt vmcnt(0)')
    stamp(A,3)
    stamp_out(A,4,0)
    if MG: signal(0,K1_LN,'K1_MOD','K1_LN')
    else: A('s_endpgm')

    A('K1_MOD:')
    if 'K1_MOD' in SKIP: A('s_endpgm')
    if MG and os.environ.get('MGPRIO','1')=='1': A('s_setprio 3')
    stamp(A,0)
    A(f's_load_dwordx2 s[6:7], s[0:1], {KA["wmod"]}')
    A(f's_load_dwordx2 s[24:25], s[0:1], {KA["c"]}')
    A('s_mov_b32 s23, s3')
    A('s_lshl_b32 s23, s23, 7')
    A('s_waitcnt lgkmcnt(0)')
    srd(A,8,6,576*3456*2)
    srd(A,12,24,1152)
    srd(A,16,4,3456*4,WS['MOD'])
    A('v_lshrrev_b32 v1, 3, v0')
    A('v_and_b32 v2, 7, v0')
    A('v_lshlrev_b32 v3, 1, v1')
    for c in range(18):
        A(f'buffer_load_ushort v{80+c}, v3, s[12:15], 0 offen offset:{c*64}')
    A('v_mul_u32_u24 v4, 6912, v1')
    A('v_lshl_add_u32 v4, v2, 4, v4')
    A('v_add_u32 v4, s23, v4')
    for c in range(18):
        A(f's_mov_b32 s22, {c*32*6912}')
        A(f'buffer_load_dwordx4 v[{8+4*c}:{11+4*c}], v4, s[8:11], s22 offen nt')
    A('s_waitcnt vmcnt(18)')
    for c in range(18):
        r=80+c
        A(f'v_lshlrev_b32 v{r}, 16, v{r}')
        A(f'v_mul_f32 v100, 0xbfb8aa3b, v{r}')
        A('v_exp_f32 v100, v100')
        A('v_add_f32 v100, 1.0, v100')
        A('v_rcp_f32 v100, v100')
        A(f'v_mul_f32 v{r}, v{r}, v100')
        A(f'v_cvt_pk_bf16_f32 v{r}, v{r}, v{r}')
        A(f'v_lshlrev_b32 v{r}, 16, v{r}')
    for e in range(8): A(f'v_mov_b32 v{104+e}, 0')
    for c in range(18):
        A(f's_waitcnt vmcnt({17-c})')
        for e in range(4):
            unpack(A,100,101,8+4*c+e)
            A(f'v_fmac_f32 v{104+2*e}, v{80+c}, v100')
            A(f'v_fmac_f32 v{105+2*e}, v{80+c}, v101')
    stamp(A,1)
    A('v_lshlrev_b32 v5, 8, v1')
    A('v_lshl_add_u32 v5, v2, 5, v5')
    A('ds_write_b128 v5, v[104:107]')
    A('ds_write_b128 v5, v[108:111] offset:16')
    A('s_waitcnt lgkmcnt(0)')
    A('s_barrier')
    A('v_cmp_gt_u32 vcc, 64, v0')
    A('s_and_saveexec_b64 s[26:27], vcc')
    A('s_cbranch_execz K1_MOD_END')
    A('v_lshlrev_b32 v5, 2, v0')
    for r in range(32):
        A(f'ds_read_b32 v{8+r}, v5 offset:{r*256}')
    A('s_waitcnt lgkmcnt(0)')
    for r in range(16): A(f'v_add_f32 v{8+r}, v{8+r}, v{24+r}')
    for r in range(8): A(f'v_add_f32 v{8+r}, v{8+r}, v{16+r}')
    for r in range(4): A(f'v_add_f32 v{8+r}, v{8+r}, v{12+r}')
    for r in range(2): A(f'v_add_f32 v{8+r}, v{8+r}, v{10+r}')
    A('v_add_f32 v8, v8, v9')
    A('v_cvt_pk_bf16_f32 v8, v8, v8')
    A('v_lshlrev_b32 v8, 16, v8')
    A('s_lshl_b32 s23, s23, 1')
    A(f'buffer_store_dword v8, v5, s[16:19], s23 offen {"sc1" if MG else ""}')
    A('K1_MOD_END:')
    if STAMP:
        A('s_mov_b64 exec, -1')
        stamp(A,2)
        A('s_waitcnt vmcnt(0)')
        stamp(A,3)
        stamp_out(A,4,0)
    if MG: signal(1,K1_MOD,'K12_DISP','K1_MOD')
    else: A('s_endpgm')

    A('K1_KG:')
    if 'K1_KG' in SKIP: A('s_endpgm')
    stamp(A,0)
    if MG:
        A('s_setprio 0')
        A(f'v_mov_b32 v1, {TOW}')
        A('v_mov_b32 v2, 0')
        A('ds_write_b32 v1, v2')
    A(f's_load_dwordx4 s[24:27], s[0:1], {KA["lar"]}')
    A(f's_load_dwordx4 s[28:31], s[0:1], {KA["cr"]}')
    A(f's_load_dwordx2 s[32:33], s[0:1], {KA["logdt"]}')
    A('s_mov_b32 s23, s3')
    A('s_lshl_b32 s22, s23, 1')
    A('s_and_b32 s22, s22, 0xfffffffc')
    A('v_and_b32 v1, 63, v0')
    A('v_lshrrev_b32 v2, 4, v0')
    A('v_lshlrev_b32 v3, 4, v2')
    A('s_lshl_b32 s44, s23, 8')
    A('s_waitcnt lgkmcnt(0)')
    A('s_load_dword s34, s[32:33], s22')
    srd(A,8,24,576*128*2)
    A('buffer_load_dwordx4 v[8:11], v3, s[8:11], s44 offen nt')
    srd(A,12,26,576*128*2)
    A('buffer_load_dwordx4 v[12:15], v3, s[12:15], s44 offen nt')
    srd(A,16,28,576*128*2)
    A('buffer_load_dwordx4 v[16:19], v3, s[16:19], s44 offen nt')
    srd(A,36,30,576*128*2)
    A('buffer_load_dwordx4 v[20:23], v3, s[36:39], s44 offen nt')
    srd(A,40,4,SZ_KF,WS['KF'])
    A('v_and_b32 v4, 15, v0')
    def p_row(tile, vi, vd, t):
        if tile==0:
            A(f'v_lshrrev_b32 v{t}, 3, v{vi}')
            A(f'v_and_b32 v{vd}, 7, v{vi}')
            A(f'v_lshl_add_u32 v{vd}, v{t}, 7, v{vd}')
        elif tile==1:
            A(f'v_lshrrev_b32 v{t}, 2, v{vi}')
            A(f'v_and_b32 v{vd}, 3, v{vi}')
            A(f'v_lshlrev_b32 v{vd}, 1, v{vd}')
            A(f'v_lshl_add_u32 v{vd}, v{t}, 7, v{vd}')
            A(f'v_add_u32 v{vd}, 256, v{vd}')
            A(f'v_lshrrev_b32 v{t}, 1, v{vi}')
            A(f'v_lshlrev_b32 v{t}, 7, v{t}')
            A(f'v_and_b32 v{t+1}, 1, v{vi}')
            A(f'v_lshl_add_u32 v{t}, v{t+1}, 2, v{t}')
            A(f'v_cmp_gt_u32 vcc, 8, v{vi}')
            A(f'v_cndmask_b32 v{vd}, v{t}, v{vd}, vcc')
        else:
            A(f'v_lshlrev_b32 v{vd}, 7, v{vi}')
            A(f'v_add_u32 v{vd}, 1024, v{vd}')
    for t in range(3):
        p_row(t,4,24+2*t,112)
        A(f'v_cvt_f32_u32 v{24+2*t}, v{24+2*t}')
    A('v_lshlrev_b32 v30, 3, v4')
    A('v_cvt_f32_u32 v30, v30')
    A('v_mov_b32 v110, 0x41600000')
    A('v_mov_b32 v111, 0')
    A('v_lshlrev_b32 v5, 3, v0')
    for e in range(8):
        A(f'v_add_u32 v{114+e}, {e}, v5')
        A(f'v_cvt_f32_u32 v{114+e}, v{114+e}')
    for e in range(0,8,2):
        A(f'v_cvt_pk_bf16_f32 v{114+e}, v{114+e}, v{115+e}')
        A(f'v_and_b32 v{115+e}, 0xffff0000, v{114+e}')
        A(f'v_lshlrev_b32 v{114+e}, 16, v{114+e}')
    for e in range(8):
        A(f'v_cvt_u32_f32 v{114+e}, v{114+e}')
        A(f'v_lshlrev_b32 v{114+e}, 1, v{114+e}')
    A('s_waitcnt lgkmcnt(0)')
    A('s_and_b32 s22, s23, 1')
    A('s_lshl_b32 s22, s22, 4')
    A('s_lshr_b32 s34, s34, s22')
    A('s_lshl_b32 s34, s34, 16')
    A(f'v_mov_b32 v112, {LOG2E:#x}')
    A('v_mul_f32 v113, s34, v112')
    A('v_exp_f32 v113, v113')
    A('v_cvt_pk_bf16_f32 v113, v113, v113')
    A('v_lshlrev_b32 v113, 16, v113')
    A('v_mul_f32 v108, 0xbfb8aa3b, v113')
    A(f'v_mul_f32 v109, {INV2PI:#x}, v113')
    stamp(A,1)
    A('s_waitcnt vmcnt(0)')
    stamp(A,2)
    for e in range(4):
        unpack(A,32+4*e,34+4*e,8+e)
        unpack(A,33+4*e,35+4*e,12+e)
        unpack(A,48+4*e,50+4*e,16+e)
        unpack(A,49+4*e,51+4*e,20+e)
    for n in range(8):
        A(f'v_mul_f32 v{32+2*n}, v112, v{32+2*n}')
        A(f'v_exp_f32 v{32+2*n}, v{32+2*n}')
    A('v_max3_f32 v6, |v48|, |v49|, |v50|')
    for n in range(51,63,2): A(f'v_max3_f32 v6, |v{n}|, |v{n+1}|, v6')
    A('v_max_f32 v6, |v63|, v6')
    for n in range(0,8,2):
        A(f'v_cvt_pk_bf16_f32 v{32+2*n}, v{32+2*n}, v{34+2*n}')
        A(f'v_and_b32 v{34+2*n}, 0xffff0000, v{32+2*n}')
        A(f'v_lshlrev_b32 v{32+2*n}, 16, v{32+2*n}')
    for q in range(4): A(f'v_readlane_b32 s{48+q}, v6, {16*q}')
    for n in range(8):
        A(f'v_pk_mul_f32 v[{32+2*n}:{33+2*n}], v[{32+2*n}:{33+2*n}], v[108:109]')
    A('s_max_u32 s48, s48, s49')
    A('s_max_u32 s50, s50, s51')
    A('s_max_u32 s48, s48, s50')
    A('s_lshr_b32 s48, s48, 23')
    A('s_max_u32 s48, s48, 13')
    A('s_min_u32 s48, s48, 254')
    A('s_sub_u32 s50, 267, s48')
    A('s_lshl_b32 s50, s50, 23')
    A('s_mov_b32 s51, s50')
    A('s_sub_u32 s49, s48, 153')
    for n in range(8):
        A(f'v_pk_mul_f32 v[{48+2*n}:{49+2*n}], v[{48+2*n}:{49+2*n}], s[50:51]')
    A('v_ldexp_f32 v113, v113, s49')
    for s in range(8):
        Z=32+2*s; C=48+2*s; r=s&3
        for k in range(3):
            A(f'v_pk_fma_f32 v[{64+2*k}:{65+2*k}], v[{Z}:{Z+1}], v[{24+2*k}:{25+2*k}], v[110:111] op_sel_hi:[1,0,1]')
        A(f'v_pk_mul_f32 v[70:71], v[{Z}:{Z+1}], v[30:31] op_sel_hi:[1,0]')
        for k in range(4): A(f'v_fract_f32 v{65+2*k}, v{65+2*k}')
        for k in range(4):
            A(f'v_exp_f32 v{64+2*k}, v{64+2*k}')
            A(f'v_cos_f32 v{72+2*k}, v{65+2*k}')
            A(f'v_sin_f32 v{73+2*k}, v{65+2*k}')
        for k in range(4):
            A(f'v_pk_mul_f32 v[{72+2*k}:{73+2*k}], v[{72+2*k}:{73+2*k}], v[{64+2*k}:{65+2*k}] op_sel_hi:[1,0]')
        for k in range(3):
            A(f'v_cvt_pk_f16_f32 v{80+4*k+r}, v{72+2*k}, v{73+2*k}')
        A(f'v_pk_mul_f32 v[64:65], v[78:79], v[{C}:{C+1}] op_sel_hi:[1,0] neg_hi:[1,0]')
        A(f'v_pk_fma_f32 v[64:65], v[78:79], v[{C}:{C+1}], v[64:65] op_sel:[1,1,0] op_sel_hi:[0,1,1] neg_lo:[1,0,0] neg_hi:[1,0,0]')
        A(f'v_cvt_pk_f16_f32 v{92+r}, v64, v65')
        if r==3:
            for k in range(3):
                c = '0' if s==3 else f'v[{96+4*k}:{99+4*k}]'
                A(f'v_mfma_f32_16x16x32_f16 v[{96+4*k}:{99+4*k}], v[{80+4*k}:{83+4*k}], v[92:95], {c}')
    stamp(A,3)
    if MG:
        srd(A,88,100,256)
        A('v_mov_b32 v124, 0')
    A('v_lshrrev_b32 v5, 6, v0')
    A('v_mul_u32_u24 v5, 3072, v5')
    A('v_lshl_add_u32 v5, v1, 4, v5')
    A('v_readfirstlane_b32 s45, v0')
    A('s_lshr_b32 s45, s45, 6')
    A('v_lshrrev_b32 v6, 4, v1')
    A('v_lshlrev_b32 v6, 2, v6')
    for r in range(1,4): A(f'v_add_u32 v{32+r}, {r}, v6')
    A('v_mov_b32 v32, v6')
    for k in range(6):
        A(f'v_pk_mul_f32 v[{96+2*k}:{97+2*k}], v[{96+2*k}:{97+2*k}], v[112:113] op_sel:[0,1] op_sel_hi:[1,1]')
    for k in range(3):
        A(f'ds_write_b128 v5, v[{96+4*k}:{99+4*k}] offset:{k*1024}')
    for t in range(3):
        A(f's_cmp_lg_u32 s45, {t}')
        A(f's_cbranch_scc1 K1_KG_T{t}')
        for r in range(4): p_row(t,32+r,36+r,40)
        A(f'K1_KG_T{t}:')
    A('s_waitcnt lgkmcnt(0)')
    A('s_barrier')
    A('s_cmp_ge_u32 s45, 3')
    A('s_cbranch_scc1 K1_KG_SKIP')
    A('v_lshlrev_b32 v5, 4, v0')
    for w in range(4):
        A(f'ds_read_b128 v[{8+4*w}:{11+4*w}], v5 offset:{w*3072}')
    for r in range(4):
        A(f'v_lshl_add_u32 v{36+r}, v4, 3, v{36+r}')
        A(f'v_lshlrev_b32 v{36+r}, 1, v{36+r}')
    A('s_waitcnt lgkmcnt(0)')
    A('v_pk_add_f32 v[8:9], v[8:9], v[12:13]')
    A('v_pk_add_f32 v[10:11], v[10:11], v[14:15]')
    A('v_pk_add_f32 v[16:17], v[16:17], v[20:21]')
    A('v_pk_add_f32 v[18:19], v[18:19], v[22:23]')
    A('v_pk_add_f32 v[8:9], v[8:9], v[16:17]')
    A('v_pk_add_f32 v[10:11], v[10:11], v[18:19]')
    A('v_cvt_pk_bf16_f32 v8, v8, v9')
    A('v_cvt_pk_bf16_f32 v10, v10, v11')
    A('ds_write_b16 v36, v8 offset:12288')
    A('ds_write_b16_d16_hi v37, v8 offset:12288')
    A('ds_write_b16 v38, v10 offset:12288')
    A('ds_write_b16_d16_hi v39, v10 offset:12288')
    A('K1_KG_SKIP:')
    if MG:
        A('s_cmp_lg_u32 s45, 0')
        A('s_cbranch_scc1 K1_KG_NP')
        A('buffer_load_dwordx2 v[122:123], v124, s[88:91], 0 offen sc1')
        A('K1_KG_NP:')
    A('s_waitcnt lgkmcnt(0)')
    A('s_barrier')
    stamp(A,4)
    for e in range(8):
        A(f'ds_read_u16 v{24+e}, v{114+e} offset:12288')
    if MG:
        A('v_lshlrev_b32 v5, 4, v0')
        A('v_mov_b32 v40, 0\nv_mov_b32 v41, 0\nv_mov_b32 v42, 0\nv_mov_b32 v43, 0')
        A('s_waitcnt lgkmcnt(0)')
        for e in range(4):
            A(f'v_lshl_or_b32 v{76+e}, v{25+2*e}, 16, v{24+2*e}')
        A('ds_write_b128 v5, v[76:79] offset:16')
        A('v_cmp_eq_u32 vcc, 0, v0')
        A('s_and_saveexec_b64 s[56:57], vcc')
        A('ds_write_b128 v5, v[40:43]')
        A('s_mov_b64 exec, s[56:57]')
        A('s_waitcnt lgkmcnt(0)')
        A('s_barrier')
        A('ds_read_b128 v[72:75], v5')
        poll(A,'CV',True)
        A('s_waitcnt lgkmcnt(0)')
        A('s_barrier')
        A('s_branch K2_CV')
        gen_w2(A,0)
        gen_k2(A)
        return A.text(), kd('k1_kernel',128)
    A('v_lshlrev_b32 v5, 4, v0')
    A(f's_mul_i32 s44, s23, {KFC}')
    A('v_mov_b32 v40, 0\nv_mov_b32 v41, 0\nv_mov_b32 v42, 0\nv_mov_b32 v43, 0')
    A('s_waitcnt lgkmcnt(0)')
    for e in range(4):
        A(f'v_lshl_or_b32 v{16+e}, v{25+2*e}, 16, v{24+2*e}')
    A(f'buffer_store_dwordx4 v[16:19], v5, s[40:43], s44 offen offset:32 {POL["KF"]}')
    A('v_cmp_gt_u32 vcc, 2, v0')
    A('s_and_saveexec_b64 s[56:57], vcc')
    A('s_cbranch_execz K1_KG_END')
    A('buffer_store_dwordx4 v[40:43], v5, s[40:43], s44 offen')
    A('K1_KG_END:')
    if STAMP:
        A('s_mov_b64 exec, -1')
        stamp(A,5)
        stamp_out(A,6,0)
    A('s_endpgm')
    if W2K1: gen_w2(A,0)
    return A.text(), kd('k1_kernel',128)

K2_W1=144; K2_CV=576
K2_GRID=K2_W1+K2_CV+(0 if os.environ.get('W2K1','1')=='1' else K1_W2)
CV_U=0
CV_P=4608
CV_E=4608
W1S=64
W1_TAB=576*W1S
K2_LDS=max(CV_E+33024, 32*RS, W1_TAB+3456)

def load_tile_g(A,delta=False):
    A('v_lshrrev_b32 v1, 3, v0')
    A('v_and_b32 v2, 7, v0')
    A('v_add_u32 v3, s20, v1')
    if delta:
        A('v_lshrrev_b32 v4, 4, v1')
        A('v_mul_u32_u24 v4, s21, v4')
        A('v_add_u32 v3, v3, v4')
    A('v_mul_u32_u24 v3, 1152, v3')
    A('v_lshl_add_u32 v3, v2, 4, v3')
    for c in range(9):
        A(f'buffer_load_dwordx4 v[{8+4*c}:{11+4*c}], v3, s[8:11], 0 offen offset:{c*128} nt')
    A(f'v_mul_u32_u24 v4, {RS}, v1')
    A('v_lshl_add_u32 v4, v2, 4, v4')
def write_tile_g(A,base):
    for c in range(9):
        A(f'ds_write_b128 v4, v[{base+4*c}:{base+3+4*c}] offset:{c*128}')
def tr_tile_g(A,rows_h):
    for q in range(9):
        A(f'ds_read_b64_tr_b16 v[{8+4*q}:{9+4*q}], v5 offset:{q*32}')
        A(f'ds_read_b64_tr_b16 v[{10+4*q}:{11+4*q}], v5 offset:{q*32+rows_h*RS}')

def poll(A,name,need_ln):
    A('s_cmp_eq_u32 s98, 2')
    A(f's_cbranch_scc1 {name}_OK')
    A('v_readfirstlane_b32 s86, v0')
    A('s_cmp_lg_u32 s86, 0')
    A(f's_cbranch_scc1 {name}_OK')
    A('s_mov_b32 s86, 0')
    A(f'{name}_P:')
    A('s_waitcnt vmcnt(0)')
    A('v_readfirstlane_b32 s84, v122')
    A('v_readfirstlane_b32 s85, v123')
    if need_ln:
        A(f's_cmp_ge_u32 s84, {K1_LN}')
        A('s_cselect_b32 s85, s85, 0')
    A(f's_cmp_ge_u32 s85, {K1_MOD}')
    A(f's_cbranch_scc1 {name}_OK')
    A(f's_sleep {os.environ.get("POLLSL","16")}')
    A('buffer_load_dwordx2 v[122:123], v124, s[88:91], 0 offen sc1')
    A('s_add_u32 s86, s86, 1')
    A(f's_cmp_lt_u32 s86, {int(os.environ.get("POLLMAX","2000"))}')
    A(f's_cbranch_scc1 {name}_P')
    A(f'v_mov_b32 v122, {TOW}')
    A('v_mov_b32 v123, 1')
    A('s_waitcnt vmcnt(0)')
    A(f'v_mov_b32 v122, {TOW}')
    A('v_mov_b32 v123, 1')
    A('ds_write_b32 v122, v123')
    A(f'{name}_OK:')
def tocheck(A):
    A(f'v_mov_b32 v122, {TOW}')
    A('ds_read_b32 v123, v122')
    A('s_waitcnt lgkmcnt(0)')
    A('v_readfirstlane_b32 s84, v123')
    A('s_cmp_lg_u32 s84, 0')
    A('s_cbranch_scc1 K12_FALLBACK')

def gen_k2(A=None):
    if A is None:
        A=Asm()
        A('k2_kernel:')
        A(f's_load_dwordx2 s[4:5], s[0:1], {KA["ws"]}')
        A('s_mov_b32 s3, s2')
        A(f's_cmp_lt_u32 s3, {K2_CV}')
        A('s_cbranch_scc1 K2_CV')
        A(f's_sub_u32 s3, s3, {K2_CV}')
        A(f's_cmp_lt_u32 s3, {K2_W1}')
        A('s_cbranch_scc1 K2_W1')
        if not W2K1:
            A(f's_sub_u32 s3, s3, {K2_W1}')
            A(f's_cmp_lt_u32 s3, {K1_W2}')
            A('s_cbranch_scc1 K1_W2')
        A('s_endpgm')
    A('K2_CV:')
    if 'K2_CV' in SKIP: A('s_endpgm')
    stamp(A,0)
    A(f's_load_dwordx2 s[6:7], s[0:1], {KA["dskip"]}')
    A('s_mov_b32 s23, s3')
    A('s_lshl_b32 s22, s23, 1')
    A('s_and_b32 s22, s22, 0xfffffffc')
    A('s_lshl_b32 s24, s23, 2')
    A('s_add_u32 s25, s24, 2304')
    A('s_add_u32 s26, s24, 4608')
    A('s_add_u32 s27, s24, 9216')
    A('s_lshl_b32 s44, s23, 12')
    A(f's_mul_i32 s45, s23, {KFC}')
    A('v_lshlrev_b32 v1, 4, v0')
    A('v_lshlrev_b32 v2, 5, v0')
    A('v_and_b32 v20, 15, v0')
    A('v_bfe_u32 v21, v0, 4, 2')
    A('v_lshrrev_b32 v22, 6, v0')
    A('s_waitcnt lgkmcnt(0)')
    stamp(A,8)
    A('s_load_dword s34, s[6:7], s22')
    WA=72; WB=80; OA=88; OB=96
    if MG:
        srd(A,8,4,SZ_XT,WS['XT'])
        A('buffer_load_dwordx4 v[12:15], v1, s[8:11], s44 offen sc1')
        srd(A,12,4,8192,WS['STAT'])
        A('buffer_load_dwordx4 v[40:43], v2, s[12:15], 0 offen sc1')
        A('buffer_load_dwordx4 v[44:47], v2, s[12:15], 0 offen offset:16 sc1')
        srd(A,16,4,3456*4,WS['MOD'])
        A('v_mov_b32 v124, 0')
        for i,sr in enumerate((24,25,26)): A(f'buffer_load_dword v{112+i}, v124, s[16:19], s{sr} offen sc1')
        for j in range(7): A(f'v_mov_b32 v{WB+j}, v{WA+j+1}')
    else:
        A('s_load_dword s35, s[4:5], s24')
        A('s_load_dword s36, s[4:5], s25')
        A('s_load_dword s37, s[4:5], s26')
        A('s_load_dword s33, s[4:5], s27')
        srd(A,16,4,SZ_KF,WS['KF'])
        WA=72; WB=80; OA=88; OB=96
        A(f'buffer_load_dwordx4 v[{WA}:{WA+3}], v1, s[16:19], s45 offen offset:16')
        A(f'buffer_load_dwordx4 v[{WA+4}:{WA+7}], v1, s[16:19], s45 offen offset:32')
        A(f'buffer_load_dwordx4 v[{WB}:{WB+3}], v1, s[16:19], s45 offen offset:20')
        A(f'buffer_load_dwordx4 v[{WB+4}:{WB+7}], v1, s[16:19], s45 offen offset:36')
        srd(A,8,4,SZ_XT,WS['XT'])
        A('buffer_load_dwordx4 v[12:15], v1, s[8:11], s44 offen')
        srd(A,12,4,8192,WS['STAT'])
        A('buffer_load_dwordx4 v[40:43], v2, s[12:15], 0 offen')
        A('buffer_load_dwordx4 v[44:47], v2, s[12:15], 0 offen offset:16')
    srd(A,40,4,SZ_XT,WS['X1T'])
    stamp(A,9)
    A('v_mov_b32 v16, 0\nv_mov_b32 v17, 0\nv_mov_b32 v18, 0\nv_mov_b32 v19, 0')
    A(f'v_add_u32 v3, {CV_U+4096}, v1')
    A(f'v_add_u32 v23, {CV_E-512}, v1')
    A('v_cmp_gt_u32 vcc, 32, v0')
    A('v_cndmask_b32 v3, v23, v3, vcc')
    A('v_cmp_gt_u32 vcc, 40, v0')
    A('s_and_saveexec_b64 s[46:47], vcc')
    A('ds_write_b128 v3, v[16:19]')
    A('s_mov_b64 exec, s[46:47]')
    A('v_lshlrev_b32 v23, 7, v22')
    A('v_lshl_add_u32 v23, v21, 4, v23')
    A('v_lshlrev_b32 v25, 5, v20')
    A('v_sub_u32 v23, v23, v25')
    A(f'v_add_u32 v23, {CV_U+480}, v23')
    A(f'v_sub_u32 v25, {CV_U+4080}, v1')
    A('v_lshl_add_u32 v24, v21, 3, v20')
    A('v_lshl_add_u32 v24, v22, 6, v24')
    A('v_add_u32 v24, 1, v24')
    for res in range(2):
        if res: A('v_add_u32 v24, 32, v24')
        A('v_bfe_u32 v30, v24, 3, 3')
        A(f'v_xor_b32 v{30+res}, v24, v30')
        A(f'v_lshlrev_b32 v{30+res}, 4, v{30+res}')
        if res==0: A('v_mov_b32 v29, v30')
    A('v_mov_b32 v30, v29')
    A('v_add_u32 v26, 1, v0')
    A('v_and_b32 v27, 7, v26')
    A('v_lshlrev_b32 v27, 4, v27')
    A('v_lshlrev_b32 v26, 7, v26')
    for sft in range(8):
        A(f'v_xor_b32 v{104+sft}, {sft*16}, v27')
        A(f'v_add_u32 v{104+sft}, v26, v{104+sft}')
    stamp(A,1)
    if not MG: A('s_waitcnt vmcnt(3)')
    stamp(A,2)
    for j in range(6):
        A(f'v_alignbit_b32 v{OA+j}, v{WA+j+1}, v{WA+j}, 16')
        A(f'v_alignbit_b32 v{OB+j}, v{WB+j+1}, v{WB+j}, 16')
    for sft,r in enumerate([WA,OA,WB,OB,WA+2,OA+2,WB+2,OB+2]):
        A(f'ds_write_b128 v{104+sft}, v[{r}:{r+3}] offset:{CV_E}')
    A('v_cmp_eq_u32 vcc, 255, v0')
    A('v_mov_b32 v3, 0')
    A('s_and_saveexec_b64 s[46:47], vcc')
    A(f'ds_write_b128 v3, v[{WA+4}:{WA+7}] offset:{CV_E+257*128+16}')
    A('s_mov_b64 exec, s[46:47]')
    A('s_waitcnt lgkmcnt(0)')
    A('s_and_b32 s22, s23, 1')
    A('s_lshl_b32 s22, s22, 4')
    A('s_lshr_b32 s34, s34, s22')
    A('s_lshl_b32 s34, s34, 16')
    if MG:
        A('s_waitcnt vmcnt(0)')
        for i in range(3): A(f'v_readfirstlane_b32 s{35+i}, v{112+i}')
    A('s_mov_b32 s38, s35')
    A('s_mov_b32 s39, s35')
    A('v_add_f32 v26, 1.0, s36')
    A('v_cvt_pk_bf16_f32 v26, v26, v26')
    A('v_lshlrev_b32 v26, 16, v26')
    A('s_waitcnt vmcnt(0)')
    if os.environ.get('W2PF','0')=='1':
        NFp=int(os.environ.get('KFNF','2'))
        srd(A,52,4,SZ_W,WS['W2F'])
        A(f's_and_b32 s48, s2, {8//NFp-1}')
        A(f's_mul_i32 s48, s48, {663552*NFp}')
        A('s_lshr_b32 s49, s2, 3')
        A(f's_mul_i32 s49, s49, {9216*NFp}')
        A('s_add_u32 s48, s48, s49')
        A('v_lshlrev_b32 v3, 7, v0')
        A(f'v_cmp_gt_u32 vcc, {72*NFp}, v0')
        A('s_and_saveexec_b64 s[46:47], vcc')
        A('buffer_load_dword v16, v3, s[52:55], s48 offen')
        A('s_mov_b64 exec, s[46:47]')
    H=32; X=48; M=56; SD=64
    for e in range(4): unpack(A,X+2*e,X+1+2*e,12+e)
    for e in range(8): unpack(A,M+e,SD+e,40+e)
    for e in range(8): A(f'v_rcp_f32 v{SD+e}, v{SD+e}')
    for e in range(4): A(f'v_pk_add_f32 v[{H+2*e}:{H+1+2*e}], v[{X+2*e}:{X+1+2*e}], v[{M+2*e}:{M+1+2*e}] neg_lo:[0,1] neg_hi:[0,1]')
    def rnd(base,tmp):
        for e in range(4): A(f'v_cvt_pk_bf16_f32 v{tmp+e}, v{base+2*e}, v{base+2*e+1}')
        for e in range(4): unpack(A,base+2*e,base+2*e+1,tmp+e)
    rnd(H,4)
    for e in range(4): A(f'v_pk_mul_f32 v[{H+2*e}:{H+1+2*e}], v[{H+2*e}:{H+1+2*e}], v[{SD+2*e}:{SD+1+2*e}]')
    rnd(H,4)
    for e in range(4): A(f'v_pk_mul_f32 v[{H+2*e}:{H+1+2*e}], v[{H+2*e}:{H+1+2*e}], v[26:27] op_sel_hi:[1,0]')
    rnd(H,4)
    for e in range(4): A(f'v_pk_add_f32 v[{H+2*e}:{H+1+2*e}], v[{H+2*e}:{H+1+2*e}], s[38:39]')
    for e in range(4): A(f'v_cvt_pk_bf16_f32 v{4+e}, v{H+7-2*e}, v{H+6-2*e}')
    A('ds_write_b128 v25, v[4:7]')
    for e in range(4): unpack(A,H+7-2*e,H+6-2*e,4+e)
    for e in range(8): A(f'v_mul_f32 v{H+e}, s34, v{H+e}')
    A('v_and_b32 v27, 63, v0')
    A('v_lshlrev_b32 v27, 4, v27')
    A('v_lshl_add_u32 v27, v22, 13, v27')
    A('v_lshrrev_b32 v28, 5, v0')
    A('v_lshlrev_b32 v28, 10, v28')
    A('v_bfe_u32 v29, v0, 1, 4')
    A('v_lshl_add_u32 v28, v29, 4, v28')
    A('v_and_b32 v29, 1, v0')
    A('v_lshl_add_u32 v28, v29, 9, v28')
    A('s_waitcnt lgkmcnt(0)')
    A('s_barrier')
    if MG: tocheck(A)
    stamp(A,3)
    Y=32; V=64; G=96
    for res in range(2):
        for n in range(8):
            A(f'ds_read_b128 v[{V+4*n}:{V+3+4*n}], v23 offset:{(7-n)*512+res*64}')
            A(f'ds_read_b128 v[{G+4*n}:{G+3+4*n}], v{30+res} offset:{CV_E+n*4096}')
        if res==0:
            for e in range(4): A(f'v_cvt_pk_bf16_f32 v{8+e}, v{H+2*e}, v{H+1+2*e}')
        done=set()
        for lev in range(8):
            A(f's_waitcnt lgkmcnt({2*(7-lev)})')
            if res==1 and lev==7: A('s_barrier')
            for q in range(lev+1):
                for n1 in range(lev+1):
                    if max(q,n1)!=lev or q+n1>7: continue
                    n=q+n1
                    c = f'v[{Y+4*n}:{Y+3+4*n}]' if (res or n in done) else '0'
                    done.add(n)
                    A(f'v_mfma_f32_16x16x32_bf16 v[{Y+4*n}:{Y+3+4*n}], v[{G+4*q}:{G+3+4*q}], v[{V+4*n1}:{V+3+4*n1}], {c}')
    stamp(A,4)
    for n in range(8):
        A(f'ds_write_b128 v27, v[{Y+4*n}:{Y+3+4*n}] offset:{CV_P+n*1024}')
    A('v_lshrrev_b32 v2, 3, v0')
    A('v_mul_u32_u24 v2, 73728, v2')
    A('v_and_b32 v3, 7, v0')
    A('v_lshl_add_u32 v2, v3, 4, v2')
    A('s_lshl_b32 s44, s23, 7')
    A('s_mov_b32 s38, s37')
    A('s_mov_b32 s39, s37')
    A('s_waitcnt lgkmcnt(0)')
    A('s_barrier')
    stamp(A,5)
    S=64; X=40
    for w in range(4):
        A(f'ds_read_b128 v[{S+8*w}:{S+3+8*w}], v28 offset:{CV_P+w*8192}')
        A(f'ds_read_b128 v[{S+4+8*w}:{S+7+8*w}], v28 offset:{CV_P+w*8192+256}')
    for e in range(4): unpack(A,H+2*e,H+1+2*e,8+e)
    for e in range(4): unpack(A,X+2*e,X+1+2*e,12+e)
    A('s_waitcnt lgkmcnt(0)')
    for e in range(0,8,2):
        A(f'v_pk_add_f32 v[{S+e}:{S+1+e}], v[{S+e}:{S+1+e}], v[{S+8+e}:{S+9+e}]')
        A(f'v_pk_add_f32 v[{S+16+e}:{S+17+e}], v[{S+16+e}:{S+17+e}], v[{S+24+e}:{S+25+e}]')
    for e in range(0,8,2):
        A(f'v_pk_add_f32 v[{S+e}:{S+1+e}], v[{S+e}:{S+1+e}], v[{S+16+e}:{S+17+e}]')
    rnd(S,4)
    for e in range(0,8,2): A(f'v_pk_add_f32 v[{S+e}:{S+1+e}], v[{S+e}:{S+1+e}], v[{H+e}:{H+1+e}]')
    rnd(S,4)
    for e in range(0,8,2): A(f'v_pk_mul_f32 v[{S+e}:{S+1+e}], v[{S+e}:{S+1+e}], s[38:39]')
    rnd(S,4)
    for e in range(0,8,2): A(f'v_pk_add_f32 v[{S+e}:{S+1+e}], v[{S+e}:{S+1+e}], v[{X+e}:{X+1+e}]')
    for e in range(4): A(f'v_cvt_pk_bf16_f32 v{4+e}, v{S+2*e}, v{S+1+2*e}')
    A(f'buffer_store_dwordx4 v[4:7], v2, s[40:43], s44 offen {POL["X1"]}')
    stamp(A,6)
    if STAMP: A('s_waitcnt vmcnt(0)')
    stamp(A,7)
    stamp_out(A,10,1)
    A('s_endpgm')

    A('K2_W1:')
    if 'K2_W1' in SKIP: A('s_endpgm')
    A('s_and_b32 s24, s3, 7')
    A('s_mul_i32 s24, s24, 18')
    A('s_lshr_b32 s3, s3, 3')
    A('s_add_u32 s3, s3, s24')
    A('K2_W1B:')
    A(f's_load_dwordx2 s[6:7], s[0:1], {KA["w1"]}')
    A('s_lshl_b32 s23, s3, 6')
    A('v_lshrrev_b32 v2, 2, v0')
    A('v_and_b32 v3, 3, v0')
    A('v_mul_u32_u24 v4, 9216, v2')
    A('v_lshl_add_u32 v4, v3, 4, v4')
    A('v_add_u32 v4, s23, v4')
    A('v_lshlrev_b32 v1, 2, v0')
    A('s_waitcnt lgkmcnt(0)')
    srd(A,8,6,SZ_W)
    for c in range(9):
        A(f's_mov_b32 s22, {c*64*9216}')
        A(f'buffer_load_dwordx4 v[{8+4*c}:{11+4*c}], v4, s[8:11], s22 offen nt')
    srd(A,16,4,3456*4,WS['MOD'])
    def modloads():
        for c in range(3):
            A(f's_mov_b32 s22, {(3*576+256*c)*4}')
            A(f'buffer_load_dword v{100+c}, v1, s[16:19], s22 offen {"sc1" if MG else ""}')
            A(f's_mov_b32 s22, {(4*576+256*c)*4}')
            A(f'buffer_load_dword v{104+c}, v1, s[16:19], s22 offen {"sc1" if MG else ""}')
    if not MG: modloads()
    else:
        A('s_setprio 0')
        A(f'v_mov_b32 v122, {TOW}')
        A('v_mov_b32 v124, 0')
        A('ds_write_b32 v122, v124')
        srd(A,88,100,256)
    srd(A,12,4,SZ_W,WS['W1F'])
    srd(A,36,4,4608*4,WS['CS'])
    srd(A,40,4,4608*4,WS['BIAS'])
    A(f'v_mul_u32_u24 v5, {W1S}, v2')
    A('v_lshl_add_u32 v5, v3, 4, v5')
    A('v_and_b32 v116, 63, v0')
    A('v_bfe_u32 v117, v0, 6, 1')
    A('v_lshrrev_b32 v111, 7, v0')
    A('v_lshrrev_b32 v118, 2, v116')
    A(f'v_mul_u32_u24 v6, {W1S}, v118')
    A('v_and_b32 v118, 3, v116')
    A('v_lshl_add_u32 v6, v118, 3, v6')
    A('v_lshl_add_u32 v6, v117, 5, v6')
    A(f'v_mul_u32_u24 v118, {288*W1S}, v111')
    A('v_add_u32 v6, v6, v118')
    A('v_lshrrev_b32 v119, 4, v116')
    A('v_mul_u32_u24 v118, 1152, v111')
    A('v_lshl_add_u32 v7, v119, 4, v118')
    A('v_lshrrev_b32 v108, 1, v7')
    A('s_lshl_b32 s24, s3, 1')
    A('v_readfirstlane_b32 s26, v117')
    A('v_readfirstlane_b32 s28, v111')
    A('s_add_u32 s26, s26, s24')
    A('s_mul_i32 s27, s26, 171')
    A('s_lshr_b32 s27, s27, 9')
    A('s_mul_i32 s29, s27, 3')
    A('s_sub_u32 s26, s26, s29')
    A('s_lshl_b32 s29, s26, 10')
    A('s_mul_i32 s27, s27, 55296')
    A('s_add_u32 s29, s29, s27')
    A('s_mul_i32 s28, s28, 27648')
    A('s_add_u32 s29, s29, s28')
    A('s_mov_b32 s30, 3072')
    A('v_lshlrev_b32 v109, 4, v116')
    A('v_lshlrev_b32 v110, 1, v0')
    A('v_mov_b32 v112, 0x3f803f80\nv_mov_b32 v113, 0x3f803f80\nv_mov_b32 v114, 0x3f803f80\nv_mov_b32 v115, 0x3f803f80')
    for c in range(9):
        A(f's_waitcnt vmcnt({(8 if MG else 14)-c})')
        A(f'ds_write_b128 v5, v[{8+4*c}:{11+4*c}] offset:{c*64*W1S}')
    if MG:
        A('s_waitcnt lgkmcnt(0)')
        A('s_barrier')
        A('v_readfirstlane_b32 s86, v0')
        A('s_cmp_lg_u32 s86, 0')
        A('s_cbranch_scc1 W1_NP')
        A('buffer_load_dwordx2 v[122:123], v124, s[88:91], 0 offen sc1')
        A('W1_NP:')
        poll(A,'W1',False)
        A('s_waitcnt lgkmcnt(0)')
        A('s_barrier')
        modloads()
    A('s_waitcnt vmcnt(0)')
    for c in range(3):
        A(f'v_add_f32 v{104+c}, 1.0, v{104+c}')
        A(f'v_cvt_pk_bf16_f32 v{104+c}, v{104+c}, v{104+c}')
        A(f'v_lshlrev_b32 v{104+c}, 16, v{104+c}')
        if c==2:
            A('v_cmp_gt_u32 vcc, 64, v0')
            A('s_and_saveexec_b64 s[46:47], vcc')
        A(f'ds_write_b32 v1, v{104+c} offset:{W1_TAB+1024*c}')
        A(f'ds_write_b16_d16_hi v110, v{100+c} offset:{W1_TAB+2304+512*c}')
    A('s_mov_b64 exec, s[46:47]')
    A('s_waitcnt lgkmcnt(0)')
    A('s_barrier')
    if MG: tocheck(A)
    def rd(kk,F):
        A(f'ds_read_b64_tr_b16 v[{F}:{F+1}], v6 offset:{kk*32*W1S}')
        A(f'ds_read_b64_tr_b16 v[{F+2}:{F+3}], v6 offset:{kk*32*W1S+16*W1S}')
        A(f'ds_read_b128 v[{F+4}:{F+7}], v7 offset:{W1_TAB+kk*128}')
        A(f'ds_read_b128 v[{F+8}:{F+11}], v7 offset:{W1_TAB+kk*128+64}')
        A(f'ds_read_b64 v[{F+12}:{F+13}], v108 offset:{W1_TAB+2304+kk*64}')
        A(f'ds_read_b64 v[{F+14}:{F+15}], v108 offset:{W1_TAB+2304+kk*64+32}')
    rd(0,48)
    for kk in range(9):
        F=48+16*(kk&1)
        if kk<8:
            rd(kk+1,48+16*((kk+1)&1))
            A('s_waitcnt lgkmcnt(6)')
        else: A('s_waitcnt lgkmcnt(0)')
        A(f'v_mfma_f32_16x16x32_bf16 v[124:127], v[{F}:{F+3}], v[{F+12}:{F+15}], {"v[124:127]" if kk else "0"}')
        O=8+4*kk
        for e in range(4): unpack(A,80+2*e,81+2*e,F+e)
        for e in range(4): A(f'v_pk_mul_f32 v[{80+2*e}:{81+2*e}], v[{80+2*e}:{81+2*e}], v[{F+4+2*e}:{F+5+2*e}]')
        for e in range(4): A(f'v_cvt_pk_bf16_f32 v{O+e}, v{80+2*e}, v{81+2*e}')
        A(f'v_mfma_f32_16x16x32_bf16 v[120:123], v[{O}:{O+3}], v[112:115], {"v[120:123]" if kk else "0"}')
        A(f'buffer_store_dwordx4 v[{O}:{O+3}], v109, s[12:15], s29 offen {POL["W1F"]}')
        A('s_add_u32 s29, s29, s30')
    A('s_barrier')
    A('v_and_b32 v1, 127, v0')
    A('v_lshlrev_b32 v1, 5, v1')
    A('v_readfirstlane_b32 s45, v111')
    A('s_cmp_eq_u32 s45, 0')
    A('s_cbranch_scc1 K2_W1_A')
    A('ds_write_b128 v1, v[120:123]')
    A('ds_write_b128 v1, v[124:127] offset:16')
    A('s_waitcnt lgkmcnt(0)')
    A('s_barrier')
    A('s_endpgm')
    A('K2_W1_A:')
    A('s_barrier')
    A('ds_read_b128 v[48:51], v1')
    A('ds_read_b128 v[52:55], v1 offset:16')
    A('v_and_b32 v2, 15, v0')
    A('v_cmp_eq_u32 vcc, 0, v2')
    A('s_lshl_b32 s24, s3, 7')
    A('s_waitcnt lgkmcnt(0)')
    for e in range(0,8,2): A(f'v_pk_add_f32 v[{120+e}:{121+e}], v[{120+e}:{121+e}], v[{48+e}:{49+e}]')
    for e in range(4): A(f'v_mul_f32 v{124+e}, 0xbfb8aa3b, v{124+e}')
    A('s_and_saveexec_b64 s[46:47], vcc')
    A('buffer_store_dwordx4 v[120:123], v0, s[36:39], s24 offen')
    A('buffer_store_dwordx4 v[124:127], v0, s[40:43], s24 offen')
    A('s_endpgm')
    if not W2K1: gen_w2(A,1)
    return A.text(), kd('k2_kernel',128)

NOSTAT=bool(os.environ.get('NOSTAT'))
def interleave(A, mf, fill, per=None):
    n=len(mf); m=len(fill); k=0
    for i,x in enumerate(mf):
        A(x)
        tgt=(i+1)*m//n
        while k<tgt:
            A(fill[k]); k+=1
    while k<m:
        A(fill[k]); k+=1

K3_GRID=256
K3_A0=81920; K3_A1=49152; K3_CSL=155648; K3_LDS=156800
class VM:
    def __init__(s): s.q=[]
    def add(s,tag,n=1): s.q+= [tag]*n
    def after(s,tag):
        idx=max(i for i,t in enumerate(s.q) if t==tag)
        return min(63,len(s.q)-1-idx)

def wave_sum(A,r,t):
    A(f'v_add_f32_dpp v{r}, v{r}, v{r} quad_perm:[1,0,3,2] row_mask:0xf bank_mask:0xf')
    A(f'v_add_f32_dpp v{r}, v{r}, v{r} quad_perm:[2,3,0,1] row_mask:0xf bank_mask:0xf')
    A(f'v_add_f32_dpp v{r}, v{r}, v{r} row_half_mirror row_mask:0xf bank_mask:0xf')
    A(f'v_add_f32_dpp v{r}, v{r}, v{r} row_mirror row_mask:0xf bank_mask:0xf')
    A(f'v_mov_b32 v{t}, v{r}')
    A(f'v_permlane16_swap_b32 v{r}, v{t}')
    A(f'v_add_f32 v{r}, v{r}, v{t}')
    A(f'v_mov_b32 v{t}, v{r}')
    A(f'v_permlane32_swap_b32 v{r}, v{t}')
    A(f'v_add_f32 v{r}, v{r}, v{t}')

def row_stat(A,X,r):
    for c in range(9): A(f'v_lshlrev_b32 v{X+c}, 16, v{X+c}')
    A(f'v_add_f32 v{r}, v{X}, v{X+1}')
    for c in range(2,9): A(f'v_add_f32 v{r}, v{r}, v{X+c}')
    wave_sum(A,r,r+1)
    A(f'v_mul_f32 v{r}, 0x3ae38e39, v{r}')
    for c in range(9): A(f'v_sub_f32 v{X+c}, v{X+c}, v{r}')
    A(f'v_mul_f32 v{r+2}, v{X}, v{X}')
    for c in range(1,9): A(f'v_fmac_f32 v{r+2}, v{X+c}, v{X+c}')
    wave_sum(A,r+2,r+1)
    q=r+2
    A(f'v_mul_f32 v{q}, 0x3ae38e39, v{q}')
    A(f'v_cvt_pk_bf16_f32 v{q}, v{q}, v{q}')
    A(f'v_lshlrev_b32 v{q}, 16, v{q}')
    A(f'v_add_f32 v{q}, 0x3727c5ac, v{q}')
    A(f'v_cvt_pk_bf16_f32 v{q}, v{q}, v{q}')
    A(f'v_lshlrev_b32 v{q}, 16, v{q}')
    A(f'v_sqrt_f32 v{q}, v{q}')
    A(f'v_cvt_pk_bf16_f32 v{r}, v{r}, v{q}')

KF_XB=0; KF_HB=73728; KF_ST=147456; KF_CS=147968; KF_DUM=152576; KF_LDS=152576+8192
SZ_P=8*2048*576*2
KF_LDS=KF_CS+4608+1536+128
KF_FL=KF_CS+4608+1536
KF_SP=KF_CS+4608
def gen_kf():
    A=Asm(); vm=VM()
    P=int(os.environ.get('KFP','5'))
    A('k3_kernel:')
    A('s_cmp_ge_u32 s2, 256')
    A('s_cbranch_scc1 KF_END')
    stamp(A,0)
    A(f's_load_dwordx2 s[4:5], s[0:1], {KA["ws"]}')
    NF=int(os.environ.get('KFNF','2'))
    lg={1:0,2:1,4:2,8:3}[NF]
    A('s_and_b32 s23, s2, 7')
    A('s_lshr_b32 s24, s2, 3')
    A(f's_and_b32 s20, s23, {8//NF-1}')
    A(f's_lshl_b32 s20, s20, {lg}')
    A(f's_and_b32 s25, s24, {NF-1}')
    A('s_add_u32 s20, s20, s25')
    A(f's_lshr_b32 s21, s23, {3-lg}')
    A(f's_lshl_b32 s21, s21, {5-lg}')
    A(f's_lshr_b32 s25, s24, {lg}')
    A('s_add_u32 s21, s21, s25')
    BFR=24; ACC=56; RING=104
    t0,t1,t2,t3,G,I=56,57,58,59,60,61
    A('v_and_b32 v1, 63, v0')
    A('v_lshrrev_b32 v2, 6, v0')
    A('v_readfirstlane_b32 s22, v2')
    ROT=int(os.environ.get('KFROT','0'))
    if ROT:
        A(f's_mul_i32 s23, s21, {ROT}')
        A('s_add_u32 s22, s22, s23')
        A('s_mul_i32 s23, s22, 171')
        A('s_lshr_b32 s23, s23, 11')
        A('s_mul_i32 s23, s23, 12')
        A('s_sub_u32 s22, s22, s23')
        A('v_mov_b32 v2, s22')
    A('v_lshlrev_b32 v3, 4, v1')
    A(f'v_lshrrev_b32 v{G}, 4, v1')
    A(f'v_and_b32 v{I}, 15, v1')
    A('v_lshrrev_b32 v8, 3, v1')
    A('v_lshlrev_b32 v8, 7, v8')
    A(f'v_and_b32 v{t0}, 7, v1')
    A(f'v_lshlrev_b32 v{t1}, 1, v{G}')
    A(f'v_xor_b32 v{t0}, v{t0}, v{t1}')
    A(f'v_lshl_add_u32 v8, v{t0}, 4, v8')
    A('s_mul_i32 s23, s21, 73728')
    A('s_mul_i32 s33, s22, 6144')
    A('s_add_u32 s23, s23, s33')
    A('s_mul_i32 s24, s20, 12')
    A('s_add_u32 s24, s24, s22')
    A('s_mul_i32 s25, s24, 55296')
    A(f's_add_u32 s26, s25, {WS["W2F"]-WS["W1F"]}')
    A('v_lshlrev_b32 v23, 4, v0')
    A('s_waitcnt lgkmcnt(0)')
    srd(A,12,4,SZ_XT,WS['X1T'])
    A('s_mov_b32 m0, s33')
    for i in range(6):
        if i==4:
            A('s_add_u32 m0, s33, 4096')
            A('s_add_u32 s23, s23, 4096')
        A(f'buffer_load_dwordx4 v8, s[12:15], s23 offen offset:{(i&3)*1024} lds'); vm.add('x')
    srd(A,44,4,0x10000+4608*4,WS['CS'])
    A('v_cmp_le_u32 vcc, 144, v0')
    A(f'v_mov_b32 v{t0}, {0x10000-2304}')
    A(f'v_cndmask_b32 v{t0}, 0, v{t0}, vcc')
    A(f'v_add_u32 v{t0}, v{t0}, v23')
    A('s_mul_i32 s30, s20, 2304')
    A(f'buffer_load_dwordx4 v[64:67], v{t0}, s[44:47], s30 offen'); vm.add('x')
    srd(A,8,4,WS['W2F']-WS['W1F']+SZ_W,WS['W1F'])
    if os.environ.get('KFBAR','1')=='1': A('s_barrier')
    def wload(n):
        r=RING+12*(n%P); sreg=25 if n<18 else 26; vm.add(f'w{n}',3)
        return [f'buffer_load_dwordx4 v[{r+4*j}:{r+4*j+3}], v3, s[8:11], s{sreg} offen offset:{j*1024}' for j in range(3)]+[f's_add_u32 s{sreg}, s{sreg}, 3072']
    P0=int(os.environ.get('KFP0','1'))
    for n in range(P0):
        for x in wload(n): A(x)
    A(f'v_lshrrev_b32 v{t0}, 1, v{G}')
    A(f'v_lshlrev_b32 v{t0}, 10, v{t0}')
    A(f'v_and_b32 v{t1}, 1, v{G}')
    A(f'v_lshrrev_b32 v{t2}, 2, v{I}')
    A(f'v_lshl_add_u32 v{t2}, v{t1}, 2, v{t2}')
    A(f'v_lshl_add_u32 v{t0}, v{t2}, 7, v{t0}')
    A(f'v_and_b32 v{t3}, 3, v{I}')
    A(f'v_lshl_add_u32 v{t0}, v{t3}, 3, v{t0}')
    A(f'v_lshrrev_b32 v{t2}, 1, v{t2}')
    A(f'v_lshlrev_b32 v{t2}, 5, v{t2}')
    for tt in range(4):
        A(f'v_xor_b32 v{10+tt}, {32*tt}, v{t2}')
        A(f'v_add_u32 v{10+tt}, v{t0}, v{10+tt}')
    A('s_and_b32 s30, s22, 3')
    A('s_lshl_b32 s31, s30, 5')
    A(f'v_xor_b32 v18, s31, v{t2}')
    A(f'v_add_u32 v18, v{t0}, v18')
    A('s_lshr_b32 s31, s22, 2')
    A('s_mul_i32 s34, s31, 24576')
    A('v_add_u32 v18, s34, v18')
    A(f'v_lshlrev_b32 v6, 3, v{I}')
    A(f'v_add_u32 v6, {KF_SP}, v6')
    A('s_lshl_b32 s31, s31, 9')
    A('s_lshl_b32 s30, s30, 7')
    A('s_add_u32 s30, s30, s31')
    A('v_add_u32 v7, s30, v6')
    A(f'v_add_u32 v4, {KF_HB}, v3')
    for j in range(3):
        A('s_mul_i32 s30, s22, 3')
        A(f's_add_u32 s30, s30, {j}')
        A('s_lshr_b32 s31, s30, 1')
        A('s_lshl_b32 s31, s31, 12')
        A('s_and_b32 s30, s30, 1')
        A('s_lshl_b32 s30, s30, 3')
        A('s_add_u32 s30, s30, s31')
        A(f'v_add_u32 v{19+j}, s30, v4')
    A('s_mul_i32 s30, s22, 192')
    A(f's_add_u32 s30, s30, {KF_CS}')
    A(f'v_lshl_add_u32 v22, v{G}, 4, s30')
    A(f'v_add_u32 v23, {KF_CS}, v23')
    A('v_and_b32 v9, 3, v1')
    A('v_cmp_eq_u32 s[50:51], 1, v9')
    A('v_cmp_eq_u32 s[52:53], 2, v9')
    A('v_cmp_eq_u32 s[54:55], 3, v9')
    A(f'v_lshrrev_b32 v9, 2, v{I}')
    A(f'v_cmp_eq_u32 s[56:57], v9, v{G}')
    ONE=68; SS=72; SQ=76; SB=80
    for r in range(4): A(f'v_mov_b32 v{ONE+r}, 0x3f803f80')
    srd(A,16,4,SZ_P,WS['HF'])
    A('s_lshl_b32 s34, s20, 5')
    A('s_add_u32 s34, s34, s21')
    A('s_mul_i32 s34, s34, 73728')
    A('s_add_u32 s34, s34, s33')
    A('s_add_u32 s35, s34, 4096')
    stamp(A,1)
    A(f's_waitcnt vmcnt({vm.after("x")})')
    A('v_cmp_gt_u32 vcc, 288, v0')
    A('s_and_saveexec_b64 s[58:59], vcc')
    A('ds_write_b128 v23, v[64:67]')
    A('s_mov_b64 exec, s[58:59]')
    A('s_lshl_b32 s30, s22, 2')
    A(f's_add_u32 s30, s30, {KF_FL}')
    A('v_mov_b32 v5, s30')
    A('v_mov_b32 v9, 0')
    A('ds_write_b32 v5, v9')
    A('ds_write_b32 v5, v9 offset:64')
    A('s_waitcnt lgkmcnt(0)')
    A('s_barrier')
    stamp(A,2)
    for k in range(6):
        A(f'ds_read_b64_tr_b16 v[{SB+4*k}:{SB+4*k+1}], v18 offset:{k*4096}')
        A(f'ds_read_b64_tr_b16 v[{SB+4*k+2}:{SB+4*k+3}], v18 offset:{k*4096+2048}')
    def rdX(k):
        L=[]
        for tt in range(4):
            b=BFR+16*(k&1)+4*tt; o=(k%9)*4096
            L.append(f'ds_read_b64_tr_b16 v[{b}:{b+1}], v{10+tt} offset:{o}')
            L.append(f'ds_read_b64_tr_b16 v[{b+2}:{b+3}], v{10+tt} offset:{o+2048}')
        return L
    def rdH(k):
        return [f'ds_read_b128 v[{BFR+16*(k&1)+4*tt}:{BFR+16*(k&1)+4*tt+3}], v4 offset:{(k%9)*4096+tt*1024}' for tt in range(4)]
    for k in range(6):
        A(f's_waitcnt lgkmcnt({2*(5-k)})')
        A(f'v_mfma_f32_16x16x32_bf16 v[{SS}:{SS+3}], v[{ONE}:{ONE+3}], v[{SB+4*k}:{SB+4*k+3}], {"0" if k==0 else f"v[{SS}:{SS+3}]"}')
        A(f'v_mfma_f32_16x16x32_bf16 v[{SQ}:{SQ+3}], v[{SB+4*k}:{SB+4*k+3}], v[{SB+4*k}:{SB+4*k+3}], {"0" if k==0 else f"v[{SQ}:{SQ+3}]"}')
    for x in rdX(0): A(x)
    A(f'v_cndmask_b32 v{SQ}, v{SQ}, v{SQ+1}, s[50:51]')
    A(f'v_cndmask_b32 v{SQ}, v{SQ}, v{SQ+2}, s[52:53]')
    A(f'v_cndmask_b32 v{SS+1}, v{SQ}, v{SQ+3}, s[54:55]')
    A('s_mov_b64 exec, s[56:57]')
    A(f'ds_write_b64 v7, v[{SS}:{SS+1}]')
    A('s_mov_b64 exec, -1')
    A('v_mov_b32 v9, 1')
    A('s_waitcnt lgkmcnt(0)')
    A('ds_write_b32 v5, v9 offset:64')
    for n in range(P0,P):
        for x in wload(n): A(x)
    stamp(A,3)
    if os.environ.get('KFPRIO','0') in ('2','3'): A('s_setprio 2')
    def mm(n):
        k=n%18; L=[]
        for j in range(3):
            for tt in range(4):
                d=ACC+16*j+4*tt; a=RING+12*(n%P)+4*j; b=BFR+16*(k&1)+4*tt
                L.append(f'v_mfma_f32_16x16x32_bf16 v[{d}:{d+3}], v[{a}:{a+3}], v[{b}:{b+3}], {f"v[{d}:{d+3}]" if k else "0"}')
        return L
    def steps(n0,rd,adv,wf=None):
        for k in range(18):
            n=n0+k
            A(f's_waitcnt vmcnt({vm.after(f"w{n}")}) lgkmcnt(0)')
            if k==8:
                for x in adv: A(x)
            if wf and k<17 and (k+1)%3==0: wf((k+1)//3)
            R=rd(k+1) if k<17 else []
            M=mm(n)
            W=wload(n+P) if n+P<36 else None
            idx=0
            for j in range(3):
                for t,x in enumerate(M[4*j:4*j+4]):
                    A(x)
                    for _ in range(2):
                        if idx<len(R): A(R[idx]); idx+=1
                if W: A(W[j])
            if W: A(W[3])
    steps(0,rdX,[f'v_add_u32 v{10+tt}, 0x9000, v{10+tt}' for tt in range(4)])
    stamp(A,4)
    if os.environ.get('KFPRIO','0')=='1': A('s_setprio 3')
    if os.environ.get('KFPRIO','0')=='2': A('s_setprio 0')
    A(f'v_mov_b32 v18, {KF_FL+64}')
    A('KF_SW:')
    A(f'ds_read_b128 v[{BFR}:{BFR+3}], v18')
    A(f'ds_read_b128 v[{BFR+4}:{BFR+7}], v18 offset:16')
    A(f'ds_read_b128 v[{BFR+8}:{BFR+11}], v18 offset:32')
    A('s_waitcnt lgkmcnt(0)')
    for r in range(1,12): A(f'v_and_b32 v{BFR}, v{BFR}, v{BFR+r}')
    A(f'v_readfirstlane_b32 s30, v{BFR}')
    A('s_cmp_eq_u32 s30, 1')
    A('s_cbranch_scc0 KF_SW')
    SPR=BFR
    for p in range(3):
        for tt in range(4): A(f'ds_read_b64 v[{SPR+8*p+2*tt}:{SPR+8*p+2*tt+1}], v6 offset:{p*512+tt*128}')
    A('s_waitcnt lgkmcnt(0)')
    NR=10
    for tt in range(4):
        a0=SPR+2*tt
        A(f'v_pk_add_f32 v[{a0}:{a0+1}], v[{a0}:{a0+1}], v[{a0+8}:{a0+9}]')
        A(f'v_pk_add_f32 v[{a0}:{a0+1}], v[{a0}:{a0+1}], v[{a0+16}:{a0+17}]')
        m=NR+2*tt; q=m+1
        for x in [f'v_mul_f32 v{m}, 0x3ae38e39, v{a0}', f'v_mul_f32 v{q}, 0x3ae38e39, v{a0+1}', f'v_fma_f32 v{q}, -v{m}, v{m}, v{q}', f'v_max_f32 v{q}, 0, v{q}',
              f'v_cvt_pk_bf16_f32 v{m}, v{m}, v{q}', f'v_and_b32 v{q}, 0xffff0000, v{m}', f'v_lshlrev_b32 v{m}, 16, v{m}',
              f'v_sub_f32 v{m}, 0, v{m}', f'v_add_f32 v{q}, 0x3727c5ac, v{q}', f'v_cvt_pk_bf16_f32 v{q}, v{q}, v{q}',
              f'v_lshlrev_b32 v{q}, 16, v{q}', f'v_sqrt_f32 v{q}, v{q}', f'v_cvt_pk_bf16_f32 v{q}, v{q}, v{q}',
              f'v_lshlrev_b32 v{q}, 16, v{q}', f'v_rcp_f32 v{q}, v{q}', f'v_mul_f32 v{q}, 0xbfb8aa3b, v{q}']: A(x)
    CB=BFR; T=BFR+24
    for j in range(3):
        A(f'ds_read_b128 v[{CB+8*j}:{CB+8*j+3}], v22 offset:{j*64}')
        A(f'ds_read_b128 v[{CB+8*j+4}:{CB+8*j+7}], v22 offset:{j*64+2304}')
    A('s_waitcnt lgkmcnt(0)')
    for j in range(3):
        c=CB+8*j
        for hh in range(2):
            d0=ACC+16*j+8*hh
            for t in range(2):
                for r in range(4): A(f'v_fmac_f32 v{d0+4*t+r}, v{c+r}, v{NR+2*(2*hh+t)}')
            for t in range(2):
                for r in range(4): A(f'v_fma_f32 v{d0+4*t+r}, v{d0+4*t+r}, v{NR+1+2*(2*hh+t)}, v{c+4+r}')
            for r in range(8): A(f'v_exp_f32 v{T+r}, v{d0+r}')
            for r in range(8): A(f'v_add_f32 v{T+r}, 1.0, v{T+r}')
            for r in range(8): A(f'v_rcp_f32 v{T+r}, v{T+r}')
            for r in range(8): A(f'v_mul_f32 v{d0+r}, v{d0+r}, v{T+r}')
            for t in range(2):
                d=d0+4*t
                A(f'v_cvt_pk_bf16_f32 v{d}, v{d}, v{d+1}')
                A(f'v_cvt_pk_bf16_f32 v{d+1}, v{d+2}, v{d+3}')
            for t in range(2):
                A(f'ds_write_b64 v{19+j}, v[{d0+4*t}:{d0+4*t+1}] offset:{(2*hh+t)*1024}')
    A('s_waitcnt lgkmcnt(0)')
    A('v_mov_b32 v9, 1')
    A('ds_write_b32 v5, v9')
    if os.environ.get('KFPRIO','0')=='3': A('s_setprio 0')
    A(f'v_mov_b32 v5, {KF_FL}')
    stamp(A,5)
    def waitflags(g):
        A(f'KF_W{g}:')
        A(f'ds_read_b64 v[18:19], v5 offset:{g*8}')
        A('s_waitcnt lgkmcnt(0)')
        A('v_and_b32 v18, v18, v19')
        A('v_readfirstlane_b32 s30, v18')
        A('s_cmp_eq_u32 s30, 1')
        A(f's_cbranch_scc1 KF_G{g}')
        if os.environ.get('KFSL','0')=='1': A('s_sleep 2')
        A(f's_branch KF_W{g}')
        A(f'KF_G{g}:')
    FL=os.environ.get('KFFL','1')=='1'
    if FL: waitflags(0)
    else: A('s_barrier')
    stamp(A,6)
    for x in rdH(0): A(x)
    steps(18,rdH,['v_add_u32 v4, 0x9000, v4'],waitflags if FL else None)
    for j in range(3):
        for tp in range(2):
            d=ACC+16*j+8*tp
            for e in range(4): A(f'v_cvt_pk_bf16_f32 v{d+e}, v{d+2*e}, v{d+2*e+1}')
            o=j*2048+tp*1024
            A(f'buffer_store_dwordx4 v[{d}:{d+3}], v3, s[16:19], s{34 if o<4096 else 35} offen offset:{o&4095} {POL["H"]}')
    stamp(A,7)
    if STAMP: A('s_waitcnt vmcnt(0)')
    stamp(A,8)
    if STAMP:
        A('s_and_b32 s30, s22, 3')
        A('s_cmp_lg_u32 s30, 0')
        A('s_cbranch_scc1 KF_END')
        A('s_lshr_b32 s30, s22, 2')
        A('s_lshl_b32 s30, s30, 6')
        A('v_mov_b32 v0, s30')
    stamp_out(A,9,2)
    A('KF_END:')
    A('s_endpgm')
    return A.text(), kd('k3_kernel',RING+12*P)

def gen_k5():
    A=Asm()
    A('k4_kernel:')
    A('s_cmp_ge_u32 s2, 576')
    A('s_cbranch_scc1 K5_END')
    stamp(A,0)
    A(f's_load_dwordx2 s[4:5], s[0:1], {KA["ws"]}')
    A(f's_load_dwordx2 s[6:7], s[0:1], {KA["out"]}')
    A('v_and_b32 v1, 63, v0')
    A('v_lshrrev_b32 v2, 6, v0')
    A('v_readfirstlane_b32 s22, v2')
    A('v_lshlrev_b32 v3, 4, v1')
    A('s_and_b32 s20, s2, 7')
    A('s_mul_i32 s20, s20, 72')
    A('s_lshr_b32 s21, s2, 3')
    A('s_add_u32 s20, s20, s21')
    A('s_lshl_b32 s20, s20, 2')
    A('s_add_u32 s20, s20, s22')
    A('s_and_b32 s21, s20, 1')
    A('s_lshr_b32 s23, s20, 1')
    A('s_mul_i32 s24, s23, 1821')
    A('s_lshr_b32 s24, s24, 16')
    A('s_mul_i32 s25, s24, 36')
    A('s_sub_u32 s25, s23, s25')
    A('s_lshl_b32 s26, s20, 10')
    A('v_and_b32 v4, 15, v1')
    A('v_lshrrev_b32 v5, 4, v1')
    A('v_lshlrev_b32 v6, 9, v5')
    A('v_lshl_add_u32 v6, v4, 1, v6')
    A('s_mul_i32 s27, s24, 73728')
    A('s_lshl_b32 s28, s25, 11')
    A('s_add_u32 s27, s27, s28')
    A('s_lshl_b32 s28, s21, 6')
    A('s_add_u32 s27, s27, s28')
    A('v_lshlrev_b32 v7, 4, v5')
    A('s_lshl_b32 s29, s25, 6')
    A('s_add_u32 s29, s29, 11520')
    A('s_waitcnt lgkmcnt(0)')
    srd(A,8,4,SZ_P,WS['HF'])
    for f in range(8):
        A(f's_add_u32 s30, s26, {f*2359296}')
        A(f'buffer_load_dwordx4 v[{16+4*f}:{19+4*f}], v3, s[8:11], s30 offen')
    srd(A,16,4,SZ_XT,WS['X1T'])
    for t in range(2):
        for r in range(4):
            A(f'buffer_load_ushort v{8+4*t+r}, v6, s[16:19], s27 offen offset:{r*128+t*32}')
    srd(A,52,4,3456*4,WS['MOD'])
    A('buffer_load_dwordx4 v[48:51], v7, s[52:55], s29 offen')
    srd(A,56,6,SZ_XT)
    A('s_lshl_b32 s27, s24, 6')
    A('s_lshl_b32 s28, s21, 5')
    A('s_add_u32 s27, s27, s28')
    A('v_add_u32 v52, s27, v4')
    A('v_mul_u32_u24 v52, 1152, v52')
    A('v_lshl_add_u32 v52, v5, 3, v52')
    A('s_lshl_b32 s28, s25, 5')
    A('s_add_u32 s31, s28, 18432')
    S=56
    for f in range(8):
        A(f's_waitcnt vmcnt({16-f})')
        for e in range(4):
            if f==0: unpack(A,S+2*e,S+2*e+1,16+e)
            else:
                unpack(A,64+2*e,65+2*e,16+4*f+e)
                A(f'v_pk_add_f32 v[{S+2*e}:{S+2*e+1}], v[{S+2*e}:{S+2*e+1}], v[{64+2*e}:{65+2*e}]')
    for r in range(8): A(f'v_mul_f32 v{S+r}, 0xbf317218, v{S+r}')
    for e in range(4): A(f'v_cvt_pk_bf16_f32 v{16+e}, v{S+2*e}, v{S+2*e+1}')
    for e in range(4): unpack(A,S+2*e,S+2*e+1,16+e)
    A('s_waitcnt vmcnt(0)')
    for e in range(4): A(f'v_pk_mul_f32 v[{S+2*e}:{S+2*e+1}], v[{S+2*e}:{S+2*e+1}], v[{48+2*(e&1)}:{49+2*(e&1)}]')
    for e in range(4): A(f'v_cvt_pk_bf16_f32 v{16+e}, v{S+2*e}, v{S+2*e+1}')
    for e in range(4): unpack(A,S+2*e,S+2*e+1,16+e)
    for r in range(8): A(f'v_lshlrev_b32 v{8+r}, 16, v{8+r}')
    for e in range(4): A(f'v_pk_add_f32 v[{S+2*e}:{S+2*e+1}], v[{S+2*e}:{S+2*e+1}], v[{8+2*e}:{9+2*e}]')
    for e in range(4): A(f'v_cvt_pk_bf16_f32 v{16+e}, v{S+2*e}, v{S+2*e+1}')
    A('buffer_store_dwordx2 v[16:17], v52, s[56:59], s28 offen')
    A('buffer_store_dwordx2 v[18:19], v52, s[56:59], s31 offen')
    stamp(A,1)
    if STAMP: A('s_waitcnt vmcnt(0)')
    stamp(A,2)
    stamp_out(A,3,3)
    A('K5_END:')
    A('s_endpgm')
    return A.text(), kd('k4_kernel',72)

def assemble(kernels, fn):
    hdr=open('cdna_kernels/'+NAME+'.s.ref').read().split('\n')
    out=[l for l in hdr if l.startswith(';') and '@launch' not in l and 'Override launch' not in l and 'grid=ceil' not in l]
    for k in kernels:
        out.append(f'; @launch kernel={k[0]} grid=({k[1]},1,1) block=({k[2]},1,1) lds={k[3]}')
    out.append('.amdgcn_target "amdgcn-amd-amdhsa--gfx950"')
    out.append('.text')
    seen=set()
    for k in kernels:
        if k[0] in seen: continue
        seen.add(k[0])
        out.append(f'.globl {k[0]}\n.p2align 8\n.type {k[0]},@function')
        out.append(k[4])
    out.append('CODE_END:')
    seen=set()
    for k in kernels:
        if k[0] in seen: continue
        seen.add(k[0])
        out.append(k[5])
    open(fn,'w').write('\n'.join(out))

if __name__=='__main__':
    t1,d1=gen_k1(); t3,d3=gen_kf(); t4,d4=gen_k5()
    if MG:
        ks=[('k1_kernel',K1_GRID+(0 if CHAIN else 144),256,40960,t1,d1)]
    else:
        t2,d2=gen_k2()
        ks=[('k1_kernel',K1_GRID,256,K1_LDS,t1,d1),('k2_kernel',K2_GRID,256,K2_LDS,t2,d2)]
    ks+=[('k3_kernel',256,768,KF_LDS,t3,d3),('k4_kernel',576,256,0,t4,d4)]
    nk=int(os.environ.get('NK','4'))
    assemble(ks[:nk], sys.argv[1] if len(sys.argv)>1 else 'k.s')
```

```python
import sys,os
from asmlib import Asm

NAME='adaLN_cond__ssm_conv_s4d__dense_activation_silu__prompt'
KA=dict(x=0,lar=8,aim=16,cr=24,ci=32,logdt=40,dskip=48,w1=64,w2=72,c=80,wmod=88,out=96,dbg=104,ws=112)
WS=dict(MOD=0x0, CS=0x10000, BIAS=0x20000, STAT=0x30000, STAT2=0x38000, CNT=0x38000, X1S=0x400000, XT=0x100000, XNT=0x400000, KF=0x700000, X1T=0xC00000,
        W1F=0x1000000, W2F=0x1800000, HF=0x2000000)
SZ_XT=576*2048*2
KFC=4160
SZ_KF=576*KFC
SZ_W=576*4608*2
SZ_H=2048*4608*2
LOG2E=0x3fb8aa3b
INV2PI=0x3e22f983

def srd(A, d, base, size, off=0):
    if off:
        A(f's_add_u32 s{d}, s{base}, {off:#x}')
        A(f's_addc_u32 s{d+1}, s{base+1}, 0')
    else:
        A(f's_mov_b32 s{d}, s{base}')
        A(f's_mov_b32 s{d+1}, s{base+1}')
    A(f's_mov_b32 s{d+2}, {size:#x}')
    A(f's_mov_b32 s{d+3}, 0x00020000')

def kd(name, vgpr, sgpr=102, agpr=0):
    acc=(vgpr+3)//4*4
    return f'''.section .rodata,"a"
.p2align 6
.amdhsa_kernel {name}
  .amdhsa_next_free_vgpr {acc+agpr if agpr else vgpr}
  .amdhsa_next_free_sgpr {sgpr}
  .amdhsa_accum_offset {acc}
  .amdhsa_group_segment_fixed_size 0
  .amdhsa_kernarg_size 120
  .amdhsa_user_sgpr_count 2
  .amdhsa_user_sgpr_kernarg_segment_ptr 1
  .amdhsa_system_sgpr_workgroup_id_x 1
.end_amdhsa_kernel
'''

STAMP=bool(os.environ.get('STAMP'))
POL=dict(XT='',KF='',W2F='sc1',X1='',W1F='sc1',H='sc1')
for kv in os.environ.get('POL','').split(','):
    if '=' in kv:
        k,v=kv.split('='); POL[k]=v.replace('+',' ')
def stamp(A,i):
    if STAMP:
        A(f's_mem{"real" if os.environ.get("STAMP")=="2" else ""}time s[{60+2*i}:{61+2*i}]')
def stamp_out(A,n,slot):
    if not STAMP: return
    A('s_waitcnt lgkmcnt(0)')
    srd(A,92,4,1<<22,0x8000000+slot*(1<<22))
    A('v_readfirstlane_b32 s96, v0')
    A('s_lshr_b32 s96, s96, 6')
    A('s_lshl_b32 s97, s2, 2')
    A('s_add_u32 s96, s96, s97')
    A('s_lshl_b32 s96, s96, 6')
    A('v_mov_b32 v1, 0')
    for i in range(n):
        A(f'v_mov_b32 v2, s{60+2*i}')
        A(f'buffer_store_dword v2, v1, s[92:95], s96 offen offset:{4*i}')

def unpack(A, dlo, dhi, src):
    A(f'v_lshlrev_b32 v{dlo}, 16, v{src}')
    A(f'v_and_b32 v{dhi}, 0xffff0000, v{src}')

K1_LN=64; K1_MOD=54; K1_W2=144; K1_KG=576
K1_PAD=2
K1_GRID=K1_LN+K1_MOD+K1_KG+((K1_W2+K1_PAD) if os.environ.get('W2K1','1')=='1' else 0)
RS=1184
K1_LDS=32*RS

import os
SKIP=os.environ.get('SKIP','').split(',')
W2K1=os.environ.get('W2K1','1')=='1'
def gen_w2(A,slot):
    A('K1_W2:')
    if 'K1_W2' in SKIP: A('s_endpgm')
    A('s_and_b32 s24, s3, 7')
    A('s_mul_i32 s24, s24, 18')
    A('s_lshr_b32 s3, s3, 3')
    A('s_add_u32 s3, s3, s24')
    stamp(A,0)
    A(f's_load_dwordx2 s[6:7], s[0:1], {KA["w2"]}')
    A('s_mov_b32 s23, s3')
    A('s_lshl_b32 s20, s23, 5')
    A('s_waitcnt lgkmcnt(0)')
    srd(A,8,6,SZ_W)
    srd(A,12,4,SZ_W,WS['W2F'])
    load_tile_g(A,False)
    A('v_and_b32 v116, 63, v0')
    A('v_lshrrev_b32 v117, 6, v0')
    A('v_lshrrev_b32 v120, 2, v116')
    A(f'v_mul_u32_u24 v5, {RS}, v120')
    A('v_and_b32 v120, 3, v116')
    A('v_lshl_add_u32 v5, v120, 3, v5')
    A('v_mul_u32_u24 v120, 288, v117')
    A('v_add_u32 v5, v5, v120')
    A('s_mul_i32 s24, s23, 57')
    A('s_lshr_b32 s24, s24, 10')
    A('s_mul_i32 s25, s24, 18')
    A('s_sub_u32 s25, s23, s25')
    A('s_mul_i32 s24, s24, 663552')
    A('s_mul_i32 s25, s25, 3072')
    A('s_add_u32 s24, s24, s25')
    A('v_mul_u32_u24 v6, 165888, v117')
    A('v_lshl_add_u32 v6, v116, 4, v6')
    A('v_add_u32 v6, s24, v6')
    A('s_waitcnt vmcnt(0)')
    stamp(A,1)
    write_tile_g(A,8)
    A('s_waitcnt lgkmcnt(0)')
    A('s_barrier')
    tr_tile_g(A,16)
    A('s_waitcnt lgkmcnt(0)')
    for q in range(9):
        A(f's_mov_b32 s22, {(q//3)*55296+(q%3)*1024}')
        A(f'buffer_store_dwordx4 v[{8+4*q}:{11+4*q}], v6, s[12:15], s22 offen {POL["W2F"]}')
    stamp(A,2)
    if STAMP: A('s_waitcnt vmcnt(0)')
    stamp(A,3)
    stamp_out(A,4,slot)
    A('s_endpgm')


def gen_k1():
    A=Asm()
    A('k1_kernel:')
    A(f's_load_dwordx2 s[4:5], s[0:1], {KA["ws"]}')
    A('s_mov_b32 s3, s2')
    order=os.environ.get('K1ORD','KG,LN,MOD,PAD,W2').split(',')
    cnt=dict(KG=K1_KG,LN=K1_LN,MOD=K1_MOD,PAD=K1_PAD,W2=K1_W2)
    for r in order:
        if r=='PAD':
            A(f's_cmp_lt_u32 s3, {cnt[r]}')
            A('s_cbranch_scc1 K1_EXIT')
        else:
            A(f's_cmp_lt_u32 s3, {cnt[r]}')
            A(f's_cbranch_scc1 K1_{r}')
        A(f's_sub_u32 s3, s3, {cnt[r]}')
    A('K1_EXIT:')
    A('s_endpgm')

    def load_tile(delta=False):
        A('v_lshrrev_b32 v1, 3, v0')
        A('v_and_b32 v2, 7, v0')
        A('v_add_u32 v3, s20, v1')
        if delta:
            A('v_lshrrev_b32 v4, 4, v1')
            A('v_mul_u32_u24 v4, s21, v4')
            A('v_add_u32 v3, v3, v4')
        A('v_mul_u32_u24 v3, 1152, v3')
        A('v_lshl_add_u32 v3, v2, 4, v3')
        for c in range(9):
            A(f'buffer_load_dwordx4 v[{8+4*c}:{11+4*c}], v3, s[8:11], 0 offen offset:{c*128} nt')
        A(f'v_mul_u32_u24 v4, {RS}, v1')
        A('v_lshl_add_u32 v4, v2, 4, v4')
    def write_tile(base):
        for c in range(9):
            A(f'ds_write_b128 v4, v[{base+4*c}:{base+3+4*c}] offset:{c*128}')

    A('K1_LN:')
    if 'K1_LN' in SKIP: A('s_endpgm')
    stamp(A,0)
    if os.environ.get('CPF','0')=='1':
        A('s_getpc_b64 s[30:31]')
        A('K1_PC:')
        A('s_add_u32 s30, s30, k2_kernel-K1_PC')
        A('s_addc_u32 s31, s31, 0')
        A('v_lshlrev_b32 v126, 7, v0')
        A('v_cmp_gt_u32 vcc, (CODE_END-k2_kernel+127)/128, v0')
        A('s_and_saveexec_b64 s[32:33], vcc')
        A('global_load_dword v127, v126, s[30:31]')
        A('s_mov_b64 exec, s[32:33]')
    A(f's_load_dwordx2 s[6:7], s[0:1], {KA["x"]}')
    A('s_lshl_b32 s20, s3, 5')
    A('s_waitcnt lgkmcnt(0)')
    srd(A,8,6,SZ_XT)
    load_tile()
    srd(A,12,4,SZ_XT,WS['XT'])
    srd(A,16,4,0x8000+8192,WS['STAT'])
    A('v_and_b32 v116, 63, v0')
    A('v_lshrrev_b32 v117, 6, v0')
    A('v_lshrrev_b32 v118, 4, v116')
    A('v_and_b32 v119, 15, v116')
    A('v_lshrrev_b32 v120, 2, v119')
    A('v_lshl_add_u32 v120, v118, 3, v120')
    A(f'v_mul_u32_u24 v5, {RS}, v120')
    A('v_and_b32 v120, 3, v119')
    A('v_lshl_add_u32 v5, v120, 3, v5')
    A('v_mul_u32_u24 v120, 288, v117')
    A('v_add_u32 v5, v5, v120')
    A('v_mul_u32_u24 v6, 144, v117')
    A('v_add_u32 v6, v6, v119')
    A('v_lshlrev_b32 v6, 12, v6')
    A('v_lshl_add_u32 v6, v118, 4, v6')
    A('s_lshl_b32 s21, s20, 1')
    A('v_add_u32 v6, s21, v6')
    A('s_waitcnt vmcnt(0)')
    stamp(A,1)
    write_tile(8)
    U=44
    for i in range(36): unpack(A,U+2*i,U+2*i+1,8+i)
    A('s_waitcnt lgkmcnt(0)')
    A('s_barrier')
    def tr_tile(rows_h):
        for q in range(9):
            A(f'ds_read_b64_tr_b16 v[{8+4*q}:{9+4*q}], v5 offset:{q*32}')
            A(f'ds_read_b64_tr_b16 v[{10+4*q}:{11+4*q}], v5 offset:{q*32+rows_h*RS}')
    tr_tile(4)
    A(f'v_pk_add_f32 v[116:117], v[{U}:{U+1}], v[{U+2}:{U+3}]')
    A(f'v_pk_add_f32 v[118:119], v[{U+4}:{U+5}], v[{U+6}:{U+7}]')
    for i in range(4,36,2):
        A(f'v_pk_add_f32 v[116:117], v[116:117], v[{U+2*i}:{U+2*i+1}]')
        A(f'v_pk_add_f32 v[118:119], v[118:119], v[{U+2*i+2}:{U+2*i+3}]')
    A('v_pk_add_f32 v[116:117], v[116:117], v[118:119]')
    A('v_add_f32 v116, v116, v117')
    A('s_waitcnt lgkmcnt(0)')
    for q in range(9):
        A(f's_mov_b32 s22, {q*65536}')
        A(f'buffer_store_dwordx4 v[{8+4*q}:{11+4*q}], v6, s[12:15], s22 offen {POL["XT"]}')
    def red8(r):
        A(f'v_add_f32_dpp v{r}, v{r}, v{r} quad_perm:[1,0,3,2] row_mask:0xf bank_mask:0xf')
        A(f'v_add_f32_dpp v{r}, v{r}, v{r} quad_perm:[2,3,0,1] row_mask:0xf bank_mask:0xf')
        A(f'v_add_f32_dpp v{r}, v{r}, v{r} row_half_mirror row_mask:0xf bank_mask:0xf')
    red8(116)
    A('v_mul_f32 v116, 0x3ae38e39, v116')
    A('v_sub_f32 v118, 0, v116')
    for i in range(0,36,2):
        A(f'v_pk_add_f32 v[124:125], v[{U+2*i}:{U+2*i+1}], v[118:119] op_sel_hi:[1,0]')
        A(f'v_pk_add_f32 v[126:127], v[{U+2*i+2}:{U+2*i+3}], v[118:119] op_sel_hi:[1,0]')
        if i==0:
            A('v_pk_mul_f32 v[120:121], v[124:125], v[124:125]')
            A('v_pk_mul_f32 v[122:123], v[126:127], v[126:127]')
        else:
            A('v_pk_fma_f32 v[120:121], v[124:125], v[124:125], v[120:121]')
            A('v_pk_fma_f32 v[122:123], v[126:127], v[126:127], v[122:123]')
    A('v_pk_add_f32 v[120:121], v[120:121], v[122:123]')
    A('v_add_f32 v120, v120, v121')
    red8(120)
    A('v_mul_f32 v120, 0x3ae38e39, v120')
    A('v_cvt_pk_bf16_f32 v120, v120, v120')
    A('v_lshlrev_b32 v120, 16, v120')
    A('v_add_f32 v120, 0x3727c5ac, v120')
    A('v_cvt_pk_bf16_f32 v120, v120, v120')
    A('v_lshlrev_b32 v120, 16, v120')
    A('v_sqrt_f32 v120, v120')
    A('v_cvt_pk_bf16_f32 v120, v116, v120')
    A('v_lshlrev_b32 v121, 2, v1')
    A('v_cmp_eq_u32 vcc, 0, v2')
    A('s_lshl_b32 s21, s20, 2')
    A('s_and_saveexec_b64 s[26:27], vcc')
    A('buffer_store_dword v120, v121, s[16:19], s21 offen')
    A('v_mov_b32 v122, 0')
    A('s_add_u32 s21, s21, 0x8000')
    A('buffer_store_dword v122, v121, s[16:19], s21 offen')
    if STAMP: A('s_mov_b64 exec, -1')
    stamp(A,2)
    if STAMP: A('s_waitcnt vmcnt(0)')
    stamp(A,3)
    stamp_out(A,4,0)
    A('s_endpgm')

    A('K1_MOD:')
    if 'K1_MOD' in SKIP: A('s_endpgm')
    stamp(A,0)
    A(f's_load_dwordx2 s[6:7], s[0:1], {KA["wmod"]}')
    A(f's_load_dwordx2 s[24:25], s[0:1], {KA["c"]}')
    A('s_mov_b32 s23, s3')
    A('s_lshl_b32 s23, s23, 7')
    A('s_waitcnt lgkmcnt(0)')
    srd(A,8,6,576*3456*2)
    srd(A,12,24,1152)
    srd(A,16,4,3456*4,WS['MOD'])
    A('v_lshrrev_b32 v1, 3, v0')
    A('v_and_b32 v2, 7, v0')
    A('v_lshlrev_b32 v3, 1, v1')
    for c in range(18):
        A(f'buffer_load_ushort v{80+c}, v3, s[12:15], 0 offen offset:{c*64}')
    A('v_mul_u32_u24 v4, 6912, v1')
    A('v_lshl_add_u32 v4, v2, 4, v4')
    A('v_add_u32 v4, s23, v4')
    for c in range(18):
        A(f's_mov_b32 s22, {c*32*6912}')
        A(f'buffer_load_dwordx4 v[{8+4*c}:{11+4*c}], v4, s[8:11], s22 offen nt')
    A('s_waitcnt vmcnt(18)')
    for c in range(18):
        r=80+c
        A(f'v_lshlrev_b32 v{r}, 16, v{r}')
        A(f'v_mul_f32 v100, 0xbfb8aa3b, v{r}')
        A('v_exp_f32 v100, v100')
        A('v_add_f32 v100, 1.0, v100')
        A('v_rcp_f32 v100, v100')
        A(f'v_mul_f32 v{r}, v{r}, v100')
        A(f'v_cvt_pk_bf16_f32 v{r}, v{r}, v{r}')
        A(f'v_lshlrev_b32 v{r}, 16, v{r}')
    for e in range(8): A(f'v_mov_b32 v{104+e}, 0')
    for c in range(18):
        A(f's_waitcnt vmcnt({17-c})')
        for e in range(4):
            unpack(A,100,101,8+4*c+e)
            A(f'v_fmac_f32 v{104+2*e}, v{80+c}, v100')
            A(f'v_fmac_f32 v{105+2*e}, v{80+c}, v101')
    stamp(A,1)
    A('v_lshlrev_b32 v5, 8, v1')
    A('v_lshl_add_u32 v5, v2, 5, v5')
    A('ds_write_b128 v5, v[104:107]')
    A('ds_write_b128 v5, v[108:111] offset:16')
    A('s_waitcnt lgkmcnt(0)')
    A('s_barrier')
    A('v_cmp_gt_u32 vcc, 64, v0')
    A('s_and_saveexec_b64 s[26:27], vcc')
    A('s_cbranch_execz K1_MOD_END')
    A('v_lshlrev_b32 v5, 2, v0')
    for r in range(32):
        A(f'ds_read_b32 v{8+r}, v5 offset:{r*256}')
    A('s_waitcnt lgkmcnt(0)')
    for r in range(16): A(f'v_add_f32 v{8+r}, v{8+r}, v{24+r}')
    for r in range(8): A(f'v_add_f32 v{8+r}, v{8+r}, v{16+r}')
    for r in range(4): A(f'v_add_f32 v{8+r}, v{8+r}, v{12+r}')
    for r in range(2): A(f'v_add_f32 v{8+r}, v{8+r}, v{10+r}')
    A('v_add_f32 v8, v8, v9')
    A('v_cvt_pk_bf16_f32 v8, v8, v8')
    A('v_lshlrev_b32 v8, 16, v8')
    A('s_lshl_b32 s23, s23, 1')
    A('buffer_store_dword v8, v5, s[16:19], s23 offen')
    A('K1_MOD_END:')
    if STAMP:
        A('s_mov_b64 exec, -1')
        stamp(A,2)
        A('s_waitcnt vmcnt(0)')
        stamp(A,3)
        stamp_out(A,4,0)
    A('s_endpgm')

    A('K1_KG:')
    if 'K1_KG' in SKIP: A('s_endpgm')
    stamp(A,0)
    A(f's_load_dwordx4 s[24:27], s[0:1], {KA["lar"]}')
    A(f's_load_dwordx4 s[28:31], s[0:1], {KA["cr"]}')
    A(f's_load_dwordx2 s[32:33], s[0:1], {KA["logdt"]}')
    A('s_mov_b32 s23, s3')
    A('s_lshl_b32 s22, s23, 1')
    A('s_and_b32 s22, s22, 0xfffffffc')
    A('v_and_b32 v1, 63, v0')
    A('v_lshrrev_b32 v2, 4, v0')
    A('v_lshlrev_b32 v3, 4, v2')
    A('s_lshl_b32 s44, s23, 8')
    A('s_waitcnt lgkmcnt(0)')
    A('s_load_dword s34, s[32:33], s22')
    srd(A,8,24,576*128*2)
    A('buffer_load_dwordx4 v[8:11], v3, s[8:11], s44 offen nt')
    srd(A,12,26,576*128*2)
    A('buffer_load_dwordx4 v[12:15], v3, s[12:15], s44 offen nt')
    srd(A,16,28,576*128*2)
    A('buffer_load_dwordx4 v[16:19], v3, s[16:19], s44 offen nt')
    srd(A,36,30,576*128*2)
    A('buffer_load_dwordx4 v[20:23], v3, s[36:39], s44 offen nt')
    srd(A,40,4,SZ_KF,WS['KF'])
    A('v_and_b32 v4, 15, v0')
    def p_row(tile, vi, vd, t):
        if tile==0:
            A(f'v_lshrrev_b32 v{t}, 3, v{vi}')
            A(f'v_and_b32 v{vd}, 7, v{vi}')
            A(f'v_lshl_add_u32 v{vd}, v{t}, 7, v{vd}')
        elif tile==1:
            A(f'v_lshrrev_b32 v{t}, 2, v{vi}')
            A(f'v_and_b32 v{vd}, 3, v{vi}')
            A(f'v_lshlrev_b32 v{vd}, 1, v{vd}')
            A(f'v_lshl_add_u32 v{vd}, v{t}, 7, v{vd}')
            A(f'v_add_u32 v{vd}, 256, v{vd}')
            A(f'v_lshrrev_b32 v{t}, 1, v{vi}')
            A(f'v_lshlrev_b32 v{t}, 7, v{t}')
            A(f'v_and_b32 v{t+1}, 1, v{vi}')
            A(f'v_lshl_add_u32 v{t}, v{t+1}, 2, v{t}')
            A(f'v_cmp_gt_u32 vcc, 8, v{vi}')
            A(f'v_cndmask_b32 v{vd}, v{t}, v{vd}, vcc')
        else:
            A(f'v_lshlrev_b32 v{vd}, 7, v{vi}')
            A(f'v_add_u32 v{vd}, 1024, v{vd}')
    for t in range(3):
        p_row(t,4,24+2*t,112)
        A(f'v_cvt_f32_u32 v{24+2*t}, v{24+2*t}')
    A('v_lshlrev_b32 v30, 3, v4')
    A('v_cvt_f32_u32 v30, v30')
    A('v_mov_b32 v110, 0x41600000')
    A('v_mov_b32 v111, 0')
    A('v_lshlrev_b32 v5, 3, v0')
    for e in range(8):
        A(f'v_add_u32 v{114+e}, {e}, v5')
        A(f'v_cvt_f32_u32 v{114+e}, v{114+e}')
    for e in range(0,8,2):
        A(f'v_cvt_pk_bf16_f32 v{114+e}, v{114+e}, v{115+e}')
        A(f'v_and_b32 v{115+e}, 0xffff0000, v{114+e}')
        A(f'v_lshlrev_b32 v{114+e}, 16, v{114+e}')
    for e in range(8):
        A(f'v_cvt_u32_f32 v{114+e}, v{114+e}')
        A(f'v_lshlrev_b32 v{114+e}, 1, v{114+e}')
    A('s_waitcnt lgkmcnt(0)')
    A('s_and_b32 s22, s23, 1')
    A('s_lshl_b32 s22, s22, 4')
    A('s_lshr_b32 s34, s34, s22')
    A('s_lshl_b32 s34, s34, 16')
    A(f'v_mov_b32 v112, {LOG2E:#x}')
    A('v_mul_f32 v113, s34, v112')
    A('v_exp_f32 v113, v113')
    A('v_cvt_pk_bf16_f32 v113, v113, v113')
    A('v_lshlrev_b32 v113, 16, v113')
    A('v_mul_f32 v108, 0xbfb8aa3b, v113')
    A(f'v_mul_f32 v109, {INV2PI:#x}, v113')
    stamp(A,1)
    A('s_waitcnt vmcnt(0)')
    stamp(A,2)
    for e in range(4):
        unpack(A,32+4*e,34+4*e,8+e)
        unpack(A,33+4*e,35+4*e,12+e)
        unpack(A,48+4*e,50+4*e,16+e)
        unpack(A,49+4*e,51+4*e,20+e)
    for n in range(8):
        A(f'v_mul_f32 v{32+2*n}, v112, v{32+2*n}')
        A(f'v_exp_f32 v{32+2*n}, v{32+2*n}')
    A('v_max3_f32 v6, |v48|, |v49|, |v50|')
    for n in range(51,63,2): A(f'v_max3_f32 v6, |v{n}|, |v{n+1}|, v6')
    A('v_max_f32 v6, |v63|, v6')
    for n in range(0,8,2):
        A(f'v_cvt_pk_bf16_f32 v{32+2*n}, v{32+2*n}, v{34+2*n}')
        A(f'v_and_b32 v{34+2*n}, 0xffff0000, v{32+2*n}')
        A(f'v_lshlrev_b32 v{32+2*n}, 16, v{32+2*n}')
    for q in range(4): A(f'v_readlane_b32 s{48+q}, v6, {16*q}')
    for n in range(8):
        A(f'v_pk_mul_f32 v[{32+2*n}:{33+2*n}], v[{32+2*n}:{33+2*n}], v[108:109]')
    A('s_max_u32 s48, s48, s49')
    A('s_max_u32 s50, s50, s51')
    A('s_max_u32 s48, s48, s50')
    A('s_lshr_b32 s48, s48, 23')
    A('s_max_u32 s48, s48, 13')
    A('s_min_u32 s48, s48, 254')
    A('s_sub_u32 s50, 267, s48')
    A('s_lshl_b32 s50, s50, 23')
    A('s_mov_b32 s51, s50')
    A('s_sub_u32 s49, s48, 153')
    for n in range(8):
        A(f'v_pk_mul_f32 v[{48+2*n}:{49+2*n}], v[{48+2*n}:{49+2*n}], s[50:51]')
    A('v_ldexp_f32 v113, v113, s49')
    for s in range(8):
        Z=32+2*s; C=48+2*s; r=s&3
        for k in range(3):
            A(f'v_pk_fma_f32 v[{64+2*k}:{65+2*k}], v[{Z}:{Z+1}], v[{24+2*k}:{25+2*k}], v[110:111] op_sel_hi:[1,0,1]')
        A(f'v_pk_mul_f32 v[70:71], v[{Z}:{Z+1}], v[30:31] op_sel_hi:[1,0]')
        for k in range(4): A(f'v_fract_f32 v{65+2*k}, v{65+2*k}')
        for k in range(4):
            A(f'v_exp_f32 v{64+2*k}, v{64+2*k}')
            A(f'v_cos_f32 v{72+2*k}, v{65+2*k}')
            A(f'v_sin_f32 v{73+2*k}, v{65+2*k}')
        for k in range(4):
            A(f'v_pk_mul_f32 v[{72+2*k}:{73+2*k}], v[{72+2*k}:{73+2*k}], v[{64+2*k}:{65+2*k}] op_sel_hi:[1,0]')
        for k in range(3):
            A(f'v_cvt_pk_f16_f32 v{80+4*k+r}, v{72+2*k}, v{73+2*k}')
        A(f'v_pk_mul_f32 v[64:65], v[78:79], v[{C}:{C+1}] op_sel_hi:[1,0] neg_hi:[1,0]')
        A(f'v_pk_fma_f32 v[64:65], v[78:79], v[{C}:{C+1}], v[64:65] op_sel:[1,1,0] op_sel_hi:[0,1,1] neg_lo:[1,0,0] neg_hi:[1,0,0]')
        A(f'v_cvt_pk_f16_f32 v{92+r}, v64, v65')
        if r==3:
            for k in range(3):
                c = '0' if s==3 else f'v[{96+4*k}:{99+4*k}]'
                A(f'v_mfma_f32_16x16x32_f16 v[{96+4*k}:{99+4*k}], v[{80+4*k}:{83+4*k}], v[92:95], {c}')
    stamp(A,3)
    A('v_lshrrev_b32 v5, 6, v0')
    A('v_mul_u32_u24 v5, 3072, v5')
    A('v_lshl_add_u32 v5, v1, 4, v5')
    A('v_readfirstlane_b32 s45, v0')
    A('s_lshr_b32 s45, s45, 6')
    A('v_lshrrev_b32 v6, 4, v1')
    A('v_lshlrev_b32 v6, 2, v6')
    for r in range(1,4): A(f'v_add_u32 v{32+r}, {r}, v6')
    A('v_mov_b32 v32, v6')
    for k in range(6):
        A(f'v_pk_mul_f32 v[{96+2*k}:{97+2*k}], v[{96+2*k}:{97+2*k}], v[112:113] op_sel:[0,1] op_sel_hi:[1,1]')
    for k in range(3):
        A(f'ds_write_b128 v5, v[{96+4*k}:{99+4*k}] offset:{k*1024}')
    for t in range(3):
        A(f's_cmp_lg_u32 s45, {t}')
        A(f's_cbranch_scc1 K1_KG_T{t}')
        for r in range(4): p_row(t,32+r,36+r,40)
        A(f'K1_KG_T{t}:')
    A('s_waitcnt lgkmcnt(0)')
    A('s_barrier')
    A('s_cmp_ge_u32 s45, 3')
    A('s_cbranch_scc1 K1_KG_SKIP')
    A('v_lshlrev_b32 v5, 4, v0')
    for w in range(4):
        A(f'ds_read_b128 v[{8+4*w}:{11+4*w}], v5 offset:{w*3072}')
    for r in range(4):
        A(f'v_lshl_add_u32 v{36+r}, v4, 3, v{36+r}')
        A(f'v_lshlrev_b32 v{36+r}, 1, v{36+r}')
    A('s_waitcnt lgkmcnt(0)')
    A('v_pk_add_f32 v[8:9], v[8:9], v[12:13]')
    A('v_pk_add_f32 v[10:11], v[10:11], v[14:15]')
    A('v_pk_add_f32 v[16:17], v[16:17], v[20:21]')
    A('v_pk_add_f32 v[18:19], v[18:19], v[22:23]')
    A('v_pk_add_f32 v[8:9], v[8:9], v[16:17]')
    A('v_pk_add_f32 v[10:11], v[10:11], v[18:19]')
    A('v_cvt_pk_bf16_f32 v8, v8, v9')
    A('v_cvt_pk_bf16_f32 v10, v10, v11')
    A('ds_write_b16 v36, v8 offset:12288')
    A('ds_write_b16_d16_hi v37, v8 offset:12288')
    A('ds_write_b16 v38, v10 offset:12288')
    A('ds_write_b16_d16_hi v39, v10 offset:12288')
    A('K1_KG_SKIP:')
    A('s_waitcnt lgkmcnt(0)')
    A('s_barrier')
    stamp(A,4)
    for e in range(8):
        A(f'ds_read_u16 v{24+e}, v{114+e} offset:12288')
    A('v_lshlrev_b32 v5, 4, v0')
    A(f's_mul_i32 s44, s23, {KFC}')
    A('v_mov_b32 v40, 0\nv_mov_b32 v41, 0\nv_mov_b32 v42, 0\nv_mov_b32 v43, 0')
    A('s_waitcnt lgkmcnt(0)')
    for e in range(4):
        A(f'v_lshl_or_b32 v{16+e}, v{25+2*e}, 16, v{24+2*e}')
    A(f'buffer_store_dwordx4 v[16:19], v5, s[40:43], s44 offen offset:32 {POL["KF"]}')
    A('v_cmp_gt_u32 vcc, 2, v0')
    A('s_and_saveexec_b64 s[56:57], vcc')
    A('s_cbranch_execz K1_KG_END')
    A('buffer_store_dwordx4 v[40:43], v5, s[40:43], s44 offen')
    A('K1_KG_END:')
    if STAMP:
        A('s_mov_b64 exec, -1')
        stamp(A,5)
        stamp_out(A,6,0)
    A('s_endpgm')
    if W2K1: gen_w2(A,0)
    return A.text(), kd('k1_kernel',128)

K2_W1=144; K2_CV=576
K2_GRID=K2_W1+K2_CV+(0 if os.environ.get('W2K1','1')=='1' else K1_W2)
CV_U=0
CV_P=4608
CV_E=4608
W1S=64
W1_TAB=576*W1S
K2_LDS=max(CV_E+33024, 32*RS, W1_TAB+3456)

def load_tile_g(A,delta=False):
    A('v_lshrrev_b32 v1, 3, v0')
    A('v_and_b32 v2, 7, v0')
    A('v_add_u32 v3, s20, v1')
    if delta:
        A('v_lshrrev_b32 v4, 4, v1')
        A('v_mul_u32_u24 v4, s21, v4')
        A('v_add_u32 v3, v3, v4')
    A('v_mul_u32_u24 v3, 1152, v3')
    A('v_lshl_add_u32 v3, v2, 4, v3')
    for c in range(9):
        A(f'buffer_load_dwordx4 v[{8+4*c}:{11+4*c}], v3, s[8:11], 0 offen offset:{c*128} nt')
    A(f'v_mul_u32_u24 v4, {RS}, v1')
    A('v_lshl_add_u32 v4, v2, 4, v4')
def write_tile_g(A,base):
    for c in range(9):
        A(f'ds_write_b128 v4, v[{base+4*c}:{base+3+4*c}] offset:{c*128}')
def tr_tile_g(A,rows_h):
    for q in range(9):
        A(f'ds_read_b64_tr_b16 v[{8+4*q}:{9+4*q}], v5 offset:{q*32}')
        A(f'ds_read_b64_tr_b16 v[{10+4*q}:{11+4*q}], v5 offset:{q*32+rows_h*RS}')

def gen_k2():
    A=Asm()
    A('k2_kernel:')
    A(f's_load_dwordx2 s[4:5], s[0:1], {KA["ws"]}')
    A('s_mov_b32 s3, s2')
    A(f's_cmp_lt_u32 s3, {K2_CV}')
    A('s_cbranch_scc1 K2_CV')
    A(f's_sub_u32 s3, s3, {K2_CV}')
    A(f's_cmp_lt_u32 s3, {K2_W1}')
    A('s_cbranch_scc1 K2_W1')
    if not W2K1:
        A(f's_sub_u32 s3, s3, {K2_W1}')
        A(f's_cmp_lt_u32 s3, {K1_W2}')
        A('s_cbranch_scc1 K1_W2')
    A('s_endpgm')
    A('K2_CV:')
    if 'K2_CV' in SKIP: A('s_endpgm')
    stamp(A,0)
    A(f's_load_dwordx2 s[6:7], s[0:1], {KA["dskip"]}')
    A('s_mov_b32 s23, s3')
    A('s_lshl_b32 s22, s23, 1')
    A('s_and_b32 s22, s22, 0xfffffffc')
    A('s_lshl_b32 s24, s23, 2')
    A('s_add_u32 s25, s24, 2304')
    A('s_add_u32 s26, s24, 4608')
    A('s_add_u32 s27, s24, 9216')
    A('s_lshl_b32 s44, s23, 12')
    A(f's_mul_i32 s45, s23, {KFC}')
    A('v_lshlrev_b32 v1, 4, v0')
    A('v_lshlrev_b32 v2, 5, v0')
    A('v_and_b32 v20, 15, v0')
    A('v_bfe_u32 v21, v0, 4, 2')
    A('v_lshrrev_b32 v22, 6, v0')
    A('s_waitcnt lgkmcnt(0)')
    stamp(A,8)
    A('s_load_dword s34, s[6:7], s22')
    A('s_load_dword s35, s[4:5], s24')
    A('s_load_dword s36, s[4:5], s25')
    A('s_load_dword s37, s[4:5], s26')
    A('s_load_dword s33, s[4:5], s27')
    srd(A,16,4,SZ_KF,WS['KF'])
    WA=72; WB=80; OA=88; OB=96
    A(f'buffer_load_dwordx4 v[{WA}:{WA+3}], v1, s[16:19], s45 offen offset:16')
    A(f'buffer_load_dwordx4 v[{WA+4}:{WA+7}], v1, s[16:19], s45 offen offset:32')
    A(f'buffer_load_dwordx4 v[{WB}:{WB+3}], v1, s[16:19], s45 offen offset:20')
    A(f'buffer_load_dwordx4 v[{WB+4}:{WB+7}], v1, s[16:19], s45 offen offset:36')
    srd(A,8,4,SZ_XT,WS['XT'])
    A('buffer_load_dwordx4 v[12:15], v1, s[8:11], s44 offen')
    srd(A,12,4,8192,WS['STAT'])
    A('buffer_load_dwordx4 v[40:43], v2, s[12:15], 0 offen')
    A('buffer_load_dwordx4 v[44:47], v2, s[12:15], 0 offen offset:16')
    srd(A,40,4,SZ_XT,WS['X1T'])
    stamp(A,9)
    A('v_mov_b32 v16, 0\nv_mov_b32 v17, 0\nv_mov_b32 v18, 0\nv_mov_b32 v19, 0')
    A(f'v_add_u32 v3, {CV_U+4096}, v1')
    A(f'v_add_u32 v23, {CV_E-512}, v1')
    A('v_cmp_gt_u32 vcc, 32, v0')
    A('v_cndmask_b32 v3, v23, v3, vcc')
    A('v_cmp_gt_u32 vcc, 40, v0')
    A('s_and_saveexec_b64 s[46:47], vcc')
    A('ds_write_b128 v3, v[16:19]')
    A('s_mov_b64 exec, s[46:47]')
    A('v_lshlrev_b32 v23, 7, v22')
    A('v_lshl_add_u32 v23, v21, 4, v23')
    A('v_lshlrev_b32 v25, 5, v20')
    A('v_sub_u32 v23, v23, v25')
    A(f'v_add_u32 v23, {CV_U+480}, v23')
    A(f'v_sub_u32 v25, {CV_U+4080}, v1')
    A('v_lshl_add_u32 v24, v21, 3, v20')
    A('v_lshl_add_u32 v24, v22, 6, v24')
    A('v_add_u32 v24, 1, v24')
    for res in range(2):
        if res: A('v_add_u32 v24, 32, v24')
        A('v_bfe_u32 v30, v24, 3, 3')
        A(f'v_xor_b32 v{30+res}, v24, v30')
        A(f'v_lshlrev_b32 v{30+res}, 4, v{30+res}')
        if res==0: A('v_mov_b32 v29, v30')
    A('v_mov_b32 v30, v29')
    A('v_add_u32 v26, 1, v0')
    A('v_and_b32 v27, 7, v26')
    A('v_lshlrev_b32 v27, 4, v27')
    A('v_lshlrev_b32 v26, 7, v26')
    for sft in range(8):
        A(f'v_xor_b32 v{104+sft}, {sft*16}, v27')
        A(f'v_add_u32 v{104+sft}, v26, v{104+sft}')
    stamp(A,1)
    A('s_waitcnt vmcnt(3)')
    stamp(A,2)
    for j in range(6):
        A(f'v_alignbit_b32 v{OA+j}, v{WA+j+1}, v{WA+j}, 16')
        A(f'v_alignbit_b32 v{OB+j}, v{WB+j+1}, v{WB+j}, 16')
    for sft,r in enumerate([WA,OA,WB,OB,WA+2,OA+2,WB+2,OB+2]):
        A(f'ds_write_b128 v{104+sft}, v[{r}:{r+3}] offset:{CV_E}')
    A('v_cmp_eq_u32 vcc, 255, v0')
    A('v_mov_b32 v3, 0')
    A('s_and_saveexec_b64 s[46:47], vcc')
    A(f'ds_write_b128 v3, v[{WA+4}:{WA+7}] offset:{CV_E+257*128+16}')
    A('s_mov_b64 exec, s[46:47]')
    A('s_waitcnt lgkmcnt(0)')
    A('s_and_b32 s22, s23, 1')
    A('s_lshl_b32 s22, s22, 4')
    A('s_lshr_b32 s34, s34, s22')
    A('s_lshl_b32 s34, s34, 16')
    A('s_mov_b32 s38, s35')
    A('s_mov_b32 s39, s35')
    A('v_add_f32 v26, 1.0, s36')
    A('v_cvt_pk_bf16_f32 v26, v26, v26')
    A('v_lshlrev_b32 v26, 16, v26')
    A('s_waitcnt vmcnt(0)')
    if os.environ.get('W2PF','0')=='1':
        NFp=int(os.environ.get('KFNF','2'))
        srd(A,52,4,SZ_W,WS['W2F'])
        A(f's_and_b32 s48, s2, {8//NFp-1}')
        A(f's_mul_i32 s48, s48, {663552*NFp}')
        A('s_lshr_b32 s49, s2, 3')
        A(f's_mul_i32 s49, s49, {9216*NFp}')
        A('s_add_u32 s48, s48, s49')
        A('v_lshlrev_b32 v3, 7, v0')
        A(f'v_cmp_gt_u32 vcc, {72*NFp}, v0')
        A('s_and_saveexec_b64 s[46:47], vcc')
        A('buffer_load_dword v16, v3, s[52:55], s48 offen')
        A('s_mov_b64 exec, s[46:47]')
    H=32; X=48; M=56; SD=64
    for e in range(4): unpack(A,X+2*e,X+1+2*e,12+e)
    for e in range(8): unpack(A,M+e,SD+e,40+e)
    for e in range(8): A(f'v_rcp_f32 v{SD+e}, v{SD+e}')
    for e in range(4): A(f'v_pk_add_f32 v[{H+2*e}:{H+1+2*e}], v[{X+2*e}:{X+1+2*e}], v[{M+2*e}:{M+1+2*e}] neg_lo:[0,1] neg_hi:[0,1]')
    def rnd(base,tmp):
        for e in range(4): A(f'v_cvt_pk_bf16_f32 v{tmp+e}, v{base+2*e}, v{base+2*e+1}')
        for e in range(4): unpack(A,base+2*e,base+2*e+1,tmp+e)
    rnd(H,4)
    for e in range(4): A(f'v_pk_mul_f32 v[{H+2*e}:{H+1+2*e}], v[{H+2*e}:{H+1+2*e}], v[{SD+2*e}:{SD+1+2*e}]')
    rnd(H,4)
    for e in range(4): A(f'v_pk_mul_f32 v[{H+2*e}:{H+1+2*e}], v[{H+2*e}:{H+1+2*e}], v[26:27] op_sel_hi:[1,0]')
    rnd(H,4)
    for e in range(4): A(f'v_pk_add_f32 v[{H+2*e}:{H+1+2*e}], v[{H+2*e}:{H+1+2*e}], s[38:39]')
    for e in range(4): A(f'v_cvt_pk_bf16_f32 v{4+e}, v{H+7-2*e}, v{H+6-2*e}')
    A('ds_write_b128 v25, v[4:7]')
    for e in range(4): unpack(A,H+7-2*e,H+6-2*e,4+e)
    for e in range(8): A(f'v_mul_f32 v{H+e}, s34, v{H+e}')
    A('v_and_b32 v27, 63, v0')
    A('v_lshlrev_b32 v27, 4, v27')
    A('v_lshl_add_u32 v27, v22, 13, v27')
    A('v_lshrrev_b32 v28, 5, v0')
    A('v_lshlrev_b32 v28, 10, v28')
    A('v_bfe_u32 v29, v0, 1, 4')
    A('v_lshl_add_u32 v28, v29, 4, v28')
    A('v_and_b32 v29, 1, v0')
    A('v_lshl_add_u32 v28, v29, 9, v28')
    A('s_waitcnt lgkmcnt(0)')
    A('s_barrier')
    stamp(A,3)
    Y=32; V=64; G=96
    for res in range(2):
        for n in range(8):
            A(f'ds_read_b128 v[{V+4*n}:{V+3+4*n}], v23 offset:{(7-n)*512+res*64}')
            A(f'ds_read_b128 v[{G+4*n}:{G+3+4*n}], v{30+res} offset:{CV_E+n*4096}')
        if res==0:
            for e in range(4): A(f'v_cvt_pk_bf16_f32 v{8+e}, v{H+2*e}, v{H+1+2*e}')
        done=set()
        for lev in range(8):
            A(f's_waitcnt lgkmcnt({2*(7-lev)})')
            if res==1 and lev==7: A('s_barrier')
            for q in range(lev+1):
                for n1 in range(lev+1):
                    if max(q,n1)!=lev or q+n1>7: continue
                    n=q+n1
                    c = f'v[{Y+4*n}:{Y+3+4*n}]' if (res or n in done) else '0'
                    done.add(n)
                    A(f'v_mfma_f32_16x16x32_bf16 v[{Y+4*n}:{Y+3+4*n}], v[{G+4*q}:{G+3+4*q}], v[{V+4*n1}:{V+3+4*n1}], {c}')
    stamp(A,4)
    for n in range(8):
        A(f'ds_write_b128 v27, v[{Y+4*n}:{Y+3+4*n}] offset:{CV_P+n*1024}')
    A('v_lshrrev_b32 v2, 3, v0')
    A('v_mul_u32_u24 v2, 73728, v2')
    A('v_and_b32 v3, 7, v0')
    A('v_lshl_add_u32 v2, v3, 4, v2')
    A('s_lshl_b32 s44, s23, 7')
    A('s_mov_b32 s38, s37')
    A('s_mov_b32 s39, s37')
    A('s_waitcnt lgkmcnt(0)')
    A('s_barrier')
    stamp(A,5)
    S=64; X=40
    for w in range(4):
        A(f'ds_read_b128 v[{S+8*w}:{S+3+8*w}], v28 offset:{CV_P+w*8192}')
        A(f'ds_read_b128 v[{S+4+8*w}:{S+7+8*w}], v28 offset:{CV_P+w*8192+256}')
    for e in range(4): unpack(A,H+2*e,H+1+2*e,8+e)
    for e in range(4): unpack(A,X+2*e,X+1+2*e,12+e)
    A('s_waitcnt lgkmcnt(0)')
    for e in range(0,8,2):
        A(f'v_pk_add_f32 v[{S+e}:{S+1+e}], v[{S+e}:{S+1+e}], v[{S+8+e}:{S+9+e}]')
        A(f'v_pk_add_f32 v[{S+16+e}:{S+17+e}], v[{S+16+e}:{S+17+e}], v[{S+24+e}:{S+25+e}]')
    for e in range(0,8,2):
        A(f'v_pk_add_f32 v[{S+e}:{S+1+e}], v[{S+e}:{S+1+e}], v[{S+16+e}:{S+17+e}]')
    rnd(S,4)
    for e in range(0,8,2): A(f'v_pk_add_f32 v[{S+e}:{S+1+e}], v[{S+e}:{S+1+e}], v[{H+e}:{H+1+e}]')
    rnd(S,4)
    for e in range(0,8,2): A(f'v_pk_mul_f32 v[{S+e}:{S+1+e}], v[{S+e}:{S+1+e}], s[38:39]')
    rnd(S,4)
    for e in range(0,8,2): A(f'v_pk_add_f32 v[{S+e}:{S+1+e}], v[{S+e}:{S+1+e}], v[{X+e}:{X+1+e}]')
    for e in range(4): A(f'v_cvt_pk_bf16_f32 v{4+e}, v{S+2*e}, v{S+1+2*e}')
    A(f'buffer_store_dwordx4 v[4:7], v2, s[40:43], s44 offen {POL["X1"]}')
    stamp(A,6)
    if STAMP: A('s_waitcnt vmcnt(0)')
    stamp(A,7)
    stamp_out(A,10,1)
    A('s_endpgm')

    A('K2_W1:')
    if 'K2_W1' in SKIP: A('s_endpgm')
    A('s_and_b32 s24, s3, 7')
    A('s_mul_i32 s24, s24, 18')
    A('s_lshr_b32 s3, s3, 3')
    A('s_add_u32 s3, s3, s24')
    A(f's_load_dwordx2 s[6:7], s[0:1], {KA["w1"]}')
    A('s_lshl_b32 s23, s3, 6')
    A('v_lshrrev_b32 v2, 2, v0')
    A('v_and_b32 v3, 3, v0')
    A('v_mul_u32_u24 v4, 9216, v2')
    A('v_lshl_add_u32 v4, v3, 4, v4')
    A('v_add_u32 v4, s23, v4')
    A('v_lshlrev_b32 v1, 2, v0')
    A('s_waitcnt lgkmcnt(0)')
    srd(A,8,6,SZ_W)
    for c in range(9):
        A(f's_mov_b32 s22, {c*64*9216}')
        A(f'buffer_load_dwordx4 v[{8+4*c}:{11+4*c}], v4, s[8:11], s22 offen nt')
    srd(A,16,4,3456*4,WS['MOD'])
    for c in range(3):
        A(f's_mov_b32 s22, {(3*576+256*c)*4}')
        A(f'buffer_load_dword v{100+c}, v1, s[16:19], s22 offen')
        A(f's_mov_b32 s22, {(4*576+256*c)*4}')
        A(f'buffer_load_dword v{104+c}, v1, s[16:19], s22 offen')
    srd(A,12,4,SZ_W,WS['W1F'])
    srd(A,36,4,4608*4,WS['CS'])
    srd(A,40,4,4608*4,WS['BIAS'])
    A(f'v_mul_u32_u24 v5, {W1S}, v2')
    A('v_lshl_add_u32 v5, v3, 4, v5')
    A('v_and_b32 v116, 63, v0')
    A('v_bfe_u32 v117, v0, 6, 1')
    A('v_lshrrev_b32 v111, 7, v0')
    A('v_lshrrev_b32 v118, 2, v116')
    A(f'v_mul_u32_u24 v6, {W1S}, v118')
    A('v_and_b32 v118, 3, v116')
    A('v_lshl_add_u32 v6, v118, 3, v6')
    A('v_lshl_add_u32 v6, v117, 5, v6')
    A(f'v_mul_u32_u24 v118, {288*W1S}, v111')
    A('v_add_u32 v6, v6, v118')
    A('v_lshrrev_b32 v119, 4, v116')
    A('v_mul_u32_u24 v118, 1152, v111')
    A('v_lshl_add_u32 v7, v119, 4, v118')
    A('v_lshrrev_b32 v108, 1, v7')
    A('s_lshl_b32 s24, s3, 1')
    A('v_readfirstlane_b32 s26, v117')
    A('v_readfirstlane_b32 s28, v111')
    A('s_add_u32 s26, s26, s24')
    A('s_mul_i32 s27, s26, 171')
    A('s_lshr_b32 s27, s27, 9')
    A('s_mul_i32 s29, s27, 3')
    A('s_sub_u32 s26, s26, s29')
    A('s_lshl_b32 s29, s26, 10')
    A('s_mul_i32 s27, s27, 55296')
    A('s_add_u32 s29, s29, s27')
    A('s_mul_i32 s28, s28, 27648')
    A('s_add_u32 s29, s29, s28')
    A('s_mov_b32 s30, 3072')
    A('v_lshlrev_b32 v109, 4, v116')
    A('v_lshlrev_b32 v110, 1, v0')
    A('v_mov_b32 v112, 0x3f803f80\nv_mov_b32 v113, 0x3f803f80\nv_mov_b32 v114, 0x3f803f80\nv_mov_b32 v115, 0x3f803f80')
    for c in range(9):
        A(f's_waitcnt vmcnt({14-c})')
        A(f'ds_write_b128 v5, v[{8+4*c}:{11+4*c}] offset:{c*64*W1S}')
    A('s_waitcnt vmcnt(0)')
    for c in range(3):
        A(f'v_add_f32 v{104+c}, 1.0, v{104+c}')
        A(f'v_cvt_pk_bf16_f32 v{104+c}, v{104+c}, v{104+c}')
        A(f'v_lshlrev_b32 v{104+c}, 16, v{104+c}')
        if c==2:
            A('v_cmp_gt_u32 vcc, 64, v0')
            A('s_and_saveexec_b64 s[46:47], vcc')
        A(f'ds_write_b32 v1, v{104+c} offset:{W1_TAB+1024*c}')
        A(f'ds_write_b16_d16_hi v110, v{100+c} offset:{W1_TAB+2304+512*c}')
    A('s_mov_b64 exec, s[46:47]')
    A('s_waitcnt lgkmcnt(0)')
    A('s_barrier')
    def rd(kk,F):
        A(f'ds_read_b64_tr_b16 v[{F}:{F+1}], v6 offset:{kk*32*W1S}')
        A(f'ds_read_b64_tr_b16 v[{F+2}:{F+3}], v6 offset:{kk*32*W1S+16*W1S}')
        A(f'ds_read_b128 v[{F+4}:{F+7}], v7 offset:{W1_TAB+kk*128}')
        A(f'ds_read_b128 v[{F+8}:{F+11}], v7 offset:{W1_TAB+kk*128+64}')
        A(f'ds_read_b64 v[{F+12}:{F+13}], v108 offset:{W1_TAB+2304+kk*64}')
        A(f'ds_read_b64 v[{F+14}:{F+15}], v108 offset:{W1_TAB+2304+kk*64+32}')
    rd(0,48)
    for kk in range(9):
        F=48+16*(kk&1)
        if kk<8:
            rd(kk+1,48+16*((kk+1)&1))
            A('s_waitcnt lgkmcnt(6)')
        else: A('s_waitcnt lgkmcnt(0)')
        A(f'v_mfma_f32_16x16x32_bf16 v[124:127], v[{F}:{F+3}], v[{F+12}:{F+15}], {"v[124:127]" if kk else "0"}')
        O=8+4*kk
        for e in range(4): unpack(A,80+2*e,81+2*e,F+e)
        for e in range(4): A(f'v_pk_mul_f32 v[{80+2*e}:{81+2*e}], v[{80+2*e}:{81+2*e}], v[{F+4+2*e}:{F+5+2*e}]')
        for e in range(4): A(f'v_cvt_pk_bf16_f32 v{O+e}, v{80+2*e}, v{81+2*e}')
        A(f'v_mfma_f32_16x16x32_bf16 v[120:123], v[{O}:{O+3}], v[112:115], {"v[120:123]" if kk else "0"}')
        A(f'buffer_store_dwordx4 v[{O}:{O+3}], v109, s[12:15], s29 offen {POL["W1F"]}')
        A('s_add_u32 s29, s29, s30')
    A('s_barrier')
    A('v_and_b32 v1, 127, v0')
    A('v_lshlrev_b32 v1, 5, v1')
    A('v_readfirstlane_b32 s45, v111')
    A('s_cmp_eq_u32 s45, 0')
    A('s_cbranch_scc1 K2_W1_A')
    A('ds_write_b128 v1, v[120:123]')
    A('ds_write_b128 v1, v[124:127] offset:16')
    A('s_waitcnt lgkmcnt(0)')
    A('s_barrier')
    A('s_endpgm')
    A('K2_W1_A:')
    A('s_barrier')
    A('ds_read_b128 v[48:51], v1')
    A('ds_read_b128 v[52:55], v1 offset:16')
    A('v_and_b32 v2, 15, v0')
    A('v_cmp_eq_u32 vcc, 0, v2')
    A('s_lshl_b32 s24, s3, 7')
    A('s_waitcnt lgkmcnt(0)')
    for e in range(0,8,2): A(f'v_pk_add_f32 v[{120+e}:{121+e}], v[{120+e}:{121+e}], v[{48+e}:{49+e}]')
    for e in range(4): A(f'v_mul_f32 v{124+e}, 0xbfb8aa3b, v{124+e}')
    A('s_and_saveexec_b64 s[46:47], vcc')
    A('buffer_store_dwordx4 v[120:123], v0, s[36:39], s24 offen')
    A('buffer_store_dwordx4 v[124:127], v0, s[40:43], s24 offen')
    A('s_endpgm')
    if not W2K1: gen_w2(A,1)
    return A.text(), kd('k2_kernel',128)

NOSTAT=bool(os.environ.get('NOSTAT'))
def interleave(A, mf, fill, per=None):
    n=len(mf); m=len(fill); k=0
    for i,x in enumerate(mf):
        A(x)
        tgt=(i+1)*m//n
        while k<tgt:
            A(fill[k]); k+=1
    while k<m:
        A(fill[k]); k+=1

K3_GRID=256
K3_A0=81920; K3_A1=49152; K3_CSL=155648; K3_LDS=156800
class VM:
    def __init__(s): s.q=[]
    def add(s,tag,n=1): s.q+= [tag]*n
    def after(s,tag):
        idx=max(i for i,t in enumerate(s.q) if t==tag)
        return min(63,len(s.q)-1-idx)

def wave_sum(A,r,t):
    A(f'v_add_f32_dpp v{r}, v{r}, v{r} quad_perm:[1,0,3,2] row_mask:0xf bank_mask:0xf')
    A(f'v_add_f32_dpp v{r}, v{r}, v{r} quad_perm:[2,3,0,1] row_mask:0xf bank_mask:0xf')
    A(f'v_add_f32_dpp v{r}, v{r}, v{r} row_half_mirror row_mask:0xf bank_mask:0xf')
    A(f'v_add_f32_dpp v{r}, v{r}, v{r} row_mirror row_mask:0xf bank_mask:0xf')
    A(f'v_mov_b32 v{t}, v{r}')
    A(f'v_permlane16_swap_b32 v{r}, v{t}')
    A(f'v_add_f32 v{r}, v{r}, v{t}')
    A(f'v_mov_b32 v{t}, v{r}')
    A(f'v_permlane32_swap_b32 v{r}, v{t}')
    A(f'v_add_f32 v{r}, v{r}, v{t}')

def row_stat(A,X,r):
    for c in range(9): A(f'v_lshlrev_b32 v{X+c}, 16, v{X+c}')
    A(f'v_add_f32 v{r}, v{X}, v{X+1}')
    for c in range(2,9): A(f'v_add_f32 v{r}, v{r}, v{X+c}')
    wave_sum(A,r,r+1)
    A(f'v_mul_f32 v{r}, 0x3ae38e39, v{r}')
    for c in range(9): A(f'v_sub_f32 v{X+c}, v{X+c}, v{r}')
    A(f'v_mul_f32 v{r+2}, v{X}, v{X}')
    for c in range(1,9): A(f'v_fmac_f32 v{r+2}, v{X+c}, v{X+c}')
    wave_sum(A,r+2,r+1)
    q=r+2
    A(f'v_mul_f32 v{q}, 0x3ae38e39, v{q}')
    A(f'v_cvt_pk_bf16_f32 v{q}, v{q}, v{q}')
    A(f'v_lshlrev_b32 v{q}, 16, v{q}')
    A(f'v_add_f32 v{q}, 0x3727c5ac, v{q}')
    A(f'v_cvt_pk_bf16_f32 v{q}, v{q}, v{q}')
    A(f'v_lshlrev_b32 v{q}, 16, v{q}')
    A(f'v_sqrt_f32 v{q}, v{q}')
    A(f'v_cvt_pk_bf16_f32 v{r}, v{r}, v{q}')

KF_XB=0; KF_HB=73728; KF_ST=147456; KF_CS=147968; KF_DUM=152576; KF_LDS=152576+8192
SZ_P=8*2048*576*2
KF_LDS=KF_CS+4608+1536+128
KF_FL=KF_CS+4608+1536
KF_SP=KF_CS+4608
def gen_kf():
    A=Asm(); vm=VM()
    P=int(os.environ.get('KFP','5'))
    A('k3_kernel:')
    A('s_cmp_ge_u32 s2, 256')
    A('s_cbranch_scc1 KF_END')
    stamp(A,0)
    A(f's_load_dwordx2 s[4:5], s[0:1], {KA["ws"]}')
    NF=int(os.environ.get('KFNF','2'))
    lg={1:0,2:1,4:2,8:3}[NF]
    A('s_and_b32 s23, s2, 7')
    A('s_lshr_b32 s24, s2, 3')
    A(f's_and_b32 s20, s23, {8//NF-1}')
    A(f's_lshl_b32 s20, s20, {lg}')
    A(f's_and_b32 s25, s24, {NF-1}')
    A('s_add_u32 s20, s20, s25')
    A(f's_lshr_b32 s21, s23, {3-lg}')
    A(f's_lshl_b32 s21, s21, {5-lg}')
    A(f's_lshr_b32 s25, s24, {lg}')
    A('s_add_u32 s21, s21, s25')
    BFR=24; ACC=56; RING=104
    t0,t1,t2,t3,G,I=56,57,58,59,60,61
    A('v_and_b32 v1, 63, v0')
    A('v_lshrrev_b32 v2, 6, v0')
    A('v_readfirstlane_b32 s22, v2')
    ROT=int(os.environ.get('KFROT','0'))
    if ROT:
        A(f's_mul_i32 s23, s21, {ROT}')
        A('s_add_u32 s22, s22, s23')
        A('s_mul_i32 s23, s22, 171')
        A('s_lshr_b32 s23, s23, 11')
        A('s_mul_i32 s23, s23, 12')
        A('s_sub_u32 s22, s22, s23')
        A('v_mov_b32 v2, s22')
    A('v_lshlrev_b32 v3, 4, v1')
    A(f'v_lshrrev_b32 v{G}, 4, v1')
    A(f'v_and_b32 v{I}, 15, v1')
    A('v_lshrrev_b32 v8, 3, v1')
    A('v_lshlrev_b32 v8, 7, v8')
    A(f'v_and_b32 v{t0}, 7, v1')
    A(f'v_lshlrev_b32 v{t1}, 1, v{G}')
    A(f'v_xor_b32 v{t0}, v{t0}, v{t1}')
    A(f'v_lshl_add_u32 v8, v{t0}, 4, v8')
    A('s_mul_i32 s23, s21, 73728')
    A('s_mul_i32 s33, s22, 6144')
    A('s_add_u32 s23, s23, s33')
    A('s_mul_i32 s24, s20, 12')
    A('s_add_u32 s24, s24, s22')
    A('s_mul_i32 s25, s24, 55296')
    A(f's_add_u32 s26, s25, {WS["W2F"]-WS["W1F"]}')
    A('v_lshlrev_b32 v23, 4, v0')
    A('s_waitcnt lgkmcnt(0)')
    srd(A,12,4,SZ_XT,WS['X1T'])
    A('s_mov_b32 m0, s33')
    for i in range(6):
        if i==4:
            A('s_add_u32 m0, s33, 4096')
            A('s_add_u32 s23, s23, 4096')
        A(f'buffer_load_dwordx4 v8, s[12:15], s23 offen offset:{(i&3)*1024} lds'); vm.add('x')
    srd(A,44,4,0x10000+4608*4,WS['CS'])
    A('v_cmp_le_u32 vcc, 144, v0')
    A(f'v_mov_b32 v{t0}, {0x10000-2304}')
    A(f'v_cndmask_b32 v{t0}, 0, v{t0}, vcc')
    A(f'v_add_u32 v{t0}, v{t0}, v23')
    A('s_mul_i32 s30, s20, 2304')
    A(f'buffer_load_dwordx4 v[64:67], v{t0}, s[44:47], s30 offen'); vm.add('x')
    srd(A,8,4,WS['W2F']-WS['W1F']+SZ_W,WS['W1F'])
    if os.environ.get('KFBAR','1')=='1': A('s_barrier')
    def wload(n):
        r=RING+12*(n%P); sreg=25 if n<18 else 26; vm.add(f'w{n}',3)
        return [f'buffer_load_dwordx4 v[{r+4*j}:{r+4*j+3}], v3, s[8:11], s{sreg} offen offset:{j*1024}' for j in range(3)]+[f's_add_u32 s{sreg}, s{sreg}, 3072']
    P0=int(os.environ.get('KFP0','1'))
    for n in range(P0):
        for x in wload(n): A(x)
    A(f'v_lshrrev_b32 v{t0}, 1, v{G}')
    A(f'v_lshlrev_b32 v{t0}, 10, v{t0}')
    A(f'v_and_b32 v{t1}, 1, v{G}')
    A(f'v_lshrrev_b32 v{t2}, 2, v{I}')
    A(f'v_lshl_add_u32 v{t2}, v{t1}, 2, v{t2}')
    A(f'v_lshl_add_u32 v{t0}, v{t2}, 7, v{t0}')
    A(f'v_and_b32 v{t3}, 3, v{I}')
    A(f'v_lshl_add_u32 v{t0}, v{t3}, 3, v{t0}')
    A(f'v_lshrrev_b32 v{t2}, 1, v{t2}')
    A(f'v_lshlrev_b32 v{t2}, 5, v{t2}')
    for tt in range(4):
        A(f'v_xor_b32 v{10+tt}, {32*tt}, v{t2}')
        A(f'v_add_u32 v{10+tt}, v{t0}, v{10+tt}')
    A('s_and_b32 s30, s22, 3')
    A('s_lshl_b32 s31, s30, 5')
    A(f'v_xor_b32 v18, s31, v{t2}')
    A(f'v_add_u32 v18, v{t0}, v18')
    A('s_lshr_b32 s31, s22, 2')
    A('s_mul_i32 s34, s31, 24576')
    A('v_add_u32 v18, s34, v18')
    A(f'v_lshlrev_b32 v6, 3, v{I}')
    A(f'v_add_u32 v6, {KF_SP}, v6')
    A('s_lshl_b32 s31, s31, 9')
    A('s_lshl_b32 s30, s30, 7')
    A('s_add_u32 s30, s30, s31')
    A('v_add_u32 v7, s30, v6')
    A(f'v_add_u32 v4, {KF_HB}, v3')
    for j in range(3):
        A('s_mul_i32 s30, s22, 3')
        A(f's_add_u32 s30, s30, {j}')
        A('s_lshr_b32 s31, s30, 1')
        A('s_lshl_b32 s31, s31, 12')
        A('s_and_b32 s30, s30, 1')
        A('s_lshl_b32 s30, s30, 3')
        A('s_add_u32 s30, s30, s31')
        A(f'v_add_u32 v{19+j}, s30, v4')
    A('s_mul_i32 s30, s22, 192')
    A(f's_add_u32 s30, s30, {KF_CS}')
    A(f'v_lshl_add_u32 v22, v{G}, 4, s30')
    A(f'v_add_u32 v23, {KF_CS}, v23')
    A('v_and_b32 v9, 3, v1')
    A('v_cmp_eq_u32 s[50:51], 1, v9')
    A('v_cmp_eq_u32 s[52:53], 2, v9')
    A('v_cmp_eq_u32 s[54:55], 3, v9')
    A(f'v_lshrrev_b32 v9, 2, v{I}')
    A(f'v_cmp_eq_u32 s[56:57], v9, v{G}')
    ONE=68; SS=72; SQ=76; SB=80
    for r in range(4): A(f'v_mov_b32 v{ONE+r}, 0x3f803f80')
    srd(A,16,4,SZ_P,WS['HF'])
    A('s_lshl_b32 s34, s20, 5')
    A('s_add_u32 s34, s34, s21')
    A('s_mul_i32 s34, s34, 73728')
    A('s_add_u32 s34, s34, s33')
    A('s_add_u32 s35, s34, 4096')
    stamp(A,1)
    A(f's_waitcnt vmcnt({vm.after("x")})')
    A('v_cmp_gt_u32 vcc, 288, v0')
    A('s_and_saveexec_b64 s[58:59], vcc')
    A('ds_write_b128 v23, v[64:67]')
    A('s_mov_b64 exec, s[58:59]')
    A('s_lshl_b32 s30, s22, 2')
    A(f's_add_u32 s30, s30, {KF_FL}')
    A('v_mov_b32 v5, s30')
    A('v_mov_b32 v9, 0')
    A('ds_write_b32 v5, v9')
    A('ds_write_b32 v5, v9 offset:64')
    A('s_waitcnt lgkmcnt(0)')
    A('s_barrier')
    stamp(A,2)
    for k in range(6):
        A(f'ds_read_b64_tr_b16 v[{SB+4*k}:{SB+4*k+1}], v18 offset:{k*4096}')
        A(f'ds_read_b64_tr_b16 v[{SB+4*k+2}:{SB+4*k+3}], v18 offset:{k*4096+2048}')
    def rdX(k):
        L=[]
        for tt in range(4):
            b=BFR+16*(k&1)+4*tt; o=(k%9)*4096
            L.append(f'ds_read_b64_tr_b16 v[{b}:{b+1}], v{10+tt} offset:{o}')
            L.append(f'ds_read_b64_tr_b16 v[{b+2}:{b+3}], v{10+tt} offset:{o+2048}')
        return L
    def rdH(k):
        return [f'ds_read_b128 v[{BFR+16*(k&1)+4*tt}:{BFR+16*(k&1)+4*tt+3}], v4 offset:{(k%9)*4096+tt*1024}' for tt in range(4)]
    for k in range(6):
        A(f's_waitcnt lgkmcnt({2*(5-k)})')
        A(f'v_mfma_f32_16x16x32_bf16 v[{SS}:{SS+3}], v[{ONE}:{ONE+3}], v[{SB+4*k}:{SB+4*k+3}], {"0" if k==0 else f"v[{SS}:{SS+3}]"}')
        A(f'v_mfma_f32_16x16x32_bf16 v[{SQ}:{SQ+3}], v[{SB+4*k}:{SB+4*k+3}], v[{SB+4*k}:{SB+4*k+3}], {"0" if k==0 else f"v[{SQ}:{SQ+3}]"}')
    for x in rdX(0): A(x)
    A(f'v_cndmask_b32 v{SQ}, v{SQ}, v{SQ+1}, s[50:51]')
    A(f'v_cndmask_b32 v{SQ}, v{SQ}, v{SQ+2}, s[52:53]')
    A(f'v_cndmask_b32 v{SS+1}, v{SQ}, v{SQ+3}, s[54:55]')
    A('s_mov_b64 exec, s[56:57]')
    A(f'ds_write_b64 v7, v[{SS}:{SS+1}]')
    A('s_mov_b64 exec, -1')
    A('v_mov_b32 v9, 1')
    A('s_waitcnt lgkmcnt(0)')
    A('ds_write_b32 v5, v9 offset:64')
    for n in range(P0,P):
        for x in wload(n): A(x)
    stamp(A,3)
    if os.environ.get('KFPRIO','0')=='2': A('s_setprio 2')
    def mm(n):
        k=n%18; L=[]
        for j in range(3):
            for tt in range(4):
                d=ACC+16*j+4*tt; a=RING+12*(n%P)+4*j; b=BFR+16*(k&1)+4*tt
                L.append(f'v_mfma_f32_16x16x32_bf16 v[{d}:{d+3}], v[{a}:{a+3}], v[{b}:{b+3}], {f"v[{d}:{d+3}]" if k else "0"}')
        return L
    def steps(n0,rd,adv,wf=None):
        for k in range(18):
            n=n0+k
            A(f's_waitcnt vmcnt({vm.after(f"w{n}")}) lgkmcnt(0)')
            if k==8:
                for x in adv: A(x)
            if wf and k<17 and (k+1)%3==0: wf((k+1)//3)
            R=rd(k+1) if k<17 else []
            M=mm(n)
            W=wload(n+P) if n+P<36 else None
            idx=0
            for j in range(3):
                for t,x in enumerate(M[4*j:4*j+4]):
                    A(x)
                    for _ in range(2):
                        if idx<len(R): A(R[idx]); idx+=1
                if W: A(W[j])
            if W: A(W[3])
    steps(0,rdX,[f'v_add_u32 v{10+tt}, 0x9000, v{10+tt}' for tt in range(4)])
    stamp(A,4)
    if os.environ.get('KFPRIO','0')=='1': A('s_setprio 3')
    if os.environ.get('KFPRIO','0')=='2': A('s_setprio 0')
    A(f'v_mov_b32 v18, {KF_FL+64}')
    A('KF_SW:')
    A(f'ds_read_b128 v[{BFR}:{BFR+3}], v18')
    A(f'ds_read_b128 v[{BFR+4}:{BFR+7}], v18 offset:16')
    A(f'ds_read_b128 v[{BFR+8}:{BFR+11}], v18 offset:32')
    A('s_waitcnt lgkmcnt(0)')
    for r in range(1,12): A(f'v_and_b32 v{BFR}, v{BFR}, v{BFR+r}')
    A(f'v_readfirstlane_b32 s30, v{BFR}')
    A('s_cmp_eq_u32 s30, 1')
    A('s_cbranch_scc0 KF_SW')
    SPR=BFR
    for p in range(3):
        for tt in range(4): A(f'ds_read_b64 v[{SPR+8*p+2*tt}:{SPR+8*p+2*tt+1}], v6 offset:{p*512+tt*128}')
    A('s_waitcnt lgkmcnt(0)')
    NR=10
    for tt in range(4):
        a0=SPR+2*tt
        A(f'v_pk_add_f32 v[{a0}:{a0+1}], v[{a0}:{a0+1}], v[{a0+8}:{a0+9}]')
        A(f'v_pk_add_f32 v[{a0}:{a0+1}], v[{a0}:{a0+1}], v[{a0+16}:{a0+17}]')
        m=NR+2*tt; q=m+1
        for x in [f'v_mul_f32 v{m}, 0x3ae38e39, v{a0}', f'v_mul_f32 v{q}, 0x3ae38e39, v{a0+1}', f'v_fma_f32 v{q}, -v{m}, v{m}, v{q}', f'v_max_f32 v{q}, 0, v{q}',
              f'v_cvt_pk_bf16_f32 v{m}, v{m}, v{q}', f'v_and_b32 v{q}, 0xffff0000, v{m}', f'v_lshlrev_b32 v{m}, 16, v{m}',
              f'v_sub_f32 v{m}, 0, v{m}', f'v_add_f32 v{q}, 0x3727c5ac, v{q}', f'v_cvt_pk_bf16_f32 v{q}, v{q}, v{q}',
              f'v_lshlrev_b32 v{q}, 16, v{q}', f'v_sqrt_f32 v{q}, v{q}', f'v_cvt_pk_bf16_f32 v{q}, v{q}, v{q}',
              f'v_lshlrev_b32 v{q}, 16, v{q}', f'v_rcp_f32 v{q}, v{q}', f'v_mul_f32 v{q}, 0xbfb8aa3b, v{q}']: A(x)
    CB=BFR; T=BFR+24
    for j in range(3):
        A(f'ds_read_b128 v[{CB+8*j}:{CB+8*j+3}], v22 offset:{j*64}')
        A(f'ds_read_b128 v[{CB+8*j+4}:{CB+8*j+7}], v22 offset:{j*64+2304}')
    A('s_waitcnt lgkmcnt(0)')
    for j in range(3):
        c=CB+8*j
        for hh in range(2):
            d0=ACC+16*j+8*hh
            for t in range(2):
                for r in range(4): A(f'v_fmac_f32 v{d0+4*t+r}, v{c+r}, v{NR+2*(2*hh+t)}')
            for t in range(2):
                for r in range(4): A(f'v_fma_f32 v{d0+4*t+r}, v{d0+4*t+r}, v{NR+1+2*(2*hh+t)}, v{c+4+r}')
            for r in range(8): A(f'v_exp_f32 v{T+r}, v{d0+r}')
            for r in range(8): A(f'v_add_f32 v{T+r}, 1.0, v{T+r}')
            for r in range(8): A(f'v_rcp_f32 v{T+r}, v{T+r}')
            for r in range(8): A(f'v_mul_f32 v{d0+r}, v{d0+r}, v{T+r}')
            for t in range(2):
                d=d0+4*t
                A(f'v_cvt_pk_bf16_f32 v{d}, v{d}, v{d+1}')
                A(f'v_cvt_pk_bf16_f32 v{d+1}, v{d+2}, v{d+3}')
            for t in range(2):
                A(f'ds_write_b64 v{19+j}, v[{d0+4*t}:{d0+4*t+1}] offset:{(2*hh+t)*1024}')
    A('s_waitcnt lgkmcnt(0)')
    A('v_mov_b32 v9, 1')
    A('ds_write_b32 v5, v9')
    A(f'v_mov_b32 v5, {KF_FL}')
    stamp(A,5)
    def waitflags(g):
        A(f'KF_W{g}:')
        A(f'ds_read_b64 v[18:19], v5 offset:{g*8}')
        A('s_waitcnt lgkmcnt(0)')
        A('v_and_b32 v18, v18, v19')
        A('v_readfirstlane_b32 s30, v18')
        A('s_cmp_eq_u32 s30, 1')
        A(f's_cbranch_scc1 KF_G{g}')
        if os.environ.get('KFSL','0')=='1': A('s_sleep 2')
        A(f's_branch KF_W{g}')
        A(f'KF_G{g}:')
    FL=os.environ.get('KFFL','1')=='1'
    if FL: waitflags(0)
    else: A('s_barrier')
    stamp(A,6)
    for x in rdH(0): A(x)
    steps(18,rdH,['v_add_u32 v4, 0x9000, v4'],waitflags if FL else None)
    for j in range(3):
        for tp in range(2):
            d=ACC+16*j+8*tp
            for e in range(4): A(f'v_cvt_pk_bf16_f32 v{d+e}, v{d+2*e}, v{d+2*e+1}')
            o=j*2048+tp*1024
            A(f'buffer_store_dwordx4 v[{d}:{d+3}], v3, s[16:19], s{34 if o<4096 else 35} offen offset:{o&4095} {POL["H"]}')
    stamp(A,7)
    A(f's_load_dwordx2 s[6:7], s[0:1], {KA["out"]}')
    srd(A,36,4,4096,WS['CNT'])
    A('s_lshl_b32 s30, s21, 7')
    A('v_mov_b32 v8, 0')
    A(f'v_mov_b32 v5, {KF_FL}')
    A('v_and_b32 v10, 15, v1')
    A('v_lshrrev_b32 v11, 4, v1')
    A('v_lshlrev_b32 v12, 9, v11')
    A('v_lshl_add_u32 v12, v10, 1, v12')
    A('v_lshlrev_b32 v13, 4, v11')
    A('s_lshl_b32 s27, s21, 6')
    A('v_add_u32 v14, s27, v10')
    A('v_mul_u32_u24 v14, 1152, v14')
    A('v_lshl_add_u32 v14, v11, 3, v14')
    srd(A,52,4,3456*4,WS['MOD'])
    A('v_readfirstlane_b32 s46, v0')
    A('s_lshr_b32 s46, s46, 6')
    A('s_waitcnt vmcnt(0) lgkmcnt(0)')
    srd(A,40,6,SZ_XT)
    A('s_barrier')
    A('s_cmp_lg_u32 s46, 0')
    A('s_cbranch_scc1 KF_RW')
    A('v_mov_b32 v9, 1')
    A('s_mov_b64 exec, 1')
    A('buffer_atomic_add v9, v8, s[36:39], s30 offen sc0 sc1')
    A('s_waitcnt vmcnt(0)')
    A('v_readfirstlane_b32 s47, v9')
    A('s_lshl_b32 s48, 1, s20')
    A('s_cmp_eq_u32 s47, 7')
    A('s_cbranch_scc0 KF_RP0')
    A('buffer_load_dword v9, v8, s[36:39], s30 offen offset:4 sc1')
    A('s_waitcnt vmcnt(0)')
    A('v_readfirstlane_b32 s47, v9')
    A('s_or_b32 s48, s48, s47')
    A('s_branch KF_RD')
    A('KF_RP0:')
    A('s_mov_b32 s49, 0')
    A('KF_RP:')
    A('buffer_load_dword v9, v8, s[36:39], s30 offen sc1')
    A('s_waitcnt vmcnt(0)')
    A('v_readfirstlane_b32 s47, v9')
    A('s_cmp_ge_u32 s47, 8')
    A('s_cbranch_scc1 KF_RD')
    A('s_add_u32 s49, s49, 1')
    A(f's_cmp_lt_u32 s49, {int(os.environ.get("RPMAX","256"))}')
    A('s_cbranch_scc1 KF_RP')
    A('v_mov_b32 v9, s48')
    A('buffer_atomic_or v9, v8, s[36:39], s30 offen offset:4 sc0 sc1')
    A('s_waitcnt vmcnt(0)')
    A('buffer_load_dword v9, v8, s[36:39], s30 offen sc1')
    A('s_waitcnt vmcnt(0)')
    A('v_readfirstlane_b32 s47, v9')
    A('s_cmp_ge_u32 s47, 8')
    A('s_cselect_b32 s48, s48, 0')
    A('KF_RD:')
    A('v_mov_b32 v9, s48')
    A('ds_write_b32 v5, v9')
    A('s_mov_b64 exec, -1')
    A('s_waitcnt lgkmcnt(0)')
    A('KF_RW:')
    A('s_barrier')
    A('s_cmp_ge_u32 s46, 9')
    A('s_cbranch_scc1 KF_FIN')
    A('ds_read_b32 v9, v5')
    A('s_waitcnt lgkmcnt(0)')
    A('v_readfirstlane_b32 s48, v9')
    A('KF_RL:')
    A('s_cmp_eq_u32 s48, 0')
    A('s_cbranch_scc1 KF_FIN')
    A('s_ff1_i32_b32 s47, s48')
    A('s_bitset0_b32 s48, s47')
    A('s_mul_i32 s47, s47, 9')
    A('s_add_u32 s47, s47, s46')
    A('s_and_b32 s49, s47, 1')
    A('s_lshr_b32 s50, s47, 1')
    A('s_mul_i32 s27, s21, 73728')
    A('s_lshl_b32 s28, s47, 10')
    A('s_add_u32 s28, s28, s27')
    for f in range(8):
        A(f's_add_u32 s31, s28, {f*2359296}')
        A(f'buffer_load_dwordx4 v[{24+4*f}:{27+4*f}], v3, s[16:19], s31 offen sc1')
    A('s_lshl_b32 s28, s50, 11')
    A('s_add_u32 s28, s28, s27')
    A('s_lshl_b32 s31, s49, 6')
    A('s_add_u32 s28, s28, s31')
    for t in range(2):
        for r in range(4):
            A(f'buffer_load_ushort v{56+4*t+r}, v12, s[12:15], s28 offen offset:{r*128+t*32}')
    A('s_lshl_b32 s29, s50, 6')
    A('s_add_u32 s29, s29, 11520')
    A('buffer_load_dwordx4 v[64:67], v13, s[52:55], s29 offen')
    A('s_mul_i32 s28, s49, 36864')
    A('s_lshl_b32 s31, s50, 5')
    A('s_add_u32 s28, s28, s31')
    A('s_add_u32 s31, s28, 18432')
    S=72; U=80
    for f in range(8):
        A(f's_waitcnt vmcnt({16-f})')
        for e in range(4):
            if f==0: unpack(A,S+2*e,S+2*e+1,24+e)
            else:
                unpack(A,U+2*e,U+2*e+1,24+4*f+e)
                A(f'v_pk_add_f32 v[{S+2*e}:{S+2*e+1}], v[{S+2*e}:{S+2*e+1}], v[{U+2*e}:{U+2*e+1}]')
    for r in range(8): A(f'v_mul_f32 v{S+r}, 0xbf317218, v{S+r}')
    for e in range(4): A(f'v_cvt_pk_bf16_f32 v{U+e}, v{S+2*e}, v{S+2*e+1}')
    for e in range(4): unpack(A,S+2*e,S+2*e+1,U+e)
    A('s_waitcnt vmcnt(0)')
    for e in range(4): A(f'v_pk_mul_f32 v[{S+2*e}:{S+2*e+1}], v[{S+2*e}:{S+2*e+1}], v[{64+2*(e&1)}:{65+2*(e&1)}]')
    for e in range(4): A(f'v_cvt_pk_bf16_f32 v{U+e}, v{S+2*e}, v{S+2*e+1}')
    for e in range(4): unpack(A,S+2*e,S+2*e+1,U+e)
    for r in range(8): A(f'v_lshlrev_b32 v{56+r}, 16, v{56+r}')
    for e in range(4): A(f'v_pk_add_f32 v[{S+2*e}:{S+2*e+1}], v[{S+2*e}:{S+2*e+1}], v[{56+2*e}:{57+2*e}]')
    for e in range(4): A(f'v_cvt_pk_bf16_f32 v{88+e}, v{S+2*e}, v{S+2*e+1}')
    A('buffer_store_dwordx2 v[88:89], v14, s[40:43], s28 offen')
    A('buffer_store_dwordx2 v[90:91], v14, s[40:43], s31 offen')
    A('s_waitcnt vmcnt(0)')
    A('s_branch KF_RL')
    A('KF_FIN:')
    if STAMP: A('s_waitcnt vmcnt(0)')
    stamp(A,8)
    if STAMP:
        A('s_and_b32 s30, s22, 3')
        A('s_cmp_lg_u32 s30, 0')
        A('s_cbranch_scc1 KF_END')
        A('s_lshr_b32 s30, s22, 2')
        A('s_lshl_b32 s30, s30, 6')
        A('v_mov_b32 v0, s30')
    stamp_out(A,9,2)
    A('KF_END:')
    A('s_endpgm')
    return A.text(), kd('k3_kernel',RING+12*P)

def gen_k5():
    A=Asm()
    A('k4_kernel:')
    A('s_cmp_ge_u32 s2, 576')
    A('s_cbranch_scc1 K5_END')
    stamp(A,0)
    A(f's_load_dwordx2 s[4:5], s[0:1], {KA["ws"]}')
    A(f's_load_dwordx2 s[6:7], s[0:1], {KA["out"]}')
    A('v_and_b32 v1, 63, v0')
    A('v_lshrrev_b32 v2, 6, v0')
    A('v_readfirstlane_b32 s22, v2')
    A('v_lshlrev_b32 v3, 4, v1')
    A('s_and_b32 s20, s2, 7')
    A('s_mul_i32 s20, s20, 72')
    A('s_lshr_b32 s21, s2, 3')
    A('s_add_u32 s20, s20, s21')
    A('s_lshl_b32 s20, s20, 2')
    A('s_add_u32 s20, s20, s22')
    A('s_and_b32 s21, s20, 1')
    A('s_lshr_b32 s23, s20, 1')
    A('s_mul_i32 s24, s23, 1821')
    A('s_lshr_b32 s24, s24, 16')
    A('s_mul_i32 s25, s24, 36')
    A('s_sub_u32 s25, s23, s25')
    A('s_lshl_b32 s26, s20, 10')
    A('v_and_b32 v4, 15, v1')
    A('v_lshrrev_b32 v5, 4, v1')
    A('v_lshlrev_b32 v6, 9, v5')
    A('v_lshl_add_u32 v6, v4, 1, v6')
    A('s_mul_i32 s27, s24, 73728')
    A('s_lshl_b32 s28, s25, 11')
    A('s_add_u32 s27, s27, s28')
    A('s_lshl_b32 s28, s21, 6')
    A('s_add_u32 s27, s27, s28')
    A('v_lshlrev_b32 v7, 4, v5')
    A('s_lshl_b32 s29, s25, 6')
    A('s_add_u32 s29, s29, 11520')
    A('s_waitcnt lgkmcnt(0)')
    srd(A,8,4,SZ_P,WS['HF'])
    for f in range(8):
        A(f's_add_u32 s30, s26, {f*2359296}')
        A(f'buffer_load_dwordx4 v[{16+4*f}:{19+4*f}], v3, s[8:11], s30 offen')
    srd(A,16,4,SZ_XT,WS['X1T'])
    for t in range(2):
        for r in range(4):
            A(f'buffer_load_ushort v{8+4*t+r}, v6, s[16:19], s27 offen offset:{r*128+t*32}')
    srd(A,52,4,3456*4,WS['MOD'])
    A('buffer_load_dwordx4 v[48:51], v7, s[52:55], s29 offen')
    srd(A,56,6,SZ_XT)
    A('s_lshl_b32 s27, s24, 6')
    A('s_lshl_b32 s28, s21, 5')
    A('s_add_u32 s27, s27, s28')
    A('v_add_u32 v52, s27, v4')
    A('v_mul_u32_u24 v52, 1152, v52')
    A('v_lshl_add_u32 v52, v5, 3, v52')
    A('s_lshl_b32 s28, s25, 5')
    A('s_add_u32 s31, s28, 18432')
    S=56
    for f in range(8):
        A(f's_waitcnt vmcnt({16-f})')
        for e in range(4):
            if f==0: unpack(A,S+2*e,S+2*e+1,16+e)
            else:
                unpack(A,64+2*e,65+2*e,16+4*f+e)
                A(f'v_pk_add_f32 v[{S+2*e}:{S+2*e+1}], v[{S+2*e}:{S+2*e+1}], v[{64+2*e}:{65+2*e}]')
    for r in range(8): A(f'v_mul_f32 v{S+r}, 0xbf317218, v{S+r}')
    for e in range(4): A(f'v_cvt_pk_bf16_f32 v{16+e}, v{S+2*e}, v{S+2*e+1}')
    for e in range(4): unpack(A,S+2*e,S+2*e+1,16+e)
    A('s_waitcnt vmcnt(0)')
    for e in range(4): A(f'v_pk_mul_f32 v[{S+2*e}:{S+2*e+1}], v[{S+2*e}:{S+2*e+1}], v[{48+2*(e&1)}:{49+2*(e&1)}]')
    for e in range(4): A(f'v_cvt_pk_bf16_f32 v{16+e}, v{S+2*e}, v{S+2*e+1}')
    for e in range(4): unpack(A,S+2*e,S+2*e+1,16+e)
    for r in range(8): A(f'v_lshlrev_b32 v{8+r}, 16, v{8+r}')
    for e in range(4): A(f'v_pk_add_f32 v[{S+2*e}:{S+2*e+1}], v[{S+2*e}:{S+2*e+1}], v[{8+2*e}:{9+2*e}]')
    for e in range(4): A(f'v_cvt_pk_bf16_f32 v{16+e}, v{S+2*e}, v{S+2*e+1}')
    A('buffer_store_dwordx2 v[16:17], v52, s[56:59], s28 offen')
    A('buffer_store_dwordx2 v[18:19], v52, s[56:59], s31 offen')
    stamp(A,1)
    if STAMP: A('s_waitcnt vmcnt(0)')
    stamp(A,2)
    stamp_out(A,3,3)
    A('K5_END:')
    A('s_endpgm')
    return A.text(), kd('k4_kernel',72)

def assemble(kernels, fn):
    hdr=open('cdna_kernels/'+NAME+'.s.ref').read().split('\n')
    out=[l for l in hdr if l.startswith(';') and '@launch' not in l and 'Override launch' not in l and 'grid=ceil' not in l]
    for k in kernels:
        out.append(f'; @launch kernel={k[0]} grid=({k[1]},1,1) block=({k[2]},1,1) lds={k[3]}')
    out.append('.amdgcn_target "amdgcn-amd-amdhsa--gfx950"')
    out.append('.text')
    seen=set()
    for k in kernels:
        if k[0] in seen: continue
        seen.add(k[0])
        out.append(f'.globl {k[0]}\n.p2align 8\n.type {k[0]},@function')
        out.append(k[4])
    out.append('CODE_END:')
    seen=set()
    for k in kernels:
        if k[0] in seen: continue
        seen.add(k[0])
        out.append(k[5])
    open(fn,'w').write('\n'.join(out))

if __name__=='__main__':
    t1,d1=gen_k1(); t2,d2=gen_k2(); t3,d3=gen_kf(); t4,d4=gen_k5()
    ks=[('k1_kernel',K1_GRID,256,K1_LDS,t1,d1),('k2_kernel',K2_GRID,256,K2_LDS,t2,d2),
        ('k3_kernel',256,768,KF_LDS,t3,d3),('k4_kernel',576,256,0,t4,d4)]
    nk=int(os.environ.get('NK','3'))
    assemble(ks[:nk], sys.argv[1] if len(sys.argv)>1 else 'k.s')
```
